```python
import torch

def _softmax(x, axis=-1):
    return torch.softmax(x, dim=axis)

def _gelu(x):
    return torch.nn.functional.gelu(x, approximate='tanh')

def _silu(x):
    return torch.nn.functional.silu(x)

def _sigmoid(x):
    return torch.sigmoid(x)

def _layernorm(x, axis=-1, eps=1e-05):
    m = x.mean(dim=axis, keepdim=True)
    v = x.var(dim=axis, keepdim=True, unbiased=False)
    return (x - m) / torch.sqrt(v + eps)

def _scatter_add(tgt, idx, src, axis=0):
    return tgt.clone().index_add_(axis, idx, src)

def _segment_sum(src, seg, n):
    out = torch.zeros((n,) + src.shape[1:], dtype=src.dtype)
    return out.index_add_(0, seg, src)

def _pad(x, pw):
    flat = tuple((v for pair in reversed(pw) for v in pair))
    return torch.nn.functional.pad(x, flat)
kernel_name = 'adaLN_cond__gqa_block_cached__glu_gated_bilinear__decode'

def setup_inputs():

    _w = lambda a: (lambda t: t.to(torch.bfloat16) if t.is_floating_point() else t)(torch.as_tensor(a))

    def _A_setup():
        B, Sq, D = (1, 1, 640)
        Hq, Hkv, Sk, Dh = (32, 32, 4096, 192)
        assert Hq % Hkv == 0, (Hq, Hkv)
        return {'x': _w((lambda *s: torch.randn(*s, dtype=torch.bfloat16) * 0.1)(B, Sq, D)), 'k_cache': _w((lambda *s: torch.randn(*s, dtype=torch.bfloat16) * 0.8)(B, Hkv, Sk, Dh)), 'v_cache': _w((lambda *s: torch.randn(*s, dtype=torch.bfloat16) * 3.2)(B, Hkv, Sk, Dh)), 'wq': _w((lambda *s: torch.randn(*s, dtype=torch.bfloat16) * 0.8)(D, Hq * Dh) * D ** (-0.5)), 'wo': _w((lambda *s: torch.randn(*s, dtype=torch.bfloat16) * 3.2)(Hq * Dh, D) * (Hq * Dh) ** (-0.5))}
    _A_in = _A_setup()

    def _B_setup():
        B, S, D, F = (1, 1, 640, 1536)
        return {'x': _w((lambda *s: torch.randn(*s, dtype=torch.bfloat16) * 0.1)(B, S, D)), 'w_gate': _w((lambda *s: torch.randn(*s, dtype=torch.bfloat16) * 3.2)(D, F) * D ** (-0.5)), 'w_up': _w((lambda *s: torch.randn(*s, dtype=torch.bfloat16) * 3.2)(D, F) * D ** (-0.5)), 'w_down': _w((lambda *s: torch.randn(*s, dtype=torch.bfloat16) * 3.2)(F, D) * F ** (-0.5))}
    _B_in = _B_setup()
    return {'A_x': _A_in['x'], 'A_k_cache': _A_in['k_cache'], 'A_v_cache': _A_in['v_cache'], 'A_wq': _A_in['wq'], 'A_wo': _A_in['wo'], 'B_x': _B_in['x'], 'B_w_gate': _B_in['w_gate'], 'B_w_up': _B_in['w_up'], 'B_w_down': _B_in['w_down'], 'c': _w((lambda *s: torch.randn(*s, dtype=torch.bfloat16) * 0.4)(1, 640) * 8.0), 'w_mod': _w((lambda *s: torch.randn(*s, dtype=torch.bfloat16) * 0.4)(640, 6 * 640) * 640 ** (-0.5) * 8.0)}

def reference(A_x, A_k_cache, A_v_cache, A_wq, A_wo, B_x, B_w_gate, B_w_up, B_w_down, c, w_mod):

    def _A_ref(x, k_cache, v_cache, wq, wo):
        B, Sq, D = x.shape
        Hq, Dh = (32, 192)
        Hkv = k_cache.shape[1]
        rep = Hq // Hkv
        q = (lambda x, *d: x.permute(*d))((x @ wq).reshape(B, Sq, Hq, Dh), 0, 2, 1, 3)
        k = (lambda x, n, axis: torch.repeat_interleave(x, n, dim=axis))(k_cache, rep, axis=1)
        v = (lambda x, n, axis: torch.repeat_interleave(x, n, dim=axis))(v_cache, rep, axis=1)
        scores = torch.einsum('bhqd,bhkd->bhqk', q, k) * Dh ** (-0.5)
        p = _softmax(scores, axis=-1)
        o = torch.einsum('bhqk,bhkd->bhqd', p, v)
        return (lambda x, *d: x.permute(*d))(o, 0, 2, 1, 3).reshape(B, Sq, Hq * Dh) @ wo

    def _B_ref(x, w_gate, w_up, w_down):
        g = torch.einsum('bsd,df->bsf', x, w_gate)
        u = torch.einsum('bsd,df->bsf', x, w_up)
        h = g * u
        return torch.einsum('bsf,fd->bsd', h, w_down)
    x = A_x
    mod = (_silu(c) @ w_mod).reshape(c.shape[0], 6, 1, -1)
    sa, ca, ga, sb, cb, gb = (mod[:, 0].clone(), mod[:, 1].clone(), mod[:, 2].clone(), mod[:, 3].clone(), mod[:, 4].clone(), mod[:, 5].clone())
    h = _layernorm(x, axis=-1) * (1 + ca) + sa
    x = x + ga * _A_ref(h, A_k_cache, A_v_cache, A_wq, A_wo)
    h = _layernorm(x, axis=-1) * (1 + cb) + sb
    x = x + gb * _B_ref(h, B_w_gate, B_w_up, B_w_down)
    return x
```

```python
KN = 'adaLN_cond__gqa_block_cached__glu_gated_bilinear__decode'
HEADER = open('cdna_kernels/%s.s.ref' % KN).read().split('; Override launch geometry')[0]

class Asm:
    def __init__(self):
        self.lines = []
        self.nlabel = 0
    def __call__(self, s):
        for l in s.strip('\n').split('\n'):
            self.lines.append('    ' + l.strip() if not l.strip().endswith(':') else l.strip())
    def label(self, name):
        self.lines.append(name + ':')
    def newlabel(self, pfx='L'):
        self.nlabel += 1
        return '%s_%d' % (pfx, self.nlabel)
    def comment(self, s):
        self.lines.append('    ; ' + s)
    def text(self):
        return '\n'.join(self.lines) + '\n'

def wrap(body, grid, block, lds, vgpr, sgpr=102, accum=None, name=KN + '_kernel'):
    if accum is None:
        accum = (vgpr + 3) // 4 * 4
    s = HEADER
    s += '; @launch grid=(%d,1,1) block=(%d,1,1) lds=%d\n' % (grid, block, lds)
    s += '.amdgcn_target "amdgcn-amd-amdhsa--gfx950"\n.text\n.globl %s\n.p2align 8\n.type %s,@function\n%s:\n' % (name, name, name)
    s += body
    s += '.section .rodata,"a"\n.p2align 6\n.amdhsa_kernel %s\n' % name
    s += '  .amdhsa_next_free_vgpr %d\n  .amdhsa_next_free_sgpr %d\n  .amdhsa_accum_offset %d\n' % (vgpr, sgpr, accum)
    s += '''  .amdhsa_group_segment_fixed_size 0
  .amdhsa_kernarg_size 112
  .amdhsa_user_sgpr_count 2
  .amdhsa_user_sgpr_kernarg_segment_ptr 1
  .amdhsa_system_sgpr_workgroup_id_x 1
.end_amdhsa_kernel
'''
    return s
```

```python
import sys, struct
from asmgen import *

OFF_MOD = 0x0
OFF_Q   = 0x10000
OFF_ST  = 0x40000
OFF_O   = 0x50000
OFF_A   = 0x200000
OFF_X   = 0x300000
OFF_H   = 0x310000
OFF_G   = 0x340000
OFF_F   = 0x360000
OFF_MB  = 0x410000
OFF_STAMP = 128 << 20
WS_BYTES = 268435456
OOB = 0x7ffffff0
L_FLAGQ, L_CNTST, L_FLAGP, L_MODE, L_INIT, L_CNTPV, L_FLAGA, L_INIT2 = 0, 4, 8, 12, 16, 20, 24, 28
L_Q = 256
L_STAT = 1024
L_GSTAT = 1152
L_P = 2048
L_S = 4096
L_H = 5120
L_H2 = 5632
L_GU = 6144
LDS_BYTES = 8192

def f32(x):
    return '0x%08x' % struct.unpack('<I', struct.pack('<f', x))[0]

LOG2E = 1.4426950408889634
L2E_HI = struct.unpack('<f', struct.pack('<f', LOG2E))[0]
L2E_LO = LOG2E - L2E_HI
LN2 = 0.6931471805599453

class VM:
    def __init__(self, a):
        self.a = a; self.n = 0; self.done = 0
    def issue(self):
        self.n += 1; return self.n - 1
    def wait(self, idx):
        if idx < self.done: return
        cnt = self.n - 1 - idx
        assert cnt <= 63
        self.a('s_waitcnt vmcnt(%d)' % cnt)
        self.done = idx + 1
    def throttle(self, depth):
        if self.n - self.done >= depth:
            self.wait(self.n - depth)
    def all(self):
        if self.done < self.n:
            self.a('s_waitcnt vmcnt(0)'); self.done = self.n

class Gen:
    def __init__(self, stamps=False, depth=4, qk_after=6, adepth=6, gupol='', **kw):
        self.a = Asm(); self.stamps = stamps; self.depth = depth; self.qk_after = qk_after
        self.adepth = adepth; self.gupol = gupol
        self.opt = kw

    def srd(self, d, p, size):
        self.a('s_mov_b32 s%d, s%d\ns_mov_b32 s%d, s%d\ns_mov_b32 s%d, %d\ns_mov_b32 s%d, 0x20000' % (d, p, d + 1, p + 1, d + 2, size, d + 3))

    STPOOL = [37, 38, 39, 40, 41, 42, 43, 44, 47, 98, 99, 100, 101]
    def stamp_begin(self):
        self.stlist = []
        if self.stamps:
            for r in self.STPOOL: self.a('s_mov_b32 s%d, 0' % r)
    def stamp(self, idx, vm=None, t0=None, t1=None):
        if not self.stamps: return
        r = self.STPOOL[len(self.stlist)]
        self.stlist.append((idx, r))
        self.a('s_memrealtime s[90:91]\ns_waitcnt lgkmcnt(0)\ns_mov_b32 s%d, s90' % r)
    def stamp_flush(self):
        if not self.stamps: return
        a = self.a
        a('s_lshl_b32 s92, s2, 8\ns_add_u32 s92, s92, %d\nv_mov_b32 v1, 0\nv_mov_b32 v3, 0\ns_mov_b64 exec, 1' % OFF_STAMP)
        for idx, r in self.stlist:
            a('v_mov_b32 v2, s%d\nbuffer_store_dwordx2 v[2:3], v1, s[16:19], s92 offen offset:%d\ns_nop 1' % (r, idx * 8))

    def rnd(self, dst, src, tmp=None):
        t = dst if tmp is None else tmp
        self.a('v_cvt_pk_bf16_f32 v%d, v%d, v%d\nv_and_b32 v%d, 0xffff0000, v%d' % (t, src, src, dst, t))

    def wave_reduce(self, v, t, op):
        a = self.a
        for r in (8, 4, 2, 1):
            a('s_nop 1\nv_%s_f32_dpp v%d, v%d, v%d row_ror:%d row_mask:0xf bank_mask:0xf' % (op, v, v, v, r))
        for sw in ('16', '32'):
            a('v_mov_b32 v%d, v%d\ns_nop 1\nv_permlane%s_swap_b32 v%d, v%d\nv_%s_f32 v%d, v%d, v%d' % (t, v, sw, v, t, op, v, v, t))

    def red8(self, r):
        a = self.a
        a('''
        s_nop 1
        v_permlane32_swap_b32 v%d, v%d
        v_permlane32_swap_b32 v%d, v%d
        v_add_f32 v%d, v%d, v%d
        v_add_f32 v%d, v%d, v%d
        s_nop 1
        v_permlane16_swap_b32 v%d, v%d
        v_add_f32 v%d, v%d, v%d
        s_nop 1
        v_add_f32_dpp v%d, v%d, v%d row_ror:8 row_mask:0xf bank_mask:0xf
        ''' % (r[0], r[1], r[2], r[3], r[0], r[0], r[1], r[2], r[2], r[3], r[0], r[2], r[0], r[0], r[2], r[0], r[0], r[0]))

    def exp(self, dst, x, t1, t2):
        self.a('''
        v_mul_f32 v%d, %s, v%d
        v_fma_f32 v%d, v%d, s94, -v%d
        v_fmac_f32 v%d, %s, v%d
        v_exp_f32 v%d, v%d
        v_mul_f32 v%d, %s, v%d
        v_fma_f32 v%d, v%d, v%d, v%d
        ''' % (t1, f32(L2E_HI), x, t2, x, t1, t2, f32(L2E_LO), x, t1, t1, t2, f32(LN2), t2, dst, t1, t2, t1))

    def div(self, dst, n, d, t1, t2):
        self.a('''
        v_rcp_f32 v%d, v%d
        s_nop 0
        v_mul_f32 v%d, v%d, v%d
        v_fma_f32 v%d, -v%d, v%d, v%d
        v_fma_f32 v%d, v%d, v%d, v%d
        ''' % (t1, d, t2, n, t1, dst, t2, d, n, dst, dst, t1, t2))

    def lds_spin(self, addr, val, vt, va, sleep=1, ge=False, out=None):
        a = self.a
        l = a.newlabel('SP')
        a('v_mov_b32 v%d, %d\ns_mov_b32 s95, 0' % (va, addr))
        a.label(l)
        a('ds_read_b32 v%d, v%d\ns_waitcnt lgkmcnt(0)\nv_readfirstlane_b32 s93, v%d' % (vt, va, vt))
        l2 = a.newlabel('SPD')
        if val is None:
            a('s_cmp_lg_u32 s93, 0')
        else:
            a('s_cmp_eq_u32 s93, %d' % val)
        a('s_cbranch_scc1 %s' % l2)
        if sleep: a('s_sleep %d' % sleep)
        a('s_add_u32 s95, s95, 1\ns_cmp_lt_u32 s95, 0x40000\ns_cbranch_scc1 %s' % l)
        a.label(l2)

    def lds_set(self, addr, val, vt, va):
        self.a('v_mov_b32 v%d, %d\nv_mov_b32 v%d, %s\nds_write_b32 v%d, v%d' % (va, addr, vt, val, va, vt))

    def store_intra(self, instrs):
        a = self.a
        lf = a.newlabel('SF'); lj = a.newlabel('SJ')
        a('s_cmp_eq_u32 s45, 1\ns_cbranch_scc1 %s' % lf)
        for i in instrs: a(i + ' sc1')
        a('s_branch %s' % lj)
        a.label(lf)
        for i in instrs: a(i)
        a.label(lj)

    def poll(self, loads, regs, vt, sleep=0):
        a = self.a
        l = a.newlabel('PL')
        a('s_mov_b32 s95, 0')
        a.label(l)
        for i in loads: a(i + ' sc1')
        a('s_waitcnt vmcnt(0)')
        rs = list(regs)
        if len(rs) == 1:
            a('v_cmp_eq_u32 vcc, -1, v%d' % rs[0])
        else:
            if len(rs) == 2:
                a('v_max_u32 v%d, v%d, v%d' % (vt, rs[0], rs[1])); rest = []
            else:
                a('v_max3_u32 v%d, v%d, v%d, v%d' % (vt, rs[0], rs[1], rs[2])); rest = rs[3:]
            while rest:
                if len(rest) == 1:
                    a('v_max_u32 v%d, v%d, v%d' % (vt, vt, rest[0])); rest = []
                else:
                    a('v_max3_u32 v%d, v%d, v%d, v%d' % (vt, vt, rest[0], rest[1])); rest = rest[2:]
            a('v_cmp_eq_u32 vcc, -1, v%d' % vt)
        l2 = a.newlabel('PD')
        a('s_cbranch_vccz %s' % l2)
        if sleep: a('s_sleep %d' % sleep)
        a('s_add_u32 s95, s95, 1\ns_cmp_lt_u32 s95, 0x10000\ns_cbranch_scc1 %s' % l)
        a.label(l2)

    def sel_masks(self, m, t1, t2):
        a = self.a
        a('''
        v_and_b32 v%d, 1, v0
        v_lshlrev_b32 v%d, 4, v%d
        v_mov_b32 v%d, 0xffff
        v_lshlrev_b32 v%d, v%d, v%d
        v_bfe_u32 v%d, v0, 1, 2
        ''' % (t1, t1, t1, t2, t1, t1, t2, t2))
        for k in range(4):
            a('v_cmp_eq_u32 vcc, %d, v%d\ns_nop 1\nv_cndmask_b32 v%d, 0, v%d, vcc' % (k, t2, m + k, t1))

    def pv_addr(self, dst, t1, base):
        self.a('''
        v_lshrrev_b32 v%d, 4, v0
        v_bfe_u32 v%d, v0, 3, 1
        v_lshl_add_u32 v%d, v%d, 2, v%d
        v_lshlrev_b32 v%d, 2, v%d
        v_add_u32 v%d, %s, v%d
        ''' % (dst, t1, dst, t1, dst, dst, dst, dst, base, dst))

    def vshape_offsets(self, v1, v3, t1, t2, rowstride):
        self.a('''
        v_lshrrev_b32 v%d, 4, v0
        v_and_b32 v%d, 15, v0
        v_mul_u32_u24 v%d, %d, v%d
        v_lshl_add_u32 v%d, v%d, 4, v%d
        v_bfe_u32 v%d, v0, 3, 1
        v_lshl_add_u32 v%d, v%d, 2, v%d
        v_mul_u32_u24 v%d, %d, v%d
        v_and_b32 v%d, 7, v0
        v_lshl_add_u32 v%d, v%d, 4, v%d
        v_add_u32 v%d, 256, v%d
        ''' % (t1, t2, v1, rowstride, t1, v1, t2, v1, t2, v3, t2, t1, v3, rowstride, v3, t2, v3, t2, v3, v3, v3))

    def vshape_combine(self, d1, d2, d3, voff, t1, t2):
        a = self.a
        a('''
        v_and_b32 v%d, 15, v0
        v_lshrrev_b32 v%d, 4, v0
        v_lshlrev_b32 v%d, 5, v%d
        v_lshl_add_u32 v%d, v%d, 4, v%d
        v_add_u32 v%d, %d, v%d
        v_cmp_gt_u32 vcc, 32, v0
        v_mov_b32 v%d, %s
        s_nop 0
        v_cndmask_b32 v%d, v%d, v%d, vcc
        v_and_b32 v%d, 40, v0
        v_cmp_eq_u32 vcc, 32, v%d
        s_nop 1
        v_cndmask_b32 v%d, v%d, v%d, vcc
        ''' % (t1, t2, voff, t1, voff, t2, voff,
               t1, 512 - 256 - 32, voff,
               t2, OOB, voff, t1, voff,
               t1, t1, voff, voff, t2))
        a('s_nop 4')
        for r in range(4):
            a('v_permlane32_swap_b32 v%d, v%d' % (d2 + r, d3 + r))
        for r in range(4):
            a('v_add_f32 v%d, v%d, v%d' % (d1 + r, d1 + r, d3 + r))
        for r in range(4):
            a('v_add_f32_dpp v%d, v%d, v%d row_ror:8 row_mask:0xc bank_mask:0xf' % (d1 + r, d2 + r, d3 + r))
        for r in range(4):
            a('v_min_u32 v%d, -2, v%d' % (d1 + r, d1 + r))

    def t3_gemv(self, n, W, acc, vpv, masks, sel, pvr, wait=None):
        a = self.a
        a('ds_read_b32 v%d, v%d offset:0' % (pvr, vpv))
        if n > 1: a('ds_read_b32 v%d, v%d offset:32' % (pvr + 1, vpv))
        for t in range(n):
            s = sel + 4 * (t & 1); pv = pvr + (t & 1)
            a('s_waitcnt lgkmcnt(%d)' % (1 if t < n - 1 else 0))
            for k in range(4):
                a('v_and_b32 v%d, v%d, v%d' % (s + k, pv, masks + k))
            if t + 2 < n: a('ds_read_b32 v%d, v%d offset:%d' % (pv, vpv, 32 * (t + 2)))
            else: a('s_nop 0')
            a('s_nop 0')
            if wait: wait(t)
            c = '0' if t == 0 else 'v[%d:%d]' % (acc, acc + 3)
            a('v_mfma_f32_16x16x32_bf16 v[%d:%d], v[%d:%d], v[%d:%d], %s' % (acc, acc + 3, s, s + 3, W + 4 * t, W + 4 * t + 3, c))

    def t3_off(self, voff, t1, t2):
        self.a('''
        v_and_b32 v%d, 15, v0
        v_lshrrev_b32 v%d, 4, v0
        v_lshlrev_b32 v%d, 5, v%d
        v_lshl_add_u32 v%d, v%d, 4, v%d
        v_and_b32 v%d, 40, v0
        v_cmp_eq_u32 vcc, 0, v%d
        v_mov_b32 v%d, %s
        s_nop 0
        v_cndmask_b32 v%d, v%d, v%d, vcc
        ''' % (t1, t2, voff, t1, voff, t2, voff, t1, t1, t2, OOB, voff, t2, voff))

    def t3_combine(self, acc, tmp):
        a = self.a
        a('s_nop 7')
        for r in range(4): a('v_permlane32_swap_b32 v%d, v%d' % (acc + r, tmp + r))
        a('s_nop 0')
        for r in range(4): a('v_add_f32_dpp v%d, v%d, v%d row_ror:8 row_mask:0xf bank_mask:0xf' % (acc + r, tmp + r, acc + r))
        for r in range(4): a('v_min_u32 v%d, -2, v%d' % (acc + r, acc + r))

    def t3_lane_off(self, dst, t1, rowstride):
        self.a('''
        v_lshrrev_b32 v%d, 4, v0
        v_bfe_u32 v%d, v0, 3, 1
        v_lshl_add_u32 v%d, v%d, 2, v%d
        v_mul_u32_u24 v%d, %d, v%d
        v_and_b32 v%d, 7, v0
        v_lshl_add_u32 v%d, v%d, 4, v%d
        ''' % (dst, t1, dst, t1, dst, dst, rowstride, dst, t1, dst, t1, dst))

    def mbpoll_(self, word, sleep=0):
        a = self.a
        l = a.newlabel('MB'); l2 = a.newlabel('MBD')
        a('s_lshl_b32 s20, s6, 7\ns_add_u32 s20, s20, %d\ns_mov_b32 s95, 0' % (OFF_MB + 4 * word))
        a.label(l)
        a('s_load_dword s33, s[74:75], s20 glc\ns_waitcnt lgkmcnt(0)\ns_cmp_lg_u32 s33, -1\ns_cbranch_scc1 %s' % l2)
        if sleep: a('s_sleep %d' % sleep)
        a('s_add_u32 s95, s95, 1\ns_cmp_lt_u32 s95, 0x10000\ns_cbranch_scc1 %s' % l)
        a.label(l2)

    def prologue(self):
        a = self.a
        a('''
        s_cmp_ge_u32 s2, 256
        s_cbranch_scc1 L_end
        s_load_dwordx16 s[48:63], s[0:1], 0
        s_load_dwordx8 s[64:71], s[0:1], 64
        s_load_dwordx4 s[72:75], s[0:1], 96
        v_lshrrev_b32 v1, 6, v0
        v_and_b32 v0, 63, v0
        v_readfirstlane_b32 s3, v1
        s_and_b32 s4, s2, 7
        s_lshr_b32 s5, s2, 3
        s_lshl_b32 s6, s4, 5
        s_add_u32 s6, s6, s5
        s_lshr_b32 s7, s6, 3
        s_and_b32 s46, s6, 7
        s_mov_b32 s94, %s
        s_mov_b32 s45, 0
        s_waitcnt lgkmcnt(0)
        ''' % f32(L2E_HI))
        self.srd(16, 74, WS_BYTES)
        a('''
        s_cmp_eq_u32 s3, 8
        s_cbranch_scc1 L_A0
        s_cmp_eq_u32 s3, 9
        s_cbranch_scc1 L_A1
        s_cmp_eq_u32 s3, 10
        s_cbranch_scc1 L_A2
        s_cmp_eq_u32 s3, 11
        s_cbranch_scc1 L_A3
        ''')

    def s_wave(self):
        a = self.a; vm = VM(a); D = self.depth
        self.stamp_begin()
        self.stamp(0)
        self.srd(8, 50, 50331648); self.srd(12, 52, 50331648)
        a('''
        s_lshl_b32 s20, s6, 3
        s_add_u32 s20, s20, s3
        s_mul_i32 s20, s20, 24576
        v_and_b32 v4, 7, v0
        v_mul_u32_u24 v1, 384, v4
        v_bfe_u32 v4, v0, 3, 1
        v_lshl_add_u32 v1, v4, 6, v1
        v_lshrrev_b32 v4, 4, v0
        v_lshl_add_u32 v1, v4, 4, v1
        ''')
        KB = 28; VF = 124; NF = 11
        kreg = lambda t, s: KB + (t * 3 + s) * 4
        kidx = {}
        first = True
        for t in range(8):
            a('s_add_u32 s21, s20, %d' % (t * 3072))
            for s in range(3):
                vm.throttle(D)
                a('buffer_load_dwordx4 v[%d:%d], v1, s[8:11], s21 offen offset:%d nt' % (kreg(t, s), kreg(t, s) + 3, s * 128))
                kidx[(t, s)] = vm.issue()
                if vm.n == min(D, 4) and first:
                    first = False
                    self.vshape_offsets(2, 3, 4, 5, 384)
                    a('s_barrier')
        vtiles = [(t, ty) for t in range(8) for ty in range(3)]
        vreg = {}
        for n, tt in enumerate(vtiles):
            vreg[tt] = VF + 4 * n if n < NF else KB + 4 * (n - NF)
        vidx = {}
        def issue_v(n):
            t, ty = vtiles[n]
            vm.throttle(D)
            a('s_add_u32 s21, s20, %d' % (t * 3072))
            r = vreg[(t, ty)]
            if ty == 0: a('buffer_load_dwordx4 v[%d:%d], v2, s[12:15], s21 offen nt' % (r, r + 3))
            elif ty == 1: a('buffer_load_dwordx4 v[%d:%d], v2, s[12:15], s21 offen offset:1536 nt' % (r, r + 3))
            else: a('buffer_load_dwordx4 v[%d:%d], v3, s[12:15], s21 offen nt' % (r, r + 3))
            vidx[(t, ty)] = vm.issue()
        P = self.qk_after
        for n in range(P): issue_v(n)
        self.stamp(17)
        self.lds_spin(L_FLAGQ, None, 24, 25, sleep=2)
        a('''
        v_and_b32 v24, 1, v0
        v_lshrrev_b32 v25, 4, v0
        v_lshl_add_u32 v24, v24, 2, v25
        v_lshlrev_b32 v24, 4, v24
        ds_read_b128 v[4:7], v24 offset:%d
        ds_read_b128 v[8:11], v24 offset:%d
        ds_read_b128 v[12:15], v24 offset:%d
        s_waitcnt lgkmcnt(0)
        ''' % (L_Q, L_Q + 128, L_Q + 256))
        vS = 24
        def pack(t):
            acc = 16 + 4 * (t & 1)
            if t % 2 == 0:
                a('v_add_f32_dpp v%d, v%d, v%d row_ror:8 row_mask:0x%x bank_mask:0x3' % (vS, acc + 1, acc, 1 << (t // 2)))
            else:
                a('v_add_f32_dpp v%d, v%d, v%d row_ror:8 row_mask:0x%x bank_mask:0xc' % (vS, acc, acc + 1, 1 << (t // 2)))
        for t in range(8):
            acc = 16 + 4 * (t & 1)
            vm.wait(kidx[(t, 2)])
            for s in range(3):
                c = '0' if s == 0 else 'v[%d:%d]' % (acc, acc + 3)
                a('v_mfma_f32_16x16x32_bf16 v[%d:%d], v[%d:%d], v[%d:%d], %s' % (acc, acc + 3, 4 + 4 * s, 7 + 4 * s, kreg(t, s), kreg(t, s) + 3, c))
            if t >= 1:
                a('s_nop 4')
                pack(t - 1)
                a('s_nop 2')
        a('s_nop 7')
        pack(7)
        a('s_nop 0')
        self.rnd(vS, vS)
        a('v_mul_f32 v%d, %s, v%d' % (vS, f32(192 ** -0.5), vS))
        self.rnd(vS, vS)
        a('v_mov_b32 v16, v%d' % vS)
        self.wave_reduce(16, 17, 'max')
        a('v_sub_f32 v18, v%d, v16\nv_max_f32 v18, %s, v18' % (vS, f32(-200.0)))
        self.exp(17, 18, 19, 20)
        self.wave_reduce(17, 18, 'add')
        a('''
        s_lshl_b32 s21, s3, 3
        s_add_u32 s21, s21, %d
        v_mov_b32 v18, s21
        ds_write_b64 v18, v[16:17]
        v_mov_b32 v18, %d
        v_mov_b32 v19, 1
        s_waitcnt lgkmcnt(0)
        s_mov_b64 exec, 1
        ds_add_u32 v18, v19
        s_mov_b64 exec, -1
        ''' % (L_STAT, L_CNTST))
        self.stamp(15)
        for n in range(P, 24): issue_v(n)
        self.sel_masks(16, 25, 26)
        a('s_lshl_b32 s22, s3, 8\ns_add_u32 s22, s22, %d' % L_P)
        self.pv_addr(1, 25, 's22')
        self.stamp(18)
        self.lds_spin(L_FLAGP, None, 25, 26, sleep=2)
        a('''
        v_mov_b32 v25, %d
        ds_read_b64 v[26:27], v25
        v_mov_b32 v25, %d
        ds_read_b32 v25, v25
        v_lshlrev_b32 v2, 2, v0
        v_add_u32 v2, s22, v2
        s_waitcnt lgkmcnt(0)
        v_readfirstlane_b32 s45, v25
        v_sub_f32 v24, v24, v26
        v_max_f32 v24, %s, v24
        ''' % (L_GSTAT, L_MODE, f32(-200.0)))
        self.exp(24, 24, 20, 21)
        self.div(24, 24, 27, 20, 21)
        a('''
        v_cvt_pk_bf16_f32 v24, v24, v24
        ds_write_b32 v2, v24
        s_waitcnt lgkmcnt(0)
        ds_read_b32 v2, v1 offset:0
        ds_read_b32 v3, v1 offset:32
        ''')
        for t in range(8):
            sel = 20 + 4 * (t & 1)
            pv = 2 + (t & 1)
            a('s_waitcnt lgkmcnt(%d)' % (1 if t < 7 else 0))
            if t == 7:
                a('v_mov_b32 v1, %d\nv_mov_b32 v2, 1\ns_mov_b64 exec, 1\nds_add_u32 v1, v2\ns_mov_b64 exec, -1' % L_CNTPV)
            for k in range(4):
                a('v_and_b32 v%d, v%d, v%d' % (sel + k, pv, 16 + k))
            if t + 2 < 8:
                a('ds_read_b32 v%d, v1 offset:%d' % (pv, 32 * (t + 2)))
            else:
                a('s_nop 0')
            a('s_nop 0')
            for ty in range(3):
                vm.wait(vidx[(t, ty)])
                acc = 4 + 4 * ty
                c = '0' if t == 0 else 'v[%d:%d]' % (acc, acc + 3)
                r = vreg[(t, ty)]
                a('v_mfma_f32_16x16x32_bf16 v[%d:%d], v[%d:%d], v[%d:%d], %s' % (acc, acc + 3, sel, sel + 3, r, r + 3, c))
        self.vshape_combine(4, 8, 12, 1, 2, 3)
        a('''
        s_lshl_b32 s21, s6, 3
        s_add_u32 s21, s21, s3
        s_mul_i32 s21, s21, 768
        s_add_u32 s21, s21, %d
        ''' % OFF_O)
        self.store_intra(['buffer_store_dwordx4 v[4:7], v1, s[16:19], s21 offen'])
        if self.stamps:
            self.stamp(4)
            r15 = [r for (i, r) in self.stlist if i == self.opt.get('pw', 15)][0]
            a('s_lshl_b32 s92, s2, 8\ns_add_u32 s92, s92, %d\ns_lshl_b32 s93, s3, 3\ns_add_u32 s92, s92, s93\nv_mov_b32 v1, 0\nv_mov_b32 v3, 0\nv_mov_b32 v2, s%d\ns_mov_b64 exec, 1\nbuffer_store_dwordx2 v[2:3], v1, s[16:19], s92 offen\ns_nop 1' % (OFF_STAMP + 160, r15))
            a('s_cmp_lg_u32 s3, 0\ns_cbranch_scc1 L_end')
            self.stamp_flush()
        a('s_endpgm')

    def a0_wave(self):
        a = self.a; vm = VM(a)
        a.label('L_A0')
        self.stamp_begin()
        a('s_setprio 2')
        self.srd(8, 68, 640 * 7680); self.srd(12, 66, 1280)
        a('''
        v_lshlrev_b32 v1, 2, v0
        v_mov_b32 v2, 0
        ds_write_b32 v1, v2
        s_cmp_ge_u32 s2, 240
        s_cbranch_scc1 L_A0_bar
        s_and_b32 s20, s2, 3
        s_lshr_b32 s21, s2, 2
        s_mul_i32 s22, s20, %d
        s_lshl_b32 s23, s21, 7
        s_add_u32 s22, s22, s23
        v_lshrrev_b32 v4, 4, v0
        v_bfe_u32 v5, v0, 3, 1
        v_lshl_add_u32 v4, v5, 2, v4
        v_mul_u32_u24 v4, 7680, v4
        v_and_b32 v5, 7, v0
        v_lshl_add_u32 v4, v5, 4, v4
        s_mul_i32 s24, s20, 320
        v_lshlrev_b32 v5, 1, v0
        buffer_load_ushort v6, v5, s[12:15], s24 offen
        buffer_load_ushort v7, v5, s[12:15], s24 offen offset:128
        buffer_load_ushort v8, v5, s[12:15], s24 offen offset:256
        ''' % (160 * 7680))
        for _ in range(3): vm.issue()
        W = 40
        widx = []
        for t in range(20):
            a('s_add_u32 s23, s22, %d' % (t * 8 * 7680))
            a('buffer_load_dwordx4 v[%d:%d], v4, s[8:11], s23 offen nt' % (W + 4 * t, W + 4 * t + 3))
            widx.append(vm.issue())
        a.label('L_A0_bar')
        a('s_waitcnt lgkmcnt(0)\ns_barrier')
        a('s_cmp_ge_u32 s2, 240\ns_cbranch_scc1 L_A0_stats')
        self.sel_masks(16, 9, 10)
        self.pv_addr(1, 9, str(L_S))
        vm.wait(2)
        for k in range(3):
            r = 6 + k
            a('v_lshlrev_b32 v%d, 16, v%d\nv_sub_f32 v9, 0, v%d\nv_min_f32 v9, %s, v9\nv_max_f32 v9, %s, v9' % (r, r, r, f32(88.0), f32(-200.0)))
            self.exp(10, 9, 11, 12)
            a('v_add_f32 v10, 1.0, v10')
            self.div(r, r, 10, 11, 12)
            a('v_cvt_pk_bf16_f32 v%d, v%d, v%d' % (r, r, r))
        a('''
        v_lshlrev_b32 v9, 2, v0
        ds_write_b32 v9, v6 offset:%d
        ds_write_b32 v9, v7 offset:%d
        ds_write_b32 v9, v8 offset:%d
        s_waitcnt lgkmcnt(0)
        ds_read_b32 v2, v1 offset:0
        ds_read_b32 v3, v1 offset:32
        ''' % (L_S, L_S + 256, L_S + 512))
        for t in range(20):
            sel = 20 + 4 * (t & 1); pv = 2 + (t & 1)
            a('s_waitcnt lgkmcnt(%d)' % (1 if t < 19 else 0))
            for k in range(4):
                a('v_and_b32 v%d, v%d, v%d' % (sel + k, pv, 16 + k))
            if t + 2 < 20: a('ds_read_b32 v%d, v1 offset:%d' % (pv, 32 * (t + 2)))
            else: a('s_nop 0')
            a('s_nop 0')
            vm.wait(widx[t])
            c = '0' if t == 0 else 'v[4:7]'
            a('v_mfma_f32_16x16x32_bf16 v[4:7], v[%d:%d], v[%d:%d], %s' % (sel, sel + 3, W + 4 * t, W + 4 * t + 3, c))
        a('''
        v_and_b32 v9, 15, v0
        v_lshrrev_b32 v10, 4, v0
        v_lshlrev_b32 v1, 5, v9
        v_lshl_add_u32 v1, v10, 4, v1
        v_and_b32 v9, 40, v0
        v_cmp_eq_u32 vcc, 0, v9
        v_mov_b32 v10, %s
        s_nop 0
        v_cndmask_b32 v1, v10, v1, vcc
        s_nop 2
        ''' % OOB)
        for r in range(4): a('v_permlane32_swap_b32 v%d, v%d' % (4 + r, 8 + r))
        a('s_nop 1')
        for r in range(4): a('v_add_f32_dpp v%d, v%d, v%d row_ror:8 row_mask:0xf bank_mask:0xf' % (4 + r, 8 + r, 4 + r))
        for r in range(4): a('v_min_u32 v%d, -2, v%d' % (4 + r, 4 + r))
        self.lds_spin(L_INIT, None, 9, 10, sleep=1)
        a('''
        s_mul_i32 s22, s20, 15360
        s_lshl_b32 s23, s21, 8
        s_add_u32 s22, s22, s23
        s_add_u32 s22, s22, %d
        buffer_store_dwordx4 v[4:7], v1, s[16:19], s22 offen sc1
        ''' % OFF_MOD)
        self.stamp(1, None, 12, 14)
        a.label('L_A0_stats')
        self.lds_spin(L_MODE, None, 9, 10, sleep=4)
        a('s_mov_b32 s45, s93')
        self.mbpoll_(1, sleep=4)
        self.lds_spin(L_CNTST, 8, 9, 10, sleep=2)
        a('''
        v_and_b32 v1, 7, v0
        v_lshlrev_b32 v2, 3, v1
        ds_read_b64 v[4:5], v2 offset:%d
        s_waitcnt lgkmcnt(0)
        ''' % L_STAT)
        def combine_stats():
            a('v_mov_b32 v6, v4')
            for r in (4, 2, 1):
                a('s_nop 1\nv_max_f32_dpp v6, v6, v6 row_ror:%d row_mask:0xf bank_mask:0xf' % r)
            a('v_sub_f32 v8, v4, v6\nv_max_f32 v8, %s, v8' % f32(-200.0))
            self.exp(7, 8, 9, 10)
            a('v_mul_f32 v7, v7, v5')
            for r in (4, 2, 1):
                a('s_nop 1\nv_add_f32_dpp v7, v7, v7 row_ror:%d row_mask:0xf bank_mask:0xf' % r)
        combine_stats()
        a('''
        v_min_u32 v6, -2, v6
        v_min_u32 v7, -2, v7
        s_lshl_b32 s22, s6, 7
        s_add_u32 s22, s22, %d
        v_readfirstlane_b32 s24, v6
        v_readfirstlane_b32 s25, v7
        s_lshl_b32 s23, s7, 10
        s_add_u32 s23, s23, %d
        s_nop 2
        s_atomic_swap_x2 s[24:25], s[74:75], s22
        s_mov_b32 s95, 0
        L_A0_sp:
        ''' % (OFF_ST, OFF_ST))
        for k in range(8):
            a('s_load_dwordx2 s[%d:%d], s[74:75], s23 offset:%d glc' % (76 + 2 * k, 77 + 2 * k, 128 * k))
        a('s_waitcnt lgkmcnt(0)\ns_max_u32 s26, s76, s77')
        for k in range(2, 16): a('s_max_u32 s26, s26, s%d' % (76 + k))
        a('''
        s_cmp_lg_u32 s26, -1
        s_cbranch_scc1 L_A0_spd
        s_add_u32 s95, s95, 1
        s_cmp_lt_u32 s95, 0x10000
        s_cbranch_scc1 L_A0_sp
        L_A0_spd:
        ''')
        for k in range(8):
            a('v_writelane_b32 v4, s%d, %d\nv_writelane_b32 v4, s%d, %d\nv_writelane_b32 v5, s%d, %d\nv_writelane_b32 v5, s%d, %d' % (76 + 2 * k, k, 76 + 2 * k, k + 8, 77 + 2 * k, k, 77 + 2 * k, k + 8))
        combine_stats()
        a('''
        v_mov_b32 v2, %d
        s_mov_b64 exec, 1
        ds_write_b64 v2, v[6:7]
        s_mov_b64 exec, -1
        s_waitcnt lgkmcnt(0)
        ''' % L_GSTAT)
        self.lds_set(L_FLAGP, '1', 9, 10)
        self.stamp(3)
        self.stamp_flush()
        a('s_endpgm')

    def ln_stats(self, vals, vmu, vden, t):
        a = self.a
        a('v_add_f32 v%d, v%d, v%d' % (vmu, vals[0], vals[1]))
        for v in vals[2:]: a('v_add_f32 v%d, v%d, v%d' % (vmu, vmu, v))
        self.wave_reduce(vmu, t[0], 'add')
        a('v_mul_f32 v%d, %s, v%d' % (vmu, f32(1.0 / 640), vmu))
        a('v_sub_f32 v%d, v%d, v%d\nv_mul_f32 v%d, v%d, v%d' % (t[0], vals[0], vmu, vden, t[0], t[0]))
        for v in vals[1:]:
            a('v_sub_f32 v%d, v%d, v%d\nv_fmac_f32 v%d, v%d, v%d' % (t[0], v, vmu, vden, t[0], t[0]))
        self.wave_reduce(vden, t[0], 'add')
        a('v_mul_f32 v%d, %s, v%d' % (vden, f32(1.0 / 640), vden))
        self.rnd(vden, vden)
        a('v_add_f32 v%d, %s, v%d' % (vden, f32(1e-5), vden))
        self.rnd(vden, vden)
        a('v_sqrt_f32 v%d, v%d\ns_nop 0' % (vden, vden))
        self.rnd(vden, vden)
        self.rnd(vmu, vmu)

    def modulate(self, x, c1, sb, vmu, vden, vrcp, t1, t2):
        a = self.a
        a('v_sub_f32 v%d, v%d, v%d' % (x, x, vmu))
        self.rnd(x, x)
        a('''
        v_mul_f32 v%d, v%d, v%d
        v_fma_f32 v%d, -v%d, v%d, v%d
        v_fma_f32 v%d, v%d, v%d, v%d
        ''' % (t1, x, vrcp, t2, t1, vden, x, x, t2, vrcp, t1))
        self.rnd(x, x)
        a('v_mul_f32 v%d, v%d, v%d' % (x, x, c1))
        self.rnd(x, x)
        a('v_add_f32 v%d, v%d, v%d' % (x, x, sb))

    def a1_wave(self):
        a = self.a; vm = VM(a)
        a.label('L_A1')
        self.stamp_begin()
        a('s_setprio 2')
        self.srd(8, 54, 640 * 12288); self.srd(12, 48, 1280)
        a('''
        v_lshlrev_b32 v4, 2, v0
        buffer_load_dword v20, v4, s[12:15], 0 offen
        buffer_load_dword v21, v4, s[12:15], 0 offen offset:256
        buffer_load_dword v22, v4, s[12:15], 0 offen offset:512
        buffer_load_dword v23, v4, s[12:15], 0 offen offset:768
        buffer_load_dword v24, v4, s[12:15], 0 offen offset:1024
        v_min_u32 v1, 19, v0
        v_lshlrev_b32 v4, 3, v1
        s_mul_i32 s20, s46, 160
        buffer_load_dwordx2 v[26:27], v4, s[12:15], s20 offen
        ''')
        for _ in range(6): vm.issue()
        self.vshape_offsets(2, 3, 4, 5, 12288)
        a('''
        s_barrier
        s_mul_i32 s20, s46, %d
        s_mul_i32 s21, s7, 384
        s_add_u32 s20, s20, s21
        ''' % (80 * 12288))
        W = 40
        widx = {}
        for t in range(10):
            a('s_add_u32 s21, s20, %d\ns_add_u32 s22, s20, %d' % (t * 8 * 12288, (t * 8 + 4) * 12288))
            for ty in range(3):
                vm.throttle(self.opt.get('a1depth', 40))
                r = W + (t * 3 + ty) * 4
                if ty == 0: a('buffer_load_dwordx4 v[%d:%d], v2, s[8:11], s21 offen nt' % (r, r + 3))
                elif ty == 1: a('buffer_load_dwordx4 v[%d:%d], v2, s[8:11], s22 offen nt' % (r, r + 3))
                else: a('buffer_load_dwordx4 v[%d:%d], v3, s[8:11], s21 offen nt' % (r, r + 3))
                widx[(t, ty)] = vm.issue()
        vm.wait(5)
        for k in range(5):
            a('v_lshlrev_b32 v%d, 16, v%d\nv_and_b32 v%d, 0xffff0000, v%d' % (28 + 2 * k, 20 + k, 29 + 2 * k, 20 + k))
        self.ln_stats(list(range(28, 38)), 38, 39, [4, 5, 6, 7])
        a('''
        v_lshlrev_b32 v28, 16, v26
        v_and_b32 v29, 0xffff0000, v26
        v_lshlrev_b32 v30, 16, v27
        v_and_b32 v31, 0xffff0000, v27
        v_rcp_f32 v32, v39
        ''')
        self.lds_spin(L_MODE, None, 4, 5, sleep=4)
        a('''
        s_mov_b32 s45, s93
        s_mul_i32 s20, s46, 320
        s_add_u32 s20, s20, %d
        s_add_u32 s21, s20, 15360
        s_add_u32 s22, s20, 30720
        s_add_u32 s23, s20, 46080
        v_lshlrev_b32 v2, 4, v1
        ''' % OFF_MOD)
        g = [4, 8, 12, 16, 20, 24, 160, 164]
        loads = []
        for rs in range(4):
            loads.append('buffer_load_dwordx4 v[%d:%d], v2, s[16:19], s%d offen' % (g[rs], g[rs] + 3, 20 + rs))
            loads.append('buffer_load_dwordx4 v[%d:%d], v2, s[16:19], s%d offen offset:2560' % (g[4 + rs], g[4 + rs] + 3, 20 + rs))
        regs = [b + k for b in g for k in range(4)]
        self.poll(loads, regs, 33, sleep=2)
        vm.done = vm.n
        self.stamp(14, None, 34, 36)
        for k in range(4):
            a('v_add_f32 v%d, v%d, v%d\nv_add_f32 v%d, v%d, v%d\nv_add_f32 v%d, v%d, v%d' % (4 + k, 4 + k, 8 + k, 12 + k, 12 + k, 16 + k, 4 + k, 4 + k, 12 + k))
            a('v_add_f32 v%d, v%d, v%d\nv_add_f32 v%d, v%d, v%d\nv_add_f32 v%d, v%d, v%d' % (20 + k, 20 + k, 24 + k, 160 + k, 160 + k, 164 + k, 20 + k, 20 + k, 160 + k))
            self.rnd(4 + k, 4 + k)
            self.rnd(20 + k, 20 + k)
            a('v_add_f32 v%d, 1.0, v%d' % (20 + k, 20 + k))
            self.rnd(20 + k, 20 + k)
            self.modulate(28 + k, 20 + k, 4 + k, 38, 39, 32, 33, 34)
            a('v_cvt_pk_bf16_f32 v%d, v%d, v%d' % (28 + k, 28 + k, 28 + k))
        a('ds_write_b128 v2, v[28:31] offset:%d' % L_H)
        self.sel_masks(16, 33, 34)
        self.pv_addr(1, 33, str(L_H))
        a('''
        s_waitcnt lgkmcnt(0)
        ds_read_b32 v2, v1 offset:0
        ds_read_b32 v3, v1 offset:32
        ''')
        for t in range(10):
            sel = 20 + 4 * (t & 1); pv = 2 + (t & 1)
            a('s_waitcnt lgkmcnt(%d)' % (1 if t < 9 else 0))
            for k in range(4):
                a('v_and_b32 v%d, v%d, v%d' % (sel + k, pv, 16 + k))
            if t + 2 < 10: a('ds_read_b32 v%d, v1 offset:%d' % (pv, 32 * (t + 2)))
            else: a('s_nop 0')
            a('s_nop 0')
            for ty in range(3):
                acc = 4 + 4 * ty
                c = '0' if t == 0 else 'v[%d:%d]' % (acc, acc + 3)
                r = W + (t * 3 + ty) * 4
                a('v_mfma_f32_16x16x32_bf16 v[%d:%d], v[%d:%d], v[%d:%d], %s' % (acc, acc + 3, sel, sel + 3, r, r + 3, c))
        self.vshape_combine(4, 8, 12, 1, 2, 3)
        a('s_mul_i32 s21, s6, 768\ns_add_u32 s21, s21, %d' % OFF_Q)
        self.store_intra(['buffer_store_dwordx4 v[4:7], v1, s[16:19], s21 offen'])
        a('''
        s_mul_i32 s21, s7, 6144
        s_add_u32 s21, s21, %d
        s_add_u32 s22, s21, 3072
        v_min_u32 v1, 47, v0
        v_lshlrev_b32 v2, 4, v1
        ''' % OFF_Q)
        loads = []
        for p in range(8):
            loads.append('buffer_load_dwordx4 v[%d:%d], v2, s[16:19], s%d offen offset:%d' % (40 + 4 * p, 43 + 4 * p, 21 + p // 4, (p % 4) * 768))
        self.poll(loads, list(range(40, 72)), 33, sleep=1)
        for k in range(4):
            for st in (1, 2, 4):
                for p in range(0, 8, 2 * st):
                    a('v_add_f32 v%d, v%d, v%d' % (40 + 4 * p + k, 40 + 4 * p + k, 40 + 4 * (p + st) + k))
        a('''
        v_cvt_pk_bf16_f32 v4, v40, v41
        v_cvt_pk_bf16_f32 v5, v42, v43
        v_lshlrev_b32 v2, 3, v1
        ds_write_b64 v2, v[4:5] offset:%d
        s_waitcnt lgkmcnt(0)
        ''' % L_Q)
        self.lds_set(L_FLAGQ, '1', 9, 10)
        self.stamp(2)
        self.stamp_flush()
        a('s_endpgm')

    def interleave(self, ra, rb, t1):
        self.a('''
        v_perm_b32 v%d, v%d, v%d, s96
        v_perm_b32 v%d, v%d, v%d, s97
        v_mov_b32 v%d, v%d
        ''' % (t1, rb, ra, rb, rb, ra, ra, t1))

    def reduce32(self, off_src, off_dst):
        a = self.a
        a('''
        s_mul_i32 s21, s4, %d
        s_lshl_b32 s22, s5, 7
        s_add_u32 s21, s21, s22
        s_add_u32 s21, s21, %d
        s_add_u32 s22, s21, 5120
        ''' % (32 * 2560, off_src))
        loads = ['buffer_load_dwordx4 v[%d:%d], v1, s[16:19], s%d offen offset:%d' % (4 + 4 * n, 7 + 4 * n, 21 + n // 2, (n % 2) * 2560) for n in range(4)]
        self.poll(loads, list(range(4, 20)), 20)
        a('''
        v_pk_add_f32 v[4:5], v[4:5], v[8:9]
        v_pk_add_f32 v[6:7], v[6:7], v[10:11]
        v_pk_add_f32 v[12:13], v[12:13], v[16:17]
        v_pk_add_f32 v[14:15], v[14:15], v[18:19]
        v_pk_add_f32 v[4:5], v[4:5], v[12:13]
        v_pk_add_f32 v[6:7], v[6:7], v[14:15]
        ''')
        self.red8([4, 5, 6, 7])
        a('''
        v_min_u32 v4, -2, v4
        s_lshl_b32 s21, s6, 7
        s_add_u32 s21, s21, %d
        buffer_store_dword v4, v2, s[16:19], s21 offen sc1
        ''' % off_dst)

    def gather8(self, off_src):
        a = self.a
        a('s_lshl_b32 s21, s5, 7\ns_add_u32 s21, s21, %d' % off_src)
        self.poll(['buffer_load_dwordx4 v[4:7], v3, s[16:19], s21 offen'], [4, 5, 6, 7], 20)
        self.red8([4, 5, 6, 7])

    def a2_wave(self):
        a = self.a; vm = VM(a)
        a.label('L_A2')
        self.stamp_begin()
        a('s_setprio 3')
        self.srd(8, 56, 6144 * 1280); self.srd(12, 48, 1280); self.srd(24, 72, 256); self.srd(28, 70, 1280)
        a('''
        s_mov_b32 s96, 0x05040100
        s_mov_b32 s97, 0x07060302
        v_mov_b32 v4, -1
        v_mov_b32 v5, -1
        v_mov_b32 v6, -1
        v_mov_b32 v7, -1
        v_lshlrev_b32 v1, 4, v0
        ''')
        def init(base_expr, nbytes, pol):
            a(base_expr)
            off = 0
            while off < nbytes:
                n = min(1024, nbytes - off)
                if n < 1024:
                    lanes = n // 16
                    m = (1 << lanes) - 1
                    a('s_mov_b32 exec_lo, 0x%x\ns_mov_b32 exec_hi, 0x%x' % (m & 0xffffffff, m >> 32))
                if off < 4096:
                    a('buffer_store_dwordx4 v[4:7], v1, s[16:19], s20 offen offset:%d %s' % (off, pol))
                else:
                    a('s_add_u32 s21, s20, %d\nbuffer_store_dwordx4 v[4:7], v1, s[16:19], s21 offen %s' % (off, pol))
                if n < 1024: a('s_mov_b64 exec, -1')
                off += n
        def fanout(word):
            a('''
            v_mov_b32 v10, s35
            v_lshlrev_b32 v8, 7, v0
            s_mov_b32 s20, %d
            s_mov_b32 s21, %d
            s_mov_b32 s22, %d
            s_mov_b32 s23, %d
            buffer_store_dword v10, v8, s[16:19], s20 offen sc1
            buffer_store_dword v10, v8, s[16:19], s21 offen sc1
            buffer_store_dword v10, v8, s[16:19], s22 offen sc1
            buffer_store_dword v10, v8, s[16:19], s23 offen sc1
            ''' % tuple(OFF_MB + 4 * word + 8192 * k for k in range(4)))
        mbpoll = self.mbpoll_
        init('s_lshl_b32 s20, s6, 7\ns_add_u32 s20, s20, %d' % OFF_MB, 16, 'sc1')
        init('s_lshl_b32 s20, s6, 7\ns_add_u32 s20, s20, %d' % OFF_ST, 16, 'sc1')
        init('s_mul_i32 s20, s6, 768\ns_add_u32 s20, s20, %d' % OFF_Q, 768, '')
        a('s_cmp_ge_u32 s2, 240\ns_cbranch_scc1 L_A2_nomod')
        init('s_and_b32 s20, s2, 3\ns_mul_i32 s20, s20, 15360\ns_lshr_b32 s21, s2, 2\ns_lshl_b32 s21, s21, 8\ns_add_u32 s20, s20, s21\ns_add_u32 s20, s20, %d' % OFF_MOD, 256, 'sc1')
        a.label('L_A2_nomod')
        a('''
        s_barrier
        s_getreg_b32 s20, hwreg(HW_REG_XCC_ID)
        s_and_b32 s20, s20, 7
        s_lshl_b32 s22, s20, 3
        s_lshl_b64 s[32:33], 1, s22
        s_lshl_b32 s21, s4, 5
        s_mov_b64 s[34:35], s[32:33]
        s_waitcnt vmcnt(0)
        s_atomic_add_x2 s[34:35], s[72:73], s21 glc
        ''')
        self.lds_set(L_INIT, '1', 9, 12)
        a('''
        s_waitcnt lgkmcnt(0)
        s_add_u32 s34, s34, s32
        s_addc_u32 s35, s35, s33
        v_mov_b32 v10, s34
        v_mov_b32 v11, s35
        v_sad_u8 v12, v10, 0, 0
        v_sad_u8 v12, v11, 0, v12
        s_nop 0
        v_readfirstlane_b32 s36, v12
        ''')
        self.stamp(16)
        a('''
        s_nop 3
        s_cmp_lg_u32 s36, 32
        s_cbranch_scc1 L_A2_mb
        ; last of the group: bad if any field not in {0,32}
        s_or_b32 s34, s34, s35
        s_and_b32 s34, s34, 0xdfdfdfdf
        s_cmp_lg_u32 s34, 0
        s_cselect_b32 s34, 0x10001, 1
        s_mov_b32 s35, s34
        s_atomic_add s35, s[72:73], 0x8 glc
        s_waitcnt lgkmcnt(0)
        s_add_u32 s35, s35, s34
        s_and_b32 s36, s35, 0xffff
        s_cmp_lg_u32 s36, 8
        s_cbranch_scc1 L_A2_mb
        s_lshr_b32 s35, s35, 16
        s_cmp_lg_u32 s35, 0
        s_cselect_b32 s35, 2, 1
        ''')
        self.stamp(19)
        fanout(0)
        a.label('L_A2_mb')
        mbpoll(0)
        a('s_cmp_eq_u32 s33, 1\ns_cselect_b32 s45, 1, 2')
        if self.opt.get('force_slow'): a('s_mov_b32 s45, 2')
        a('s_cmp_lg_u32 s45, 1\ns_cbranch_scc1 L_A2_slow1')
        self.lds_set(L_MODE, '1', 9, 10)
        self.stamp(13)
        def init2(pol):
            init('s_mul_i32 s20, s6, 6144\ns_add_u32 s20, s20, %d' % OFF_O, 6144, pol)
            init('s_mul_i32 s20, s6, 2560\ns_add_u32 s20, s20, %d' % OFF_A, 2560, pol)
            init('s_lshl_b32 s20, s6, 8\ns_add_u32 s20, s20, %d' % OFF_H, 256, pol)
            init('s_min_u32 s21, s5, 29\ns_lshl_b32 s21, s21, 8\ns_mul_i32 s20, s4, 7680\ns_add_u32 s20, s20, s21\ns_add_u32 s20, s20, %d' % OFF_G, 256, pol)
        init2('')
        a('s_branch L_A2_p2')
        a.label('L_A2_slow1')
        init2('sc1')
        init('s_mul_i32 s20, s6, 768\ns_add_u32 s20, s20, %d' % OFF_Q, 768, 'sc1')
        a.label('L_A2_p2')
        init('s_lshl_b32 s20, s6, 7\ns_add_u32 s20, s20, %d' % OFF_X, 128, 'sc1')
        init('s_min_u32 s21, s5, 29\ns_lshl_b32 s21, s21, 8\ns_mul_i32 s20, s4, 7680\ns_add_u32 s20, s20, s21\ns_add_u32 s20, s20, %d' % OFF_F, 256, 'sc1')
        a('''
        s_mov_b32 s34, 1
        s_lshl_b32 s21, s4, 5
        s_add_u32 s21, s21, 16
        s_waitcnt vmcnt(0)
        s_atomic_add s34, s[72:73], s21 glc
        s_waitcnt lgkmcnt(0)
        s_cmp_lg_u32 s34, 31
        s_cbranch_scc1 L_A2_mb2
        s_mov_b32 s34, 1
        s_atomic_add s34, s[72:73], 0x18 glc
        s_waitcnt lgkmcnt(0)
        s_cmp_lg_u32 s34, 7
        s_cbranch_scc1 L_A2_mb2
        s_mov_b32 s35, 1
        ''')
        fanout(1)
        a.label('L_A2_mb2')
        a('s_cmp_eq_u32 s45, 1\ns_cbranch_scc1 L_A2_fast')
        mbpoll(1, sleep=2)
        self.lds_set(L_MODE, '2', 9, 10)
        a.label('L_A2_fast')
        W = 40
        a('''
        s_mul_i32 s20, s6, 30720
        v_lshlrev_b32 v2, 2, v0
        ''')
        for r in range(24):
            base = W + 5 * r
            pass
        def wreg(r):
            g = r // 2; b = W + 10 * g
            return (b + 4 * (r & 1), b + 8 + (r & 1))
        idx = []
        for r in range(24):
            x4, d1 = wreg(r)
            a('s_add_u32 s21, s20, %d' % (r * 1280))
            vm.throttle(self.adepth)
            a('buffer_load_dwordx4 v[%d:%d], v1, s[8:11], s21 offen nt' % (x4, x4 + 3)); vm.issue()
            a('buffer_load_dword v%d, v2, s[8:11], s21 offen offset:1024 nt' % d1); idx.append(vm.issue())
        vm.all()
        pairs = [(p + k, p + k + 4) for p in (0, 8, 16) for k in range(4)]
        for (ra, rb) in pairs:
            xa, da = wreg(ra); xb, db = wreg(rb)
            for k in range(4): self.interleave(xa + k, xb + k, 4)
            self.interleave(da, db, 4)
        self.mbpoll_(1, sleep=2)
        a('''
        v_and_b32 v24, 7, v0
        v_lshlrev_b32 v24, 2, v24
        v_bfe_u32 v25, v0, 4, 1
        v_lshl_add_u32 v24, v25, 1, v24
        v_lshrrev_b32 v25, 5, v0
        v_add_u32 v24, v24, v25
        s_cmp_ge_u32 s5, 20
        s_cbranch_scc1 L_A2_h1
        s_lshl_b32 s20, s5, 7
        s_add_u32 s20, s20, %d
        s_add_u32 s21, s20, 15360
        s_add_u32 s22, s20, 30720
        s_add_u32 s23, s20, 46080
        v_lshlrev_b32 v25, 2, v24
        v_add_u32 v26, 5120, v25
        v_add_u32 v27, 10240, v25
        s_lshl_b32 s32, s5, 6
        v_lshlrev_b32 v28, 1, v24
        buffer_load_ushort v30, v28, s[12:15], s32 offen
        ''' % OFF_MOD)
        loads = []
        for rs in range(4):
            loads.append('buffer_load_dword v%d, v26, s[16:19], s%d offen' % (4 + rs, 20 + rs))
            loads.append('buffer_load_dword v%d, v26, s[16:19], s%d offen offset:2560' % (8 + rs, 20 + rs))
            loads.append('buffer_load_dword v%d, v27, s[16:19], s%d offen' % (12 + rs, 20 + rs))
            loads.append('buffer_load_dword v%d, v27, s[16:19], s%d offen offset:2560' % (16 + rs, 20 + rs))
        self.poll(loads, list(range(4, 20)), 20, sleep=4)
        for n, dst in enumerate((31, 32, 33, 34)):
            b = 4 + 4 * n
            a('v_add_f32 v%d, v%d, v%d\nv_add_f32 v%d, v%d, v%d\nv_add_f32 v%d, v%d, v%d' % (b, b, b + 1, b + 2, b + 2, b + 3, dst, b, b + 2))
            self.rnd(dst, dst)
        a('v_add_f32 v33, 1.0, v33')
        a('''
        v_cvt_pk_bf16_f32 v33, v33, v32
        v_min_u32 v33, -2, v33
        v_lshlrev_b32 v30, 16, v30
        ''')
        a.label('L_A2_h1')
        a('''
        v_and_b32 v25, 7, v0
        v_lshrrev_b32 v26, 3, v0
        v_min_u32 v27, 5, v25
        v_mul_u32_u24 v35, 6144, v26
        v_lshl_add_u32 v35, v27, 4, v35          ; H1 gather offset: pslot*8*768 + piece*16
        v_mul_u32_u24 v36, 10240, v26
        v_lshl_add_u32 v36, v25, 4, v36          ; reduce32 gather: pslot*4*2560 + c*16
        v_lshlrev_b32 v37, 12, v26
        v_lshl_add_u32 v37, v25, 4, v37          ; gather8: pslot*32*128 + c*16
        v_and_b32 v27, 8, v0
        v_cmp_eq_u32 vcc, 0, v27
        v_mov_b32 v27, %s
        v_lshlrev_b32 v38, 2, v24
        v_cndmask_b32 v38, v27, v38, vcc         ; line store offset (dword)
        v_lshlrev_b32 v39, 3, v24
        v_cndmask_b32 v39, v27, v39, vcc         ; B_h store offset (8B)
        v_lshlrev_b32 v29, 1, v24
        v_cndmask_b32 v29, v27, v29, vcc         ; out store offset (2B)
        v_lshlrev_b32 v160, 5, v0                ; B_a store offsets
        v_lshlrev_b32 v161, 3, v0
        s_mul_i32 s21, s7, 49152
        s_mul_i32 s22, s46, 96
        s_add_u32 s21, s21, s22
        s_add_u32 s21, s21, %d
        s_add_u32 s22, s21, 3072
        ''' % (OOB, OFF_O))
        self.lds_spin(L_CNTPV, 8, 4, 5, sleep=1)
        loads = ['buffer_load_dwordx4 v[%d:%d], v35, s[16:19], s%d offen offset:%d' % (4 + 4 * n, 7 + 4 * n, 21, n * 768) for n in range(4)]
        self.poll(loads, list(range(4, 20)), 28)
        a('''
        v_pk_add_f32 v[4:5], v[4:5], v[8:9]
        v_pk_add_f32 v[6:7], v[6:7], v[10:11]
        v_pk_add_f32 v[12:13], v[12:13], v[16:17]
        v_pk_add_f32 v[14:15], v[14:15], v[18:19]
        v_pk_add_f32 v[20:21], v[4:5], v[12:13]
        v_pk_add_f32 v[22:23], v[6:7], v[14:15]
        ''')
        loads = ['buffer_load_dwordx4 v[%d:%d], v35, s[16:19], s%d offen offset:%d' % (4 + 4 * n, 7 + 4 * n, 22, n * 768) for n in range(4)]
        self.poll(loads, list(range(4, 20)), 28)
        self.stamp(5, None, 162, 164)
        a('''
        v_pk_add_f32 v[4:5], v[4:5], v[8:9]
        v_pk_add_f32 v[6:7], v[6:7], v[10:11]
        v_pk_add_f32 v[12:13], v[12:13], v[16:17]
        v_pk_add_f32 v[14:15], v[14:15], v[18:19]
        v_pk_add_f32 v[4:5], v[4:5], v[12:13]
        v_pk_add_f32 v[6:7], v[6:7], v[14:15]
        v_pk_add_f32 v[4:5], v[4:5], v[20:21]
        v_pk_add_f32 v[6:7], v[6:7], v[22:23]
        ''')
        self.red8([4, 5, 6, 7])
        a('''
        s_nop 1
        v_mov_b32_dpp v5, v4 quad_perm:[1,0,3,2] row_mask:0xf bank_mask:0xf
        v_cvt_pk_bf16_f32 v4, v4, v5
        s_nop 0
        ''')
        PI = [0, 2, 1, 3]
        sp = {}
        n = 0
        for p in (0, 2, 4):
            for q in range(4):
                a('v_readlane_b32 s%d, v4, %d' % (76 + n, p + 16 * q))
                sp[4 * p + PI[q]] = 76 + n; n += 1
        acc = 4
        for k in range(10): a('v_mov_b32 v%d, 0' % (acc + k))
        for (ra, rb) in pairs:
            xa, da = wreg(ra); xb, db = wreg(rb)
            s = sp[ra]
            for k in range(4):
                a('v_dot2c_f32_bf16 v%d, s%d, v%d' % (acc + 2 * k, s, xa + k))
                a('v_dot2c_f32_bf16 v%d, s%d, v%d' % (acc + 2 * k + 1, s, xb + k))
            a('v_dot2c_f32_bf16 v%d, s%d, v%d' % (acc + 8, s, da))
            a('v_dot2c_f32_bf16 v%d, s%d, v%d' % (acc + 9, s, db))
        a('s_nop 2')
        for k in range(10): a('v_min_u32 v%d, -2, v%d' % (acc + k, acc + k))
        a('s_mul_i32 s21, s6, 2560\ns_add_u32 s21, s21, %d' % OFF_A)
        self.store_intra(['buffer_store_dwordx4 v[4:7], v160, s[16:19], s21 offen',
                          'buffer_store_dwordx4 v[8:11], v160, s[16:19], s21 offen offset:16',
                          'buffer_store_dwordx2 v[12:13], v161, s[16:19], s21 offen offset:2048'])
        self.lds_set(L_FLAGA, '1', 14, 15)
        self.stamp(6)
        a('s_cmp_ge_u32 s5, 20\ns_cbranch_scc1 L_A2_end')
        a('v_mov_b32 v1, v36\nv_mov_b32 v2, v38\nv_mov_b32 v3, v37')
        self.reduce32(OFF_A, OFF_X)
        self.stamp(7, None, 162, 164)
        self.gather8(OFF_X)
        self.rnd(4, 4)
        a('v_mul_f32 v4, v31, v4')
        self.rnd(4, 4)
        a('v_add_f32 v4, v30, v4')
        self.rnd(32, 4)
        a('s_lshl_b32 s21, s6, 8\ns_add_u32 s21, s21, %d' % OFF_H)
        self.store_intra(['buffer_store_dwordx2 v[32:33], v39, s[16:19], s21 offen'])
        self.stamp(8, None, 162, 164)
        a('s_and_b32 s21, s5, 7\ns_cmp_lg_u32 s21, s4\ns_cbranch_scc1 L_A2_end')
        a('''
        v_lshrrev_b32 v1, 3, v0
        v_mul_u32_u24 v1, 7680, v1
        v_and_b32 v2, 7, v0
        v_lshl_add_u32 v1, v2, 4, v1
        s_lshl_b32 s21, s5, 7
        s_add_u32 s21, s21, %d
        s_add_u32 s22, s21, 5120
        ''' % OFF_F)
        self.poll(['buffer_load_dwordx4 v[4:7], v1, s[16:19], s21 offen',
                   'buffer_load_dwordx4 v[8:11], v1, s[16:19], s21 offen offset:2560',
                   'buffer_load_dwordx4 v[12:15], v1, s[16:19], s22 offen'], list(range(4, 16)), 20)
        a('''
        v_pk_add_f32 v[4:5], v[4:5], v[8:9]
        v_pk_add_f32 v[6:7], v[6:7], v[10:11]
        v_pk_add_f32 v[4:5], v[4:5], v[12:13]
        v_pk_add_f32 v[6:7], v[6:7], v[14:15]
        ''')
        self.red8([4, 5, 6, 7])
        self.rnd(4, 4)
        a('v_mul_f32 v4, v34, v4')
        self.rnd(4, 4)
        a('''
        v_add_f32 v4, v32, v4
        v_cvt_pk_bf16_f32 v4, v4, v4
        s_lshl_b32 s21, s5, 6
        buffer_store_short v4, v29, s[28:31], s21 offen
        ''')
        self.stamp(12)
        a.label('L_A2_end')
        self.stamp_flush()
        a('s_endpgm')

    def a3_wave(self):
        a = self.a; vm = VM(a)
        a.label('L_A3')
        self.stamp_begin()
        a('''
        s_setprio 3
        s_barrier
        s_cmp_ge_u32 s5, 30
        s_cbranch_scc1 L_end
        s_mul_i32 s20, s5, 52
        s_lshr_b32 s20, s20, 8              ; q5 = i/5
        s_mul_i32 s21, s20, 5
        s_sub_u32 s21, s5, s21              ; rs
        s_and_b32 s22, s20, 1               ; m
        s_lshr_b32 s23, s20, 1              ; cb
        s_mul_i32 s32, s5, 26
        s_lshr_b32 s32, s32, 8              ; fb = i/10
        s_mul_i32 s33, s32, 10
        s_sub_u32 s33, s5, s33              ; cbo
        s_cmp_eq_u32 s22, 0
        s_cselect_b32 s8, s60, s62
        s_cselect_b32 s9, s61, s63
        s_mov_b32 s10, %d
        s_mov_b32 s11, 0x20000
        ''' % (640 * 3072))
        self.srd(24, 64, 1536 * 1280)
        self.t3_lane_off(1, 4, 3072)
        self.t3_lane_off(2, 4, 1280)
        self.lds_spin(L_MODE, None, 4, 5, sleep=8)
        a('''
        s_mov_b32 s45, s93
        s_mul_i32 s34, s21, %d
        s_mul_i32 s35, s4, 384
        s_add_u32 s34, s34, s35
        s_lshl_b32 s35, s23, 7
        s_add_u32 s34, s34, s35             ; gate/up tile base
        s_mul_i32 s35, s4, %d
        s_mul_i32 s36, s32, %d
        s_add_u32 s35, s35, s36
        s_lshl_b32 s36, s33, 7
        s_add_u32 s35, s35, s36             ; down tile base
        ''' % (128 * 3072, 192 * 1280, 64 * 1280))
        GW = 40; DW = 104
        for t in range(16):
            vm.throttle(self.adepth)
            a('s_add_u32 s36, s34, %d\nbuffer_load_dwordx4 v[%d:%d], v1, s[8:11], s36 offen nt' % (t * 8 * 3072, GW + 4 * t, GW + 4 * t + 3)); vm.issue()
        for t in range(8):
            vm.throttle(self.adepth)
            a('s_add_u32 s36, s35, %d\nbuffer_load_dwordx4 v[%d:%d], v2, s[24:27], s36 offen nt' % (t * 8 * 1280, DW + 4 * t, DW + 4 * t + 3)); vm.issue()
        self.sel_masks(136, 4, 5)
        self.pv_addr(140, 4, str(L_H2))
        self.pv_addr(141, 4, str(L_GU))
        self.t3_off(142, 4, 5)
        a('''
        v_lshlrev_b32 v2, 4, v0
        v_lshlrev_b32 v143, 3, v0
        v_lshlrev_b32 v144, 2, v0
        s_lshl_b32 s76, s4, 13
        s_add_u32 s76, s76, %d
        s_add_u32 s77, s76, 4096
        s_lshl_b32 s78, s21, 10
        s_add_u32 s78, s78, s76             ; own 128 rows
        s_mul_i32 s79, s4, 7680
        s_add_u32 s79, s79, %d              ; B_g group base
        s_mul_i32 s80, s22, 5
        s_add_u32 s80, s80, s21
        s_mul_i32 s80, s80, 768
        s_lshl_b32 s81, s23, 8
        s_add_u32 s80, s80, s81
        s_add_u32 s80, s80, s79             ; B_g publish address
        s_lshl_b32 s81, s32, 8
        s_add_u32 s81, s81, s79             ; B_g gather base (g)
        s_add_u32 s82, s81, 3840            ; (u)
        s_mul_i32 s83, s4, 3
        s_add_u32 s83, s83, s32
        s_mul_i32 s83, s83, 2560
        s_lshl_b32 s84, s33, 8
        s_add_u32 s83, s83, s84
        s_add_u32 s83, s83, %d              ; B_f publish address
        ''' % (OFF_H, OFF_G, OFF_F))
        vm.all()
        self.lds_spin(L_FLAGA, None, 4, 5, sleep=2)
        loads = ['buffer_load_dwordx4 v[%d:%d], v2, s[16:19], s%d offen offset:%d' % (4 + 4 * k, 7 + 4 * k, 76 + k // 4, (k % 4) * 1024) for k in range(5)]
        loads.append('buffer_load_dwordx4 v[24:27], v2, s[16:19], s78 offen')
        self.poll(loads, list(range(4, 28)), 28)
        self.stamp(9)
        xs = [4 + 2 * n for n in range(10)]
        self.ln_stats(xs, 28, 29, [30, 31, 32, 33])
        a('v_rcp_f32 v30, v29')
        for n in range(2):
            x = 24 + 2 * n; p = x + 1
            a('v_lshlrev_b32 v31, 16, v%d\nv_and_b32 v32, 0xffff0000, v%d' % (p, p))
            self.modulate(x, 31, 32, 28, 29, 30, 33, 34)
        a('''
        v_cvt_pk_bf16_f32 v24, v24, v24
        v_cvt_pk_bf16_f32 v25, v26, v26
        ds_write_b64 v143, v[24:25] offset:%d
        s_waitcnt lgkmcnt(0)
        ''' % L_H2)
        self.t3_gemv(16, GW, 4, 140, 136, 12, 20)
        self.t3_combine(4, 8)
        self.store_intra(['buffer_store_dwordx4 v[4:7], v142, s[16:19], s80 offen'])
        self.stamp(10)
        loads = []
        for rs in range(5):
            loads.append('buffer_load_dword v%d, v144, s[16:19], s81 offen offset:%d' % (8 + rs, rs * 768))
            loads.append('buffer_load_dword v%d, v144, s[16:19], s82 offen offset:%d' % (13 + rs, rs * 768))
        self.poll(loads, list(range(8, 18)), 28)
        a('''
        v_add_f32 v8, v8, v9
        v_add_f32 v13, v13, v14
        v_add_f32 v10, v10, v11
        v_add_f32 v15, v15, v16
        v_add_f32 v8, v8, v12
        v_add_f32 v13, v13, v17
        v_add_f32 v8, v8, v10
        v_add_f32 v13, v13, v15
        ''')
        self.rnd(8, 8); self.rnd(13, 13)
        a('''
        v_mul_f32 v8, v8, v13
        v_cvt_pk_bf16_f32 v8, v8, v8
        ds_write_b32 v144, v8 offset:%d
        s_waitcnt lgkmcnt(0)
        ''' % L_GU)
        self.t3_gemv(8, DW, 4, 141, 136, 12, 20)
        self.t3_combine(4, 8)
        a('buffer_store_dwordx4 v[4:7], v142, s[16:19], s83 offen sc1')
        self.stamp(11)
        self.stamp_flush()
        a.label('L_end')
        a('s_endpgm')

    def build(self):
        self.prologue()
        self.s_wave()
        self.a0_wave()
        self.a1_wave()
        self.a2_wave()
        self.a3_wave()
        s = wrap(self.a.text(), 256, 768, LDS_BYTES, 168)
        s = s.replace('  .amdhsa_system_sgpr_workgroup_id_x 1\n', '  .amdhsa_system_sgpr_workgroup_id_x 1\n  .amdhsa_float_denorm_mode_32 3\n')
        return s

if __name__ == '__main__':
    import argparse
    ap = argparse.ArgumentParser()
    ap.add_argument('-o', default='k.s')
    ap.add_argument('--stamps', action='store_true')
    ap.add_argument('--opt', default='')
    x = ap.parse_args()
    kw = {}
    for kv in filter(None, x.opt.split(',')):
        k, v = kv.split('=')
        try: v = int(v)
        except ValueError: pass
        kw[k] = v
    open(x.o, 'w').write(Gen(stamps=x.stamps, **kw).build())
```

```python
import sys, struct
from asmgen import *

OFF_MOD = 0x0
OFF_Q   = 0x10000
OFF_ST  = 0x40000
OFF_O   = 0x50000
OFF_A   = 0x200000
OFF_X   = 0x300000
OFF_H   = 0x310000
OFF_G   = 0x340000
OFF_F   = 0x360000
OFF_MB  = 0x410000
OFF_STAMP = 128 << 20
WS_BYTES = 268435456
OOB = 0x7ffffff0
L_FLAGQ, L_CNTST, L_FLAGP, L_MODE, L_INIT, L_CNTPV, L_FLAGA, L_INIT2 = 0, 4, 8, 12, 16, 20, 24, 28
L_Q = 256
L_STAT = 1024
L_GSTAT = 1152
L_P = 2048
L_S = 4096
L_H = 5120
L_H2 = 5632
L_GU = 6144
LDS_BYTES = 8192

def f32(x):
    return '0x%08x' % struct.unpack('<I', struct.pack('<f', x))[0]

LOG2E = 1.4426950408889634
L2E_HI = struct.unpack('<f', struct.pack('<f', LOG2E))[0]
L2E_LO = LOG2E - L2E_HI
LN2 = 0.6931471805599453

class VM:
    def __init__(self, a):
        self.a = a; self.n = 0; self.done = 0
    def issue(self):
        self.n += 1; return self.n - 1
    def wait(self, idx):
        if idx < self.done: return
        cnt = self.n - 1 - idx
        assert cnt <= 63
        self.a('s_waitcnt vmcnt(%d)' % cnt)
        self.done = idx + 1
    def throttle(self, depth):
        if self.n - self.done >= depth:
            self.wait(self.n - depth)
    def all(self):
        if self.done < self.n:
            self.a('s_waitcnt vmcnt(0)'); self.done = self.n

class Gen:
    def __init__(self, stamps=False, depth=4, qk_after=6, adepth=6, gupol='', **kw):
        self.a = Asm(); self.stamps = stamps; self.depth = depth; self.qk_after = qk_after
        self.adepth = adepth; self.gupol = gupol
        self.opt = kw

    def srd(self, d, p, size):
        self.a('s_mov_b32 s%d, s%d\ns_mov_b32 s%d, s%d\ns_mov_b32 s%d, %d\ns_mov_b32 s%d, 0x20000' % (d, p, d + 1, p + 1, d + 2, size, d + 3))

    STPOOL = [37, 38, 39, 40, 41, 42, 43, 44, 47, 98, 99, 100, 101]
    def stamp_begin(self):
        self.stlist = []
        if self.stamps:
            for r in self.STPOOL: self.a('s_mov_b32 s%d, 0' % r)
    def stamp(self, idx, vm=None, t0=None, t1=None):
        if not self.stamps: return
        r = self.STPOOL[len(self.stlist)]
        self.stlist.append((idx, r))
        self.a('s_memrealtime s[90:91]\ns_waitcnt lgkmcnt(0)\ns_mov_b32 s%d, s90' % r)
    def stamp_flush(self):
        if not self.stamps: return
        a = self.a
        a('s_lshl_b32 s92, s2, 8\ns_add_u32 s92, s92, %d\nv_mov_b32 v1, 0\nv_mov_b32 v3, 0\ns_mov_b64 exec, 1' % OFF_STAMP)
        for idx, r in self.stlist:
            a('v_mov_b32 v2, s%d\nbuffer_store_dwordx2 v[2:3], v1, s[16:19], s92 offen offset:%d\ns_nop 1' % (r, idx * 8))

    def rnd(self, dst, src, tmp=None):
        t = dst if tmp is None else tmp
        self.a('v_cvt_pk_bf16_f32 v%d, v%d, v%d\nv_and_b32 v%d, 0xffff0000, v%d' % (t, src, src, dst, t))

    def wave_reduce(self, v, t, op):
        a = self.a
        for r in (8, 4, 2, 1):
            a('s_nop 1\nv_%s_f32_dpp v%d, v%d, v%d row_ror:%d row_mask:0xf bank_mask:0xf' % (op, v, v, v, r))
        for sw in ('16', '32'):
            a('v_mov_b32 v%d, v%d\ns_nop 1\nv_permlane%s_swap_b32 v%d, v%d\nv_%s_f32 v%d, v%d, v%d' % (t, v, sw, v, t, op, v, v, t))

    def red8(self, r):
        a = self.a
        a('''
        s_nop 1
        v_permlane32_swap_b32 v%d, v%d
        v_permlane32_swap_b32 v%d, v%d
        v_add_f32 v%d, v%d, v%d
        v_add_f32 v%d, v%d, v%d
        s_nop 1
        v_permlane16_swap_b32 v%d, v%d
        v_add_f32 v%d, v%d, v%d
        s_nop 1
        v_add_f32_dpp v%d, v%d, v%d row_ror:8 row_mask:0xf bank_mask:0xf
        ''' % (r[0], r[1], r[2], r[3], r[0], r[0], r[1], r[2], r[2], r[3], r[0], r[2], r[0], r[0], r[2], r[0], r[0], r[0]))

    def exp(self, dst, x, t1, t2):
        self.a('''
        v_mul_f32 v%d, %s, v%d
        v_fma_f32 v%d, v%d, s94, -v%d
        v_fmac_f32 v%d, %s, v%d
        v_exp_f32 v%d, v%d
        v_mul_f32 v%d, %s, v%d
        v_fma_f32 v%d, v%d, v%d, v%d
        ''' % (t1, f32(L2E_HI), x, t2, x, t1, t2, f32(L2E_LO), x, t1, t1, t2, f32(LN2), t2, dst, t1, t2, t1))

    def div(self, dst, n, d, t1, t2):
        self.a('''
        v_rcp_f32 v%d, v%d
        s_nop 0
        v_mul_f32 v%d, v%d, v%d
        v_fma_f32 v%d, -v%d, v%d, v%d
        v_fma_f32 v%d, v%d, v%d, v%d
        ''' % (t1, d, t2, n, t1, dst, t2, d, n, dst, dst, t1, t2))

    def lds_spin(self, addr, val, vt, va, sleep=1, ge=False, out=None):
        a = self.a
        l = a.newlabel('SP')
        a('v_mov_b32 v%d, %d\ns_mov_b32 s95, 0' % (va, addr))
        a.label(l)
        a('ds_read_b32 v%d, v%d\ns_waitcnt lgkmcnt(0)\nv_readfirstlane_b32 s93, v%d' % (vt, va, vt))
        l2 = a.newlabel('SPD')
        if val is None:
            a('s_cmp_lg_u32 s93, 0')
        else:
            a('s_cmp_eq_u32 s93, %d' % val)
        a('s_cbranch_scc1 %s' % l2)
        if sleep: a('s_sleep %d' % sleep)
        a('s_add_u32 s95, s95, 1\ns_cmp_lt_u32 s95, 0x40000\ns_cbranch_scc1 %s' % l)
        a.label(l2)

    def lds_set(self, addr, val, vt, va):
        self.a('v_mov_b32 v%d, %d\nv_mov_b32 v%d, %s\nds_write_b32 v%d, v%d' % (va, addr, vt, val, va, vt))

    def store_intra(self, instrs):
        a = self.a
        lf = a.newlabel('SF'); lj = a.newlabel('SJ')
        a('s_cmp_eq_u32 s45, 1\ns_cbranch_scc1 %s' % lf)
        for i in instrs: a(i + ' sc1')
        a('s_branch %s' % lj)
        a.label(lf)
        for i in instrs: a(i)
        a.label(lj)

    def poll(self, loads, regs, vt, sleep=0):
        a = self.a
        l = a.newlabel('PL')
        a('s_mov_b32 s95, 0')
        a.label(l)
        for i in loads: a(i + ' sc1')
        a('s_waitcnt vmcnt(0)')
        rs = list(regs)
        if len(rs) == 1:
            a('v_cmp_eq_u32 vcc, -1, v%d' % rs[0])
        else:
            if len(rs) == 2:
                a('v_max_u32 v%d, v%d, v%d' % (vt, rs[0], rs[1])); rest = []
            else:
                a('v_max3_u32 v%d, v%d, v%d, v%d' % (vt, rs[0], rs[1], rs[2])); rest = rs[3:]
            while rest:
                if len(rest) == 1:
                    a('v_max_u32 v%d, v%d, v%d' % (vt, vt, rest[0])); rest = []
                else:
                    a('v_max3_u32 v%d, v%d, v%d, v%d' % (vt, vt, rest[0], rest[1])); rest = rest[2:]
            a('v_cmp_eq_u32 vcc, -1, v%d' % vt)
        l2 = a.newlabel('PD')
        a('s_cbranch_vccz %s' % l2)
        if sleep: a('s_sleep %d' % sleep)
        a('s_add_u32 s95, s95, 1\ns_cmp_lt_u32 s95, 0x10000\ns_cbranch_scc1 %s' % l)
        a.label(l2)

    def sel_masks(self, m, t1, t2):
        a = self.a
        a('''
        v_and_b32 v%d, 1, v0
        v_lshlrev_b32 v%d, 4, v%d
        v_mov_b32 v%d, 0xffff
        v_lshlrev_b32 v%d, v%d, v%d
        v_bfe_u32 v%d, v0, 1, 2
        ''' % (t1, t1, t1, t2, t1, t1, t2, t2))
        for k in range(4):
            a('v_cmp_eq_u32 vcc, %d, v%d\ns_nop 1\nv_cndmask_b32 v%d, 0, v%d, vcc' % (k, t2, m + k, t1))

    def pv_addr(self, dst, t1, base):
        self.a('''
        v_lshrrev_b32 v%d, 4, v0
        v_bfe_u32 v%d, v0, 3, 1
        v_lshl_add_u32 v%d, v%d, 2, v%d
        v_lshlrev_b32 v%d, 2, v%d
        v_add_u32 v%d, %s, v%d
        ''' % (dst, t1, dst, t1, dst, dst, dst, dst, base, dst))

    def vshape_offsets(self, v1, v3, t1, t2, rowstride):
        self.a('''
        v_lshrrev_b32 v%d, 4, v0
        v_and_b32 v%d, 15, v0
        v_mul_u32_u24 v%d, %d, v%d
        v_lshl_add_u32 v%d, v%d, 4, v%d
        v_bfe_u32 v%d, v0, 3, 1
        v_lshl_add_u32 v%d, v%d, 2, v%d
        v_mul_u32_u24 v%d, %d, v%d
        v_and_b32 v%d, 7, v0
        v_lshl_add_u32 v%d, v%d, 4, v%d
        v_add_u32 v%d, 256, v%d
        ''' % (t1, t2, v1, rowstride, t1, v1, t2, v1, t2, v3, t2, t1, v3, rowstride, v3, t2, v3, t2, v3, v3, v3))

    def vshape_combine(self, d1, d2, d3, voff, t1, t2):
        a = self.a
        a('''
        v_and_b32 v%d, 15, v0
        v_lshrrev_b32 v%d, 4, v0
        v_lshlrev_b32 v%d, 5, v%d
        v_lshl_add_u32 v%d, v%d, 4, v%d
        v_add_u32 v%d, %d, v%d
        v_cmp_gt_u32 vcc, 32, v0
        v_mov_b32 v%d, %s
        s_nop 0
        v_cndmask_b32 v%d, v%d, v%d, vcc
        v_and_b32 v%d, 40, v0
        v_cmp_eq_u32 vcc, 32, v%d
        s_nop 1
        v_cndmask_b32 v%d, v%d, v%d, vcc
        ''' % (t1, t2, voff, t1, voff, t2, voff,
               t1, 512 - 256 - 32, voff,
               t2, OOB, voff, t1, voff,
               t1, t1, voff, voff, t2))
        a('s_nop 4')
        for r in range(4):
            a('v_permlane32_swap_b32 v%d, v%d' % (d2 + r, d3 + r))
        for r in range(4):
            a('v_add_f32 v%d, v%d, v%d' % (d1 + r, d1 + r, d3 + r))
        for r in range(4):
            a('v_add_f32_dpp v%d, v%d, v%d row_ror:8 row_mask:0xc bank_mask:0xf' % (d1 + r, d2 + r, d3 + r))
        for r in range(4):
            a('v_min_u32 v%d, -2, v%d' % (d1 + r, d1 + r))

    def t3_gemv(self, n, W, acc, vpv, masks, sel, pvr, wait=None):
        a = self.a
        a('ds_read_b32 v%d, v%d offset:0' % (pvr, vpv))
        if n > 1: a('ds_read_b32 v%d, v%d offset:32' % (pvr + 1, vpv))
        for t in range(n):
            s = sel + 4 * (t & 1); pv = pvr + (t & 1)
            a('s_waitcnt lgkmcnt(%d)' % (1 if t < n - 1 else 0))
            for k in range(4):
                a('v_and_b32 v%d, v%d, v%d' % (s + k, pv, masks + k))
            if t + 2 < n: a('ds_read_b32 v%d, v%d offset:%d' % (pv, vpv, 32 * (t + 2)))
            else: a('s_nop 0')
            a('s_nop 0')
            if wait: wait(t)
            c = '0' if t == 0 else 'v[%d:%d]' % (acc, acc + 3)
            a('v_mfma_f32_16x16x32_bf16 v[%d:%d], v[%d:%d], v[%d:%d], %s' % (acc, acc + 3, s, s + 3, W + 4 * t, W + 4 * t + 3, c))

    def t3_off(self, voff, t1, t2):
        self.a('''
        v_and_b32 v%d, 15, v0
        v_lshrrev_b32 v%d, 4, v0
        v_lshlrev_b32 v%d, 5, v%d
        v_lshl_add_u32 v%d, v%d, 4, v%d
        v_and_b32 v%d, 40, v0
        v_cmp_eq_u32 vcc, 0, v%d
        v_mov_b32 v%d, %s
        s_nop 0
        v_cndmask_b32 v%d, v%d, v%d, vcc
        ''' % (t1, t2, voff, t1, voff, t2, voff, t1, t1, t2, OOB, voff, t2, voff))

    def t3_combine(self, acc, tmp):
        a = self.a
        a('s_nop 7')
        for r in range(4): a('v_permlane32_swap_b32 v%d, v%d' % (acc + r, tmp + r))
        a('s_nop 0')
        for r in range(4): a('v_add_f32_dpp v%d, v%d, v%d row_ror:8 row_mask:0xf bank_mask:0xf' % (acc + r, tmp + r, acc + r))
        for r in range(4): a('v_min_u32 v%d, -2, v%d' % (acc + r, acc + r))

    def t3_lane_off(self, dst, t1, rowstride):
        self.a('''
        v_lshrrev_b32 v%d, 4, v0
        v_bfe_u32 v%d, v0, 3, 1
        v_lshl_add_u32 v%d, v%d, 2, v%d
        v_mul_u32_u24 v%d, %d, v%d
        v_and_b32 v%d, 7, v0
        v_lshl_add_u32 v%d, v%d, 4, v%d
        ''' % (dst, t1, dst, t1, dst, dst, rowstride, dst, t1, dst, t1, dst))

    def mbpoll_(self, word, sleep=0):
        a = self.a
        l = a.newlabel('MB'); l2 = a.newlabel('MBD')
        a('s_lshl_b32 s20, s6, 7\ns_add_u32 s20, s20, %d\ns_mov_b32 s95, 0' % (OFF_MB + 4 * word))
        a.label(l)
        a('s_load_dword s33, s[74:75], s20 glc\ns_waitcnt lgkmcnt(0)\ns_cmp_lg_u32 s33, -1\ns_cbranch_scc1 %s' % l2)
        if sleep: a('s_sleep %d' % sleep)
        a('s_add_u32 s95, s95, 1\ns_cmp_lt_u32 s95, 0x10000\ns_cbranch_scc1 %s' % l)
        a.label(l2)

    def prologue(self):
        a = self.a
        a('''
        s_cmp_ge_u32 s2, 256
        s_cbranch_scc1 L_end
        s_load_dwordx16 s[48:63], s[0:1], 0
        s_load_dwordx8 s[64:71], s[0:1], 64
        s_load_dwordx4 s[72:75], s[0:1], 96
        v_lshrrev_b32 v1, 6, v0
        v_and_b32 v0, 63, v0
        v_readfirstlane_b32 s3, v1
        s_and_b32 s4, s2, 7
        s_lshr_b32 s5, s2, 3
        s_lshl_b32 s6, s4, 5
        s_add_u32 s6, s6, s5
        s_lshr_b32 s7, s6, 3
        s_and_b32 s46, s6, 7
        s_mov_b32 s94, %s
        s_mov_b32 s45, 0
        s_waitcnt lgkmcnt(0)
        ''' % f32(L2E_HI))
        self.srd(16, 74, WS_BYTES)
        a('''
        s_cmp_eq_u32 s3, 8
        s_cbranch_scc1 L_A0
        s_cmp_eq_u32 s3, 9
        s_cbranch_scc1 L_A1
        s_cmp_eq_u32 s3, 10
        s_cbranch_scc1 L_A2
        s_cmp_eq_u32 s3, 11
        s_cbranch_scc1 L_A3
        ''')

    def s_wave(self):
        a = self.a; vm = VM(a); D = self.depth
        self.stamp_begin()
        self.stamp(0)
        self.srd(8, 50, 50331648); self.srd(12, 52, 50331648)
        a('''
        s_lshl_b32 s20, s6, 3
        s_add_u32 s20, s20, s3
        s_mul_i32 s20, s20, 24576
        v_and_b32 v4, 7, v0
        v_mul_u32_u24 v1, 384, v4
        v_bfe_u32 v4, v0, 3, 1
        v_lshl_add_u32 v1, v4, 6, v1
        v_lshrrev_b32 v4, 4, v0
        v_lshl_add_u32 v1, v4, 4, v1
        ''')
        KB = 28; VF = 124; NF = 11
        kreg = lambda t, s: KB + (t * 3 + s) * 4
        kidx = {}
        first = True
        for t in range(8):
            a('s_add_u32 s21, s20, %d' % (t * 3072))
            for s in range(3):
                vm.throttle(D)
                a('buffer_load_dwordx4 v[%d:%d], v1, s[8:11], s21 offen offset:%d nt' % (kreg(t, s), kreg(t, s) + 3, s * 128))
                kidx[(t, s)] = vm.issue()
                if vm.n == min(D, 4) and first:
                    first = False
                    self.vshape_offsets(2, 3, 4, 5, 384)
                    a('s_barrier')
        vtiles = [(t, ty) for t in range(8) for ty in range(3)]
        vreg = {}
        for n, tt in enumerate(vtiles):
            vreg[tt] = VF + 4 * n if n < NF else KB + 4 * (n - NF)
        vidx = {}
        def issue_v(n):
            t, ty = vtiles[n]
            vm.throttle(D)
            a('s_add_u32 s21, s20, %d' % (t * 3072))
            r = vreg[(t, ty)]
            if ty == 0: a('buffer_load_dwordx4 v[%d:%d], v2, s[12:15], s21 offen nt' % (r, r + 3))
            elif ty == 1: a('buffer_load_dwordx4 v[%d:%d], v2, s[12:15], s21 offen offset:1536 nt' % (r, r + 3))
            else: a('buffer_load_dwordx4 v[%d:%d], v3, s[12:15], s21 offen nt' % (r, r + 3))
            vidx[(t, ty)] = vm.issue()
        P = self.qk_after
        for n in range(P): issue_v(n)
        self.stamp(17)
        self.lds_spin(L_FLAGQ, None, 24, 25, sleep=2)
        a('''
        v_and_b32 v24, 1, v0
        v_lshrrev_b32 v25, 4, v0
        v_lshl_add_u32 v24, v24, 2, v25
        v_lshlrev_b32 v24, 4, v24
        ds_read_b128 v[4:7], v24 offset:%d
        ds_read_b128 v[8:11], v24 offset:%d
        ds_read_b128 v[12:15], v24 offset:%d
        s_waitcnt lgkmcnt(0)
        ''' % (L_Q, L_Q + 128, L_Q + 256))
        vS = 24
        def pack(t):
            acc = 16 + 4 * (t & 1)
            if t % 2 == 0:
                a('v_add_f32_dpp v%d, v%d, v%d row_ror:8 row_mask:0x%x bank_mask:0x3' % (vS, acc + 1, acc, 1 << (t // 2)))
            else:
                a('v_add_f32_dpp v%d, v%d, v%d row_ror:8 row_mask:0x%x bank_mask:0xc' % (vS, acc, acc + 1, 1 << (t // 2)))
        for t in range(8):
            acc = 16 + 4 * (t & 1)
            vm.wait(kidx[(t, 2)])
            for s in range(3):
                c = '0' if s == 0 else 'v[%d:%d]' % (acc, acc + 3)
                a('v_mfma_f32_16x16x32_bf16 v[%d:%d], v[%d:%d], v[%d:%d], %s' % (acc, acc + 3, 4 + 4 * s, 7 + 4 * s, kreg(t, s), kreg(t, s) + 3, c))
            if t >= 1:
                a('s_nop 4')
                pack(t - 1)
                a('s_nop 2')
        a('s_nop 7')
        pack(7)
        a('s_nop 0')
        self.rnd(vS, vS)
        a('v_mul_f32 v%d, %s, v%d' % (vS, f32(192 ** -0.5), vS))
        self.rnd(vS, vS)
        a('v_mov_b32 v16, v%d' % vS)
        self.wave_reduce(16, 17, 'max')
        a('v_sub_f32 v18, v%d, v16\nv_max_f32 v18, %s, v18' % (vS, f32(-200.0)))
        self.exp(17, 18, 19, 20)
        self.wave_reduce(17, 18, 'add')
        a('''
        s_lshl_b32 s21, s3, 3
        s_add_u32 s21, s21, %d
        v_mov_b32 v18, s21
        ds_write_b64 v18, v[16:17]
        v_mov_b32 v18, %d
        v_mov_b32 v19, 1
        s_waitcnt lgkmcnt(0)
        s_mov_b64 exec, 1
        ds_add_u32 v18, v19
        s_mov_b64 exec, -1
        ''' % (L_STAT, L_CNTST))
        self.stamp(15)
        for n in range(P, 24): issue_v(n)
        self.sel_masks(16, 25, 26)
        a('s_lshl_b32 s22, s3, 8\ns_add_u32 s22, s22, %d' % L_P)
        self.pv_addr(1, 25, 's22')
        self.stamp(18)
        self.lds_spin(L_FLAGP, None, 25, 26, sleep=2)
        a('''
        v_mov_b32 v25, %d
        ds_read_b64 v[26:27], v25
        v_mov_b32 v25, %d
        ds_read_b32 v25, v25
        v_lshlrev_b32 v2, 2, v0
        v_add_u32 v2, s22, v2
        s_waitcnt lgkmcnt(0)
        v_readfirstlane_b32 s45, v25
        v_sub_f32 v24, v24, v26
        v_max_f32 v24, %s, v24
        ''' % (L_GSTAT, L_MODE, f32(-200.0)))
        self.exp(24, 24, 20, 21)
        self.div(24, 24, 27, 20, 21)
        a('''
        v_cvt_pk_bf16_f32 v24, v24, v24
        ds_write_b32 v2, v24
        s_waitcnt lgkmcnt(0)
        ds_read_b32 v2, v1 offset:0
        ds_read_b32 v3, v1 offset:32
        ''')
        for t in range(8):
            sel = 20 + 4 * (t & 1)
            pv = 2 + (t & 1)
            a('s_waitcnt lgkmcnt(%d)' % (1 if t < 7 else 0))
            if t == 7:
                a('v_mov_b32 v1, %d\nv_mov_b32 v2, 1\ns_mov_b64 exec, 1\nds_add_u32 v1, v2\ns_mov_b64 exec, -1' % L_CNTPV)
            for k in range(4):
                a('v_and_b32 v%d, v%d, v%d' % (sel + k, pv, 16 + k))
            if t + 2 < 8:
                a('ds_read_b32 v%d, v1 offset:%d' % (pv, 32 * (t + 2)))
            else:
                a('s_nop 0')
            a('s_nop 0')
            for ty in range(3):
                vm.wait(vidx[(t, ty)])
                acc = 4 + 4 * ty
                c = '0' if t == 0 else 'v[%d:%d]' % (acc, acc + 3)
                r = vreg[(t, ty)]
                a('v_mfma_f32_16x16x32_bf16 v[%d:%d], v[%d:%d], v[%d:%d], %s' % (acc, acc + 3, sel, sel + 3, r, r + 3, c))
        self.vshape_combine(4, 8, 12, 1, 2, 3)
        if self.opt.get('v2'):
            self.s_end()
        else:
            a('''
            s_lshl_b32 s21, s6, 3
            s_add_u32 s21, s21, s3
            s_mul_i32 s21, s21, 768
            s_add_u32 s21, s21, %d
            ''' % OFF_O)
            self.store_intra(['buffer_store_dwordx4 v[4:7], v1, s[16:19], s21 offen'])
        if self.stamps:
            self.stamp(4)
            r15 = [r for (i, r) in self.stlist if i == self.opt.get('pw', 15)][0]
            a('s_lshl_b32 s92, s2, 8\ns_add_u32 s92, s92, %d\ns_lshl_b32 s93, s3, 3\ns_add_u32 s92, s92, s93\nv_mov_b32 v1, 0\nv_mov_b32 v3, 0\nv_mov_b32 v2, s%d\ns_mov_b64 exec, 1\nbuffer_store_dwordx2 v[2:3], v1, s[16:19], s92 offen\ns_nop 1' % (OFF_STAMP + 160, r15))
            a('s_cmp_lg_u32 s3, 0\ns_cbranch_scc1 L_end')
            self.stamp_flush()
        a('s_endpgm')

    def a0_wave(self):
        a = self.a; vm = VM(a)
        a.label('L_A0')
        self.stamp_begin()
        a('s_setprio 2')
        self.srd(8, 68, 640 * 7680); self.srd(12, 66, 1280)
        a('''
        v_lshlrev_b32 v1, 2, v0
        v_mov_b32 v2, 0
        ds_write_b32 v1, v2
        s_cmp_ge_u32 s2, 240
        s_cbranch_scc1 L_A0_bar
        s_and_b32 s20, s2, 3
        s_lshr_b32 s21, s2, 2
        s_mul_i32 s22, s20, %d
        s_lshl_b32 s23, s21, 7
        s_add_u32 s22, s22, s23
        v_lshrrev_b32 v4, 4, v0
        v_bfe_u32 v5, v0, 3, 1
        v_lshl_add_u32 v4, v5, 2, v4
        v_mul_u32_u24 v4, 7680, v4
        v_and_b32 v5, 7, v0
        v_lshl_add_u32 v4, v5, 4, v4
        s_mul_i32 s24, s20, 320
        v_lshlrev_b32 v5, 1, v0
        buffer_load_ushort v6, v5, s[12:15], s24 offen
        buffer_load_ushort v7, v5, s[12:15], s24 offen offset:128
        buffer_load_ushort v8, v5, s[12:15], s24 offen offset:256
        ''' % (160 * 7680))
        for _ in range(3): vm.issue()
        W = 40
        widx = []
        for t in range(20):
            a('s_add_u32 s23, s22, %d' % (t * 8 * 7680))
            a('buffer_load_dwordx4 v[%d:%d], v4, s[8:11], s23 offen nt' % (W + 4 * t, W + 4 * t + 3))
            widx.append(vm.issue())
        a.label('L_A0_bar')
        a('s_waitcnt lgkmcnt(0)\ns_barrier')
        a('s_cmp_ge_u32 s2, 240\ns_cbranch_scc1 L_A0_stats')
        self.sel_masks(16, 9, 10)
        self.pv_addr(1, 9, str(L_S))
        vm.wait(2)
        for k in range(3):
            r = 6 + k
            a('v_lshlrev_b32 v%d, 16, v%d\nv_sub_f32 v9, 0, v%d\nv_min_f32 v9, %s, v9\nv_max_f32 v9, %s, v9' % (r, r, r, f32(88.0), f32(-200.0)))
            self.exp(10, 9, 11, 12)
            a('v_add_f32 v10, 1.0, v10')
            self.div(r, r, 10, 11, 12)
            a('v_cvt_pk_bf16_f32 v%d, v%d, v%d' % (r, r, r))
        a('''
        v_lshlrev_b32 v9, 2, v0
        ds_write_b32 v9, v6 offset:%d
        ds_write_b32 v9, v7 offset:%d
        ds_write_b32 v9, v8 offset:%d
        s_waitcnt lgkmcnt(0)
        ds_read_b32 v2, v1 offset:0
        ds_read_b32 v3, v1 offset:32
        ''' % (L_S, L_S + 256, L_S + 512))
        for t in range(20):
            sel = 20 + 4 * (t & 1); pv = 2 + (t & 1)
            a('s_waitcnt lgkmcnt(%d)' % (1 if t < 19 else 0))
            for k in range(4):
                a('v_and_b32 v%d, v%d, v%d' % (sel + k, pv, 16 + k))
            if t + 2 < 20: a('ds_read_b32 v%d, v1 offset:%d' % (pv, 32 * (t + 2)))
            else: a('s_nop 0')
            a('s_nop 0')
            vm.wait(widx[t])
            c = '0' if t == 0 else 'v[4:7]'
            a('v_mfma_f32_16x16x32_bf16 v[4:7], v[%d:%d], v[%d:%d], %s' % (sel, sel + 3, W + 4 * t, W + 4 * t + 3, c))
        a('''
        v_and_b32 v9, 15, v0
        v_lshrrev_b32 v10, 4, v0
        v_lshlrev_b32 v1, 5, v9
        v_lshl_add_u32 v1, v10, 4, v1
        v_and_b32 v9, 40, v0
        v_cmp_eq_u32 vcc, 0, v9
        v_mov_b32 v10, %s
        s_nop 0
        v_cndmask_b32 v1, v10, v1, vcc
        s_nop 2
        ''' % OOB)
        for r in range(4): a('v_permlane32_swap_b32 v%d, v%d' % (4 + r, 8 + r))
        a('s_nop 1')
        for r in range(4): a('v_add_f32_dpp v%d, v%d, v%d row_ror:8 row_mask:0xf bank_mask:0xf' % (4 + r, 8 + r, 4 + r))
        for r in range(4): a('v_min_u32 v%d, -2, v%d' % (4 + r, 4 + r))
        self.lds_spin(L_INIT, None, 9, 10, sleep=1)
        a('''
        s_mul_i32 s22, s20, 15360
        s_lshl_b32 s23, s21, 8
        s_add_u32 s22, s22, s23
        s_add_u32 s22, s22, %d
        buffer_store_dwordx4 v[4:7], v1, s[16:19], s22 offen sc1
        ''' % OFF_MOD)
        self.stamp(1, None, 12, 14)
        a.label('L_A0_stats')
        self.lds_spin(L_MODE, None, 9, 10, sleep=4)
        a('s_mov_b32 s45, s93')
        if not self.opt.get('v2'): self.mbpoll_(1, sleep=4)
        self.lds_spin(L_CNTST, 8, 9, 10, sleep=2)
        a('''
        v_and_b32 v1, 7, v0
        v_lshlrev_b32 v2, 3, v1
        ds_read_b64 v[4:5], v2 offset:%d
        s_waitcnt lgkmcnt(0)
        ''' % L_STAT)
        def combine_stats():
            a('v_mov_b32 v6, v4')
            for r in (4, 2, 1):
                a('s_nop 1\nv_max_f32_dpp v6, v6, v6 row_ror:%d row_mask:0xf bank_mask:0xf' % r)
            a('v_sub_f32 v8, v4, v6\nv_max_f32 v8, %s, v8' % f32(-200.0))
            self.exp(7, 8, 9, 10)
            a('v_mul_f32 v7, v7, v5')
            for r in (4, 2, 1):
                a('s_nop 1\nv_add_f32_dpp v7, v7, v7 row_ror:%d row_mask:0xf bank_mask:0xf' % r)
        combine_stats()
        a('''
        v_min_u32 v6, -2, v6
        v_min_u32 v7, -2, v7
        s_lshl_b32 s22, s6, 7
        s_add_u32 s22, s22, %d
        v_readfirstlane_b32 s24, v6
        v_readfirstlane_b32 s25, v7
        s_lshl_b32 s23, s7, 10
        s_add_u32 s23, s23, %d
        s_nop 2
        s_atomic_swap_x2 s[24:25], s[74:75], s22
        s_mov_b32 s95, 0
        L_A0_sp:
        ''' % (OFF_ST, OFF_ST))
        for k in range(8):
            a('s_load_dwordx2 s[%d:%d], s[74:75], s23 offset:%d glc' % (76 + 2 * k, 77 + 2 * k, 128 * k))
        a('s_waitcnt lgkmcnt(0)\ns_max_u32 s26, s76, s77')
        for k in range(2, 16): a('s_max_u32 s26, s26, s%d' % (76 + k))
        a('''
        s_cmp_lg_u32 s26, -1
        s_cbranch_scc1 L_A0_spd
        s_add_u32 s95, s95, 1
        s_cmp_lt_u32 s95, 0x10000
        s_cbranch_scc1 L_A0_sp
        L_A0_spd:
        ''')
        for k in range(8):
            a('v_writelane_b32 v4, s%d, %d\nv_writelane_b32 v4, s%d, %d\nv_writelane_b32 v5, s%d, %d\nv_writelane_b32 v5, s%d, %d' % (76 + 2 * k, k, 76 + 2 * k, k + 8, 77 + 2 * k, k, 77 + 2 * k, k + 8))
        combine_stats()
        a('''
        v_mov_b32 v2, %d
        s_mov_b64 exec, 1
        ds_write_b64 v2, v[6:7]
        s_mov_b64 exec, -1
        s_waitcnt lgkmcnt(0)
        ''' % L_GSTAT)
        self.lds_set(L_FLAGP, '1', 9, 10)
        self.stamp(3)
        if self.opt.get('v2'):
            self.stl_a0 = list(self.stlist); a('s_branch L_TAIL'); return
        self.stamp_flush()
        a('s_endpgm')

    def ln_stats(self, vals, vmu, vden, t):
        a = self.a
        a('v_add_f32 v%d, v%d, v%d' % (vmu, vals[0], vals[1]))
        for v in vals[2:]: a('v_add_f32 v%d, v%d, v%d' % (vmu, vmu, v))
        self.wave_reduce(vmu, t[0], 'add')
        a('v_mul_f32 v%d, %s, v%d' % (vmu, f32(1.0 / 640), vmu))
        a('v_sub_f32 v%d, v%d, v%d\nv_mul_f32 v%d, v%d, v%d' % (t[0], vals[0], vmu, vden, t[0], t[0]))
        for v in vals[1:]:
            a('v_sub_f32 v%d, v%d, v%d\nv_fmac_f32 v%d, v%d, v%d' % (t[0], v, vmu, vden, t[0], t[0]))
        self.wave_reduce(vden, t[0], 'add')
        a('v_mul_f32 v%d, %s, v%d' % (vden, f32(1.0 / 640), vden))
        self.rnd(vden, vden)
        a('v_add_f32 v%d, %s, v%d' % (vden, f32(1e-5), vden))
        self.rnd(vden, vden)
        a('v_sqrt_f32 v%d, v%d\ns_nop 0' % (vden, vden))
        self.rnd(vden, vden)
        self.rnd(vmu, vmu)

    def modulate(self, x, c1, sb, vmu, vden, vrcp, t1, t2):
        a = self.a
        a('v_sub_f32 v%d, v%d, v%d' % (x, x, vmu))
        self.rnd(x, x)
        a('''
        v_mul_f32 v%d, v%d, v%d
        v_fma_f32 v%d, -v%d, v%d, v%d
        v_fma_f32 v%d, v%d, v%d, v%d
        ''' % (t1, x, vrcp, t2, t1, vden, x, x, t2, vrcp, t1))
        self.rnd(x, x)
        a('v_mul_f32 v%d, v%d, v%d' % (x, x, c1))
        self.rnd(x, x)
        a('v_add_f32 v%d, v%d, v%d' % (x, x, sb))

    def a1_wave(self):
        a = self.a; vm = VM(a)
        a.label('L_A1')
        self.stamp_begin()
        a('s_setprio 2')
        self.srd(8, 54, 640 * 12288); self.srd(12, 48, 1280)
        a('''
        v_lshlrev_b32 v4, 2, v0
        buffer_load_dword v20, v4, s[12:15], 0 offen
        buffer_load_dword v21, v4, s[12:15], 0 offen offset:256
        buffer_load_dword v22, v4, s[12:15], 0 offen offset:512
        buffer_load_dword v23, v4, s[12:15], 0 offen offset:768
        buffer_load_dword v24, v4, s[12:15], 0 offen offset:1024
        v_min_u32 v1, 19, v0
        v_lshlrev_b32 v4, 3, v1
        s_mul_i32 s20, s46, 160
        buffer_load_dwordx2 v[26:27], v4, s[12:15], s20 offen
        ''')
        for _ in range(6): vm.issue()
        self.vshape_offsets(2, 3, 4, 5, 12288)
        a('''
        s_barrier
        s_mul_i32 s20, s46, %d
        s_mul_i32 s21, s7, 384
        s_add_u32 s20, s20, s21
        ''' % (80 * 12288))
        W = 40
        widx = {}
        for t in range(10):
            a('s_add_u32 s21, s20, %d\ns_add_u32 s22, s20, %d' % (t * 8 * 12288, (t * 8 + 4) * 12288))
            for ty in range(3):
                vm.throttle(self.opt.get('a1depth', 40))
                r = W + (t * 3 + ty) * 4
                if ty == 0: a('buffer_load_dwordx4 v[%d:%d], v2, s[8:11], s21 offen nt' % (r, r + 3))
                elif ty == 1: a('buffer_load_dwordx4 v[%d:%d], v2, s[8:11], s22 offen nt' % (r, r + 3))
                else: a('buffer_load_dwordx4 v[%d:%d], v3, s[8:11], s21 offen nt' % (r, r + 3))
                widx[(t, ty)] = vm.issue()
        vm.wait(5)
        for k in range(5):
            a('v_lshlrev_b32 v%d, 16, v%d\nv_and_b32 v%d, 0xffff0000, v%d' % (28 + 2 * k, 20 + k, 29 + 2 * k, 20 + k))
        self.ln_stats(list(range(28, 38)), 38, 39, [4, 5, 6, 7])
        a('''
        v_lshlrev_b32 v28, 16, v26
        v_and_b32 v29, 0xffff0000, v26
        v_lshlrev_b32 v30, 16, v27
        v_and_b32 v31, 0xffff0000, v27
        v_rcp_f32 v32, v39
        ''')
        self.lds_spin(L_MODE, None, 4, 5, sleep=4)
        a('''
        s_mov_b32 s45, s93
        s_mul_i32 s20, s46, 320
        s_add_u32 s20, s20, %d
        s_add_u32 s21, s20, 15360
        s_add_u32 s22, s20, 30720
        s_add_u32 s23, s20, 46080
        v_lshlrev_b32 v2, 4, v1
        ''' % OFF_MOD)
        g = [4, 8, 12, 16, 20, 24, 160, 164]
        loads = []
        for rs in range(4):
            loads.append('buffer_load_dwordx4 v[%d:%d], v2, s[16:19], s%d offen' % (g[rs], g[rs] + 3, 20 + rs))
            loads.append('buffer_load_dwordx4 v[%d:%d], v2, s[16:19], s%d offen offset:2560' % (g[4 + rs], g[4 + rs] + 3, 20 + rs))
        regs = [b + k for b in g for k in range(4)]
        self.poll(loads, regs, 33, sleep=2)
        vm.done = vm.n
        self.stamp(14, None, 34, 36)
        for k in range(4):
            a('v_add_f32 v%d, v%d, v%d\nv_add_f32 v%d, v%d, v%d\nv_add_f32 v%d, v%d, v%d' % (4 + k, 4 + k, 8 + k, 12 + k, 12 + k, 16 + k, 4 + k, 4 + k, 12 + k))
            a('v_add_f32 v%d, v%d, v%d\nv_add_f32 v%d, v%d, v%d\nv_add_f32 v%d, v%d, v%d' % (20 + k, 20 + k, 24 + k, 160 + k, 160 + k, 164 + k, 20 + k, 20 + k, 160 + k))
            self.rnd(4 + k, 4 + k)
            self.rnd(20 + k, 20 + k)
            a('v_add_f32 v%d, 1.0, v%d' % (20 + k, 20 + k))
            self.rnd(20 + k, 20 + k)
            self.modulate(28 + k, 20 + k, 4 + k, 38, 39, 32, 33, 34)
            a('v_cvt_pk_bf16_f32 v%d, v%d, v%d' % (28 + k, 28 + k, 28 + k))
        a('ds_write_b128 v2, v[28:31] offset:%d' % L_H)
        self.sel_masks(16, 33, 34)
        self.pv_addr(1, 33, str(L_H))
        a('''
        s_waitcnt lgkmcnt(0)
        ds_read_b32 v2, v1 offset:0
        ds_read_b32 v3, v1 offset:32
        ''')
        for t in range(10):
            sel = 20 + 4 * (t & 1); pv = 2 + (t & 1)
            a('s_waitcnt lgkmcnt(%d)' % (1 if t < 9 else 0))
            for k in range(4):
                a('v_and_b32 v%d, v%d, v%d' % (sel + k, pv, 16 + k))
            if t + 2 < 10: a('ds_read_b32 v%d, v1 offset:%d' % (pv, 32 * (t + 2)))
            else: a('s_nop 0')
            a('s_nop 0')
            for ty in range(3):
                acc = 4 + 4 * ty
                c = '0' if t == 0 else 'v[%d:%d]' % (acc, acc + 3)
                r = W + (t * 3 + ty) * 4
                a('v_mfma_f32_16x16x32_bf16 v[%d:%d], v[%d:%d], v[%d:%d], %s' % (acc, acc + 3, sel, sel + 3, r, r + 3, c))
        self.vshape_combine(4, 8, 12, 1, 2, 3)
        a('s_mul_i32 s21, s6, 768\ns_add_u32 s21, s21, %d' % OFF_Q)
        self.store_intra(['buffer_store_dwordx4 v[4:7], v1, s[16:19], s21 offen'])
        a('''
        s_mul_i32 s21, s7, 6144
        s_add_u32 s21, s21, %d
        s_add_u32 s22, s21, 3072
        v_min_u32 v1, 47, v0
        v_lshlrev_b32 v2, 4, v1
        ''' % OFF_Q)
        loads = []
        for p in range(8):
            loads.append('buffer_load_dwordx4 v[%d:%d], v2, s[16:19], s%d offen offset:%d' % (40 + 4 * p, 43 + 4 * p, 21 + p // 4, (p % 4) * 768))
        self.poll(loads, list(range(40, 72)), 33, sleep=1)
        for k in range(4):
            for st in (1, 2, 4):
                for p in range(0, 8, 2 * st):
                    a('v_add_f32 v%d, v%d, v%d' % (40 + 4 * p + k, 40 + 4 * p + k, 40 + 4 * (p + st) + k))
        a('''
        v_cvt_pk_bf16_f32 v4, v40, v41
        v_cvt_pk_bf16_f32 v5, v42, v43
        v_lshlrev_b32 v2, 3, v1
        ds_write_b64 v2, v[4:5] offset:%d
        s_waitcnt lgkmcnt(0)
        ''' % L_Q)
        self.lds_set(L_FLAGQ, '1', 9, 10)
        self.stamp(2)
        if self.opt.get('v2'):
            self.stl_a1 = list(self.stlist); a('s_branch L_TAIL'); return
        self.stamp_flush()
        a('s_endpgm')

    def interleave(self, ra, rb, t1):
        self.a('''
        v_perm_b32 v%d, v%d, v%d, s96
        v_perm_b32 v%d, v%d, v%d, s97
        v_mov_b32 v%d, v%d
        ''' % (t1, rb, ra, rb, rb, ra, ra, t1))

    def reduce32(self, off_src, off_dst):
        a = self.a
        a('''
        s_mul_i32 s21, s4, %d
        s_lshl_b32 s22, s5, 7
        s_add_u32 s21, s21, s22
        s_add_u32 s21, s21, %d
        s_add_u32 s22, s21, 5120
        ''' % (32 * 2560, off_src))
        loads = ['buffer_load_dwordx4 v[%d:%d], v1, s[16:19], s%d offen offset:%d' % (4 + 4 * n, 7 + 4 * n, 21 + n // 2, (n % 2) * 2560) for n in range(4)]
        self.poll(loads, list(range(4, 20)), 20)
        a('''
        v_pk_add_f32 v[4:5], v[4:5], v[8:9]
        v_pk_add_f32 v[6:7], v[6:7], v[10:11]
        v_pk_add_f32 v[12:13], v[12:13], v[16:17]
        v_pk_add_f32 v[14:15], v[14:15], v[18:19]
        v_pk_add_f32 v[4:5], v[4:5], v[12:13]
        v_pk_add_f32 v[6:7], v[6:7], v[14:15]
        ''')
        self.red8([4, 5, 6, 7])
        a('''
        v_min_u32 v4, -2, v4
        s_lshl_b32 s21, s6, 7
        s_add_u32 s21, s21, %d
        buffer_store_dword v4, v2, s[16:19], s21 offen sc1
        ''' % off_dst)

    def gather8(self, off_src):
        a = self.a
        a('s_lshl_b32 s21, s5, 7\ns_add_u32 s21, s21, %d' % off_src)
        self.poll(['buffer_load_dwordx4 v[4:7], v3, s[16:19], s21 offen'], [4, 5, 6, 7], 20)
        self.red8([4, 5, 6, 7])

    def a2_wave(self):
        a = self.a; vm = VM(a)
        a.label('L_A2')
        self.stamp_begin()
        a('s_setprio 3')
        self.srd(8, 56, 6144 * 1280); self.srd(12, 48, 1280); self.srd(24, 72, 256); self.srd(28, 70, 1280)
        a('''
        s_mov_b32 s96, 0x05040100
        s_mov_b32 s97, 0x07060302
        v_mov_b32 v4, -1
        v_mov_b32 v5, -1
        v_mov_b32 v6, -1
        v_mov_b32 v7, -1
        v_lshlrev_b32 v1, 4, v0
        ''')
        def init(base_expr, nbytes, pol):
            a(base_expr)
            off = 0
            while off < nbytes:
                n = min(1024, nbytes - off)
                if n < 1024:
                    lanes = n // 16
                    m = (1 << lanes) - 1
                    a('s_mov_b32 exec_lo, 0x%x\ns_mov_b32 exec_hi, 0x%x' % (m & 0xffffffff, m >> 32))
                if off < 4096:
                    a('buffer_store_dwordx4 v[4:7], v1, s[16:19], s20 offen offset:%d %s' % (off, pol))
                else:
                    a('s_add_u32 s21, s20, %d\nbuffer_store_dwordx4 v[4:7], v1, s[16:19], s21 offen %s' % (off, pol))
                if n < 1024: a('s_mov_b64 exec, -1')
                off += n
        def fanout(word):
            a('''
            v_mov_b32 v10, s35
            v_lshlrev_b32 v8, 7, v0
            s_mov_b32 s20, %d
            s_mov_b32 s21, %d
            s_mov_b32 s22, %d
            s_mov_b32 s23, %d
            buffer_store_dword v10, v8, s[16:19], s20 offen sc1
            buffer_store_dword v10, v8, s[16:19], s21 offen sc1
            buffer_store_dword v10, v8, s[16:19], s22 offen sc1
            buffer_store_dword v10, v8, s[16:19], s23 offen sc1
            ''' % tuple(OFF_MB + 4 * word + 8192 * k for k in range(4)))
        mbpoll = self.mbpoll_
        init('s_lshl_b32 s20, s6, 7\ns_add_u32 s20, s20, %d' % OFF_MB, 16, 'sc1')
        init('s_lshl_b32 s20, s6, 7\ns_add_u32 s20, s20, %d' % OFF_ST, 16, 'sc1')
        init('s_mul_i32 s20, s6, 768\ns_add_u32 s20, s20, %d' % OFF_Q, 768, '')
        a('s_cmp_ge_u32 s2, 240\ns_cbranch_scc1 L_A2_nomod')
        init('s_and_b32 s20, s2, 3\ns_mul_i32 s20, s20, 15360\ns_lshr_b32 s21, s2, 2\ns_lshl_b32 s21, s21, 8\ns_add_u32 s20, s20, s21\ns_add_u32 s20, s20, %d' % OFF_MOD, 256, 'sc1')
        a.label('L_A2_nomod')
        a('''
        s_barrier
        s_getreg_b32 s20, hwreg(HW_REG_XCC_ID)
        s_and_b32 s20, s20, 7
        s_lshl_b32 s22, s20, 3
        s_lshl_b64 s[32:33], 1, s22
        s_lshl_b32 s21, s4, 5
        s_mov_b64 s[34:35], s[32:33]
        s_waitcnt vmcnt(0)
        s_atomic_add_x2 s[34:35], s[72:73], s21 glc
        ''')
        self.lds_set(L_INIT, '1', 9, 12)
        a('''
        s_waitcnt lgkmcnt(0)
        s_add_u32 s34, s34, s32
        s_addc_u32 s35, s35, s33
        v_mov_b32 v10, s34
        v_mov_b32 v11, s35
        v_sad_u8 v12, v10, 0, 0
        v_sad_u8 v12, v11, 0, v12
        s_nop 0
        v_readfirstlane_b32 s36, v12
        ''')
        self.stamp(16)
        a('''
        s_nop 3
        s_cmp_lg_u32 s36, 32
        s_cbranch_scc1 L_A2_mb
        ; last of the group: bad if any field not in {0,32}
        s_or_b32 s34, s34, s35
        s_and_b32 s34, s34, 0xdfdfdfdf
        s_cmp_lg_u32 s34, 0
        s_cselect_b32 s34, 0x10001, 1
        s_mov_b32 s35, s34
        s_atomic_add s35, s[72:73], 0x8 glc
        s_waitcnt lgkmcnt(0)
        s_add_u32 s35, s35, s34
        s_and_b32 s36, s35, 0xffff
        s_cmp_lg_u32 s36, 8
        s_cbranch_scc1 L_A2_mb
        s_lshr_b32 s35, s35, 16
        s_cmp_lg_u32 s35, 0
        s_cselect_b32 s35, 2, 1
        ''')
        self.stamp(19)
        fanout(0)
        a.label('L_A2_mb')
        mbpoll(0)
        a('s_cmp_eq_u32 s33, 1\ns_cselect_b32 s45, 1, 2')
        if self.opt.get('force_slow'): a('s_mov_b32 s45, 2')
        a('s_cmp_lg_u32 s45, 1\ns_cbranch_scc1 L_A2_slow1')
        self.lds_set(L_MODE, '1', 9, 10)
        self.stamp(13)
        def init2(pol):
            init('s_mul_i32 s20, s6, 6144\ns_add_u32 s20, s20, %d' % OFF_O, 6144, pol)
            init('s_mul_i32 s20, s6, 2560\ns_add_u32 s20, s20, %d' % OFF_A, 2560, pol)
            init('s_lshl_b32 s20, s6, 8\ns_add_u32 s20, s20, %d' % OFF_H, 256, pol)
            init('s_min_u32 s21, s5, 29\ns_lshl_b32 s21, s21, 8\ns_mul_i32 s20, s4, 7680\ns_add_u32 s20, s20, s21\ns_add_u32 s20, s20, %d' % OFF_G, 256, pol)
        init2('')
        a('s_branch L_A2_p2')
        a.label('L_A2_slow1')
        init2('sc1')
        init('s_mul_i32 s20, s6, 768\ns_add_u32 s20, s20, %d' % OFF_Q, 768, 'sc1')
        a.label('L_A2_p2')
        init('s_lshl_b32 s20, s6, 7\ns_add_u32 s20, s20, %d' % OFF_X, 128, 'sc1')
        init('s_min_u32 s21, s5, 29\ns_lshl_b32 s21, s21, 8\ns_mul_i32 s20, s4, 7680\ns_add_u32 s20, s20, s21\ns_add_u32 s20, s20, %d' % OFF_F, 256, 'sc1')
        a('''
        s_mov_b32 s34, 1
        s_lshl_b32 s21, s4, 5
        s_add_u32 s21, s21, 16
        s_waitcnt vmcnt(0)
        s_atomic_add s34, s[72:73], s21 glc
        s_waitcnt lgkmcnt(0)
        s_cmp_lg_u32 s34, 31
        s_cbranch_scc1 L_A2_mb2
        s_mov_b32 s34, 1
        s_atomic_add s34, s[72:73], 0x18 glc
        s_waitcnt lgkmcnt(0)
        s_cmp_lg_u32 s34, 7
        s_cbranch_scc1 L_A2_mb2
        s_mov_b32 s35, 1
        ''')
        fanout(1)
        a.label('L_A2_mb2')
        a('s_cmp_eq_u32 s45, 1\ns_cbranch_scc1 L_A2_fast')
        mbpoll(1, sleep=2)
        self.lds_set(L_MODE, '2', 9, 10)
        a.label('L_A2_fast')
        W = 40
        a('''
        s_mul_i32 s20, s6, 30720
        v_lshlrev_b32 v2, 2, v0
        ''')
        for r in range(24):
            base = W + 5 * r
            pass
        def wreg(r):
            g = r // 2; b = W + 10 * g
            return (b + 4 * (r & 1), b + 8 + (r & 1))
        idx = []
        for r in range(24):
            x4, d1 = wreg(r)
            a('s_add_u32 s21, s20, %d' % (r * 1280))
            vm.throttle(self.adepth)
            a('buffer_load_dwordx4 v[%d:%d], v1, s[8:11], s21 offen nt' % (x4, x4 + 3)); vm.issue()
            a('buffer_load_dword v%d, v2, s[8:11], s21 offen offset:1024 nt' % d1); idx.append(vm.issue())
        vm.all()
        pairs = [(p + k, p + k + 4) for p in (0, 8, 16) for k in range(4)]
        for (ra, rb) in pairs:
            xa, da = wreg(ra); xb, db = wreg(rb)
            for k in range(4): self.interleave(xa + k, xb + k, 4)
            self.interleave(da, db, 4)
        self.mbpoll_(1, sleep=2)
        a('''
        v_and_b32 v24, 7, v0
        v_lshlrev_b32 v24, 2, v24
        v_bfe_u32 v25, v0, 4, 1
        v_lshl_add_u32 v24, v25, 1, v24
        v_lshrrev_b32 v25, 5, v0
        v_add_u32 v24, v24, v25
        s_cmp_ge_u32 s5, 20
        s_cbranch_scc1 L_A2_h1
        s_lshl_b32 s20, s5, 7
        s_add_u32 s20, s20, %d
        s_add_u32 s21, s20, 15360
        s_add_u32 s22, s20, 30720
        s_add_u32 s23, s20, 46080
        v_lshlrev_b32 v25, 2, v24
        v_add_u32 v26, 5120, v25
        v_add_u32 v27, 10240, v25
        s_lshl_b32 s32, s5, 6
        v_lshlrev_b32 v28, 1, v24
        buffer_load_ushort v30, v28, s[12:15], s32 offen
        ''' % OFF_MOD)
        loads = []
        for rs in range(4):
            loads.append('buffer_load_dword v%d, v26, s[16:19], s%d offen' % (4 + rs, 20 + rs))
            loads.append('buffer_load_dword v%d, v26, s[16:19], s%d offen offset:2560' % (8 + rs, 20 + rs))
            loads.append('buffer_load_dword v%d, v27, s[16:19], s%d offen' % (12 + rs, 20 + rs))
            loads.append('buffer_load_dword v%d, v27, s[16:19], s%d offen offset:2560' % (16 + rs, 20 + rs))
        self.poll(loads, list(range(4, 20)), 20, sleep=4)
        for n, dst in enumerate((31, 32, 33, 34)):
            b = 4 + 4 * n
            a('v_add_f32 v%d, v%d, v%d\nv_add_f32 v%d, v%d, v%d\nv_add_f32 v%d, v%d, v%d' % (b, b, b + 1, b + 2, b + 2, b + 3, dst, b, b + 2))
            self.rnd(dst, dst)
        a('v_add_f32 v33, 1.0, v33')
        a('''
        v_cvt_pk_bf16_f32 v33, v33, v32
        v_min_u32 v33, -2, v33
        v_lshlrev_b32 v30, 16, v30
        ''')
        a.label('L_A2_h1')
        a('''
        v_and_b32 v25, 7, v0
        v_lshrrev_b32 v26, 3, v0
        v_min_u32 v27, 5, v25
        v_mul_u32_u24 v35, 6144, v26
        v_lshl_add_u32 v35, v27, 4, v35          ; H1 gather offset: pslot*8*768 + piece*16
        v_mul_u32_u24 v36, 10240, v26
        v_lshl_add_u32 v36, v25, 4, v36          ; reduce32 gather: pslot*4*2560 + c*16
        v_lshlrev_b32 v37, 12, v26
        v_lshl_add_u32 v37, v25, 4, v37          ; gather8: pslot*32*128 + c*16
        v_and_b32 v27, 8, v0
        v_cmp_eq_u32 vcc, 0, v27
        v_mov_b32 v27, %s
        v_lshlrev_b32 v38, 2, v24
        v_cndmask_b32 v38, v27, v38, vcc         ; line store offset (dword)
        v_lshlrev_b32 v39, 3, v24
        v_cndmask_b32 v39, v27, v39, vcc         ; B_h store offset (8B)
        v_lshlrev_b32 v29, 1, v24
        v_cndmask_b32 v29, v27, v29, vcc         ; out store offset (2B)
        v_lshlrev_b32 v160, 5, v0                ; B_a store offsets
        v_lshlrev_b32 v161, 3, v0
        s_mul_i32 s21, s7, 49152
        s_mul_i32 s22, s46, 96
        s_add_u32 s21, s21, s22
        s_add_u32 s21, s21, %d
        s_add_u32 s22, s21, 3072
        ''' % (OOB, OFF_O))
        self.lds_spin(L_CNTPV, 8, 4, 5, sleep=1)
        loads = ['buffer_load_dwordx4 v[%d:%d], v35, s[16:19], s%d offen offset:%d' % (4 + 4 * n, 7 + 4 * n, 21, n * 768) for n in range(4)]
        self.poll(loads, list(range(4, 20)), 28)
        a('''
        v_pk_add_f32 v[4:5], v[4:5], v[8:9]
        v_pk_add_f32 v[6:7], v[6:7], v[10:11]
        v_pk_add_f32 v[12:13], v[12:13], v[16:17]
        v_pk_add_f32 v[14:15], v[14:15], v[18:19]
        v_pk_add_f32 v[20:21], v[4:5], v[12:13]
        v_pk_add_f32 v[22:23], v[6:7], v[14:15]
        ''')
        loads = ['buffer_load_dwordx4 v[%d:%d], v35, s[16:19], s%d offen offset:%d' % (4 + 4 * n, 7 + 4 * n, 22, n * 768) for n in range(4)]
        self.poll(loads, list(range(4, 20)), 28)
        self.stamp(5, None, 162, 164)
        a('''
        v_pk_add_f32 v[4:5], v[4:5], v[8:9]
        v_pk_add_f32 v[6:7], v[6:7], v[10:11]
        v_pk_add_f32 v[12:13], v[12:13], v[16:17]
        v_pk_add_f32 v[14:15], v[14:15], v[18:19]
        v_pk_add_f32 v[4:5], v[4:5], v[12:13]
        v_pk_add_f32 v[6:7], v[6:7], v[14:15]
        v_pk_add_f32 v[4:5], v[4:5], v[20:21]
        v_pk_add_f32 v[6:7], v[6:7], v[22:23]
        ''')
        self.red8([4, 5, 6, 7])
        a('''
        s_nop 1
        v_mov_b32_dpp v5, v4 quad_perm:[1,0,3,2] row_mask:0xf bank_mask:0xf
        v_cvt_pk_bf16_f32 v4, v4, v5
        s_nop 0
        ''')
        PI = [0, 2, 1, 3]
        sp = {}
        n = 0
        for p in (0, 2, 4):
            for q in range(4):
                a('v_readlane_b32 s%d, v4, %d' % (76 + n, p + 16 * q))
                sp[4 * p + PI[q]] = 76 + n; n += 1
        acc = 4
        for k in range(10): a('v_mov_b32 v%d, 0' % (acc + k))
        for (ra, rb) in pairs:
            xa, da = wreg(ra); xb, db = wreg(rb)
            s = sp[ra]
            for k in range(4):
                a('v_dot2c_f32_bf16 v%d, s%d, v%d' % (acc + 2 * k, s, xa + k))
                a('v_dot2c_f32_bf16 v%d, s%d, v%d' % (acc + 2 * k + 1, s, xb + k))
            a('v_dot2c_f32_bf16 v%d, s%d, v%d' % (acc + 8, s, da))
            a('v_dot2c_f32_bf16 v%d, s%d, v%d' % (acc + 9, s, db))
        a('s_nop 2')
        for k in range(10): a('v_min_u32 v%d, -2, v%d' % (acc + k, acc + k))
        a('s_mul_i32 s21, s6, 2560\ns_add_u32 s21, s21, %d' % OFF_A)
        self.store_intra(['buffer_store_dwordx4 v[4:7], v160, s[16:19], s21 offen',
                          'buffer_store_dwordx4 v[8:11], v160, s[16:19], s21 offen offset:16',
                          'buffer_store_dwordx2 v[12:13], v161, s[16:19], s21 offen offset:2048'])
        self.lds_set(L_FLAGA, '1', 14, 15)
        self.stamp(6)
        a('s_cmp_ge_u32 s5, 20\ns_cbranch_scc1 L_A2_end')
        a('v_mov_b32 v1, v36\nv_mov_b32 v2, v38\nv_mov_b32 v3, v37')
        self.reduce32(OFF_A, OFF_X)
        self.stamp(7, None, 162, 164)
        self.gather8(OFF_X)
        self.rnd(4, 4)
        a('v_mul_f32 v4, v31, v4')
        self.rnd(4, 4)
        a('v_add_f32 v4, v30, v4')
        self.rnd(32, 4)
        a('s_lshl_b32 s21, s6, 8\ns_add_u32 s21, s21, %d' % OFF_H)
        self.store_intra(['buffer_store_dwordx2 v[32:33], v39, s[16:19], s21 offen'])
        self.stamp(8, None, 162, 164)
        a('s_and_b32 s21, s5, 7\ns_cmp_lg_u32 s21, s4\ns_cbranch_scc1 L_A2_end')
        a('''
        v_lshrrev_b32 v1, 3, v0
        v_mul_u32_u24 v1, 7680, v1
        v_and_b32 v2, 7, v0
        v_lshl_add_u32 v1, v2, 4, v1
        s_lshl_b32 s21, s5, 7
        s_add_u32 s21, s21, %d
        s_add_u32 s22, s21, 5120
        ''' % OFF_F)
        self.poll(['buffer_load_dwordx4 v[4:7], v1, s[16:19], s21 offen',
                   'buffer_load_dwordx4 v[8:11], v1, s[16:19], s21 offen offset:2560',
                   'buffer_load_dwordx4 v[12:15], v1, s[16:19], s22 offen'], list(range(4, 16)), 20)
        a('''
        v_pk_add_f32 v[4:5], v[4:5], v[8:9]
        v_pk_add_f32 v[6:7], v[6:7], v[10:11]
        v_pk_add_f32 v[4:5], v[4:5], v[12:13]
        v_pk_add_f32 v[6:7], v[6:7], v[14:15]
        ''')
        self.red8([4, 5, 6, 7])
        self.rnd(4, 4)
        a('v_mul_f32 v4, v34, v4')
        self.rnd(4, 4)
        a('''
        v_add_f32 v4, v32, v4
        v_cvt_pk_bf16_f32 v4, v4, v4
        s_lshl_b32 s21, s5, 6
        buffer_store_short v4, v29, s[28:31], s21 offen
        ''')
        self.stamp(12)
        a.label('L_A2_end')
        self.stamp_flush()
        a('s_endpgm')

    def a3_wave(self):
        a = self.a; vm = VM(a)
        a.label('L_A3')
        self.stamp_begin()
        a('''
        s_setprio 3
        s_barrier
        s_cmp_ge_u32 s5, 30
        s_cbranch_scc1 L_end
        s_mul_i32 s20, s5, 52
        s_lshr_b32 s20, s20, 8              ; q5 = i/5
        s_mul_i32 s21, s20, 5
        s_sub_u32 s21, s5, s21              ; rs
        s_and_b32 s22, s20, 1               ; m
        s_lshr_b32 s23, s20, 1              ; cb
        s_mul_i32 s32, s5, 26
        s_lshr_b32 s32, s32, 8              ; fb = i/10
        s_mul_i32 s33, s32, 10
        s_sub_u32 s33, s5, s33              ; cbo
        s_cmp_eq_u32 s22, 0
        s_cselect_b32 s8, s60, s62
        s_cselect_b32 s9, s61, s63
        s_mov_b32 s10, %d
        s_mov_b32 s11, 0x20000
        ''' % (640 * 3072))
        self.srd(24, 64, 1536 * 1280)
        self.t3_lane_off(1, 4, 3072)
        self.t3_lane_off(2, 4, 1280)
        self.lds_spin(L_MODE, None, 4, 5, sleep=8)
        a('''
        s_mov_b32 s45, s93
        s_mul_i32 s34, s21, %d
        s_mul_i32 s35, s4, 384
        s_add_u32 s34, s34, s35
        s_lshl_b32 s35, s23, 7
        s_add_u32 s34, s34, s35             ; gate/up tile base
        s_mul_i32 s35, s4, %d
        s_mul_i32 s36, s32, %d
        s_add_u32 s35, s35, s36
        s_lshl_b32 s36, s33, 7
        s_add_u32 s35, s35, s36             ; down tile base
        ''' % (128 * 3072, 192 * 1280, 64 * 1280))
        GW = 40; DW = 104
        for t in range(16):
            vm.throttle(self.adepth)
            a('s_add_u32 s36, s34, %d\nbuffer_load_dwordx4 v[%d:%d], v1, s[8:11], s36 offen nt' % (t * 8 * 3072, GW + 4 * t, GW + 4 * t + 3)); vm.issue()
        for t in range(8):
            vm.throttle(self.adepth)
            a('s_add_u32 s36, s35, %d\nbuffer_load_dwordx4 v[%d:%d], v2, s[24:27], s36 offen nt' % (t * 8 * 1280, DW + 4 * t, DW + 4 * t + 3)); vm.issue()
        self.sel_masks(136, 4, 5)
        self.pv_addr(140, 4, str(L_H2))
        self.pv_addr(141, 4, str(L_GU))
        self.t3_off(142, 4, 5)
        a('''
        v_lshlrev_b32 v2, 4, v0
        v_lshlrev_b32 v143, 3, v0
        v_lshlrev_b32 v144, 2, v0
        s_lshl_b32 s76, s4, 13
        s_add_u32 s76, s76, %d
        s_add_u32 s77, s76, 4096
        s_lshl_b32 s78, s21, 10
        s_add_u32 s78, s78, s76             ; own 128 rows
        s_mul_i32 s79, s4, 7680
        s_add_u32 s79, s79, %d              ; B_g group base
        s_mul_i32 s80, s22, 5
        s_add_u32 s80, s80, s21
        s_mul_i32 s80, s80, 768
        s_lshl_b32 s81, s23, 8
        s_add_u32 s80, s80, s81
        s_add_u32 s80, s80, s79             ; B_g publish address
        s_lshl_b32 s81, s32, 8
        s_add_u32 s81, s81, s79             ; B_g gather base (g)
        s_add_u32 s82, s81, 3840            ; (u)
        s_mul_i32 s83, s4, 3
        s_add_u32 s83, s83, s32
        s_mul_i32 s83, s83, 2560
        s_lshl_b32 s84, s33, 8
        s_add_u32 s83, s83, s84
        s_add_u32 s83, s83, %d              ; B_f publish address
        ''' % (OFF_H, OFF_G, OFF_F))
        vm.all()
        self.lds_spin(L_FLAGA, None, 4, 5, sleep=2)
        loads = ['buffer_load_dwordx4 v[%d:%d], v2, s[16:19], s%d offen offset:%d' % (4 + 4 * k, 7 + 4 * k, 76 + k // 4, (k % 4) * 1024) for k in range(5)]
        loads.append('buffer_load_dwordx4 v[24:27], v2, s[16:19], s78 offen')
        self.poll(loads, list(range(4, 28)), 28)
        self.stamp(9)
        xs = [4 + 2 * n for n in range(10)]
        self.ln_stats(xs, 28, 29, [30, 31, 32, 33])
        a('v_rcp_f32 v30, v29')
        for n in range(2):
            x = 24 + 2 * n; p = x + 1
            a('v_lshlrev_b32 v31, 16, v%d\nv_and_b32 v32, 0xffff0000, v%d' % (p, p))
            self.modulate(x, 31, 32, 28, 29, 30, 33, 34)
        a('''
        v_cvt_pk_bf16_f32 v24, v24, v24
        v_cvt_pk_bf16_f32 v25, v26, v26
        ds_write_b64 v143, v[24:25] offset:%d
        s_waitcnt lgkmcnt(0)
        ''' % L_H2)
        self.t3_gemv(16, GW, 4, 140, 136, 12, 20)
        self.t3_combine(4, 8)
        self.store_intra(['buffer_store_dwordx4 v[4:7], v142, s[16:19], s80 offen'])
        self.stamp(10)
        loads = []
        for rs in range(5):
            loads.append('buffer_load_dword v%d, v144, s[16:19], s81 offen offset:%d' % (8 + rs, rs * 768))
            loads.append('buffer_load_dword v%d, v144, s[16:19], s82 offen offset:%d' % (13 + rs, rs * 768))
        self.poll(loads, list(range(8, 18)), 28)
        a('''
        v_add_f32 v8, v8, v9
        v_add_f32 v13, v13, v14
        v_add_f32 v10, v10, v11
        v_add_f32 v15, v15, v16
        v_add_f32 v8, v8, v12
        v_add_f32 v13, v13, v17
        v_add_f32 v8, v8, v10
        v_add_f32 v13, v13, v15
        ''')
        self.rnd(8, 8); self.rnd(13, 13)
        a('''
        v_mul_f32 v8, v8, v13
        v_cvt_pk_bf16_f32 v8, v8, v8
        ds_write_b32 v144, v8 offset:%d
        s_waitcnt lgkmcnt(0)
        ''' % L_GU)
        self.t3_gemv(8, DW, 4, 141, 136, 12, 20)
        self.t3_combine(4, 8)
        a('buffer_store_dwordx4 v[4:7], v142, s[16:19], s83 offen sc1')
        self.stamp(11)
        self.stamp_flush()
        a.label('L_end')
        a('s_endpgm')

    def build(self):
        self.prologue()
        self.s_wave()
        self.a0_wave()
        self.a1_wave()
        self.a2_wave()
        self.a3_wave()
        s = wrap(self.a.text(), 256, 768, LDS_BYTES, 168)
        s = s.replace('  .amdhsa_system_sgpr_workgroup_id_x 1\n', '  .amdhsa_system_sgpr_workgroup_id_x 1\n  .amdhsa_float_denorm_mode_32 3\n')
        return s

if __name__ == '__main__':
    import argparse
    ap = argparse.ArgumentParser()
    ap.add_argument('-o', default='k.s')
    ap.add_argument('--stamps', action='store_true')
    ap.add_argument('--opt', default='')
    x = ap.parse_args()
    kw = {}
    for kv in filter(None, x.opt.split(',')):
        k, v = kv.split('=')
        try: v = int(v)
        except ValueError: pass
        kw[k] = v
    open(x.o, 'w').write(Gen(stamps=x.stamps, **kw).build())
```

```python
import gen as G1
from gen import *

OFF_MOD = 0x0
OFF_Q   = 0x10000
OFF_ST  = 0x40000
OFF_O   = 0x50000
OFF_X   = 0x80000
OFF_H   = 0x90000
OFF_C   = 0x98000
OFF_G   = 0xA0000
OFF_F   = 0xB0000
OFF_MB  = 0xC0000
for k in ('OFF_MOD', 'OFF_Q', 'OFF_ST', 'OFF_O', 'OFF_X', 'OFF_H', 'OFF_G', 'OFF_F', 'OFF_MB'):
    setattr(G1, k, globals()[k])
L_STAGE, L_CNTO, L_CNTSL = 32, 36, 40
L_OSL = 6144
L_OB = 14336
L_H2 = 14848
L_GU = 15872
L_W = 16384
L_WO, L_WG, L_WD = L_W, L_W + 32768, L_W + 49152
LDS_BYTES = L_W + 57344

class Gen2(Gen):
    def s_end(self):
        a = self.a
        a('''
        v_min_u32 v2, 1008, v1
        s_lshl_b32 s21, s3, 10
        v_add_u32 v3, s21, v2
        ds_write_b128 v3, v[4:7] offset:%d
        v_mov_b32 v8, %d
        v_mov_b32 v9, 1
        s_mul_i32 s21, s6, 768
        s_add_u32 s21, s21, %d
        s_waitcnt lgkmcnt(0)
        s_mov_b64 exec, 1
        ds_add_rtn_u32 v9, v8, v9
        s_mov_b64 exec, -1
        s_waitcnt lgkmcnt(0)
        v_readfirstlane_b32 s22, v9
        s_cmp_lg_u32 s22, 7
        s_cbranch_scc1 L_S_end
        ''' % (L_OSL, L_CNTSL, OFF_O))
        for k in range(8):
            a('ds_read_b128 v[%d:%d], v2 offset:%d' % (28 + 4 * k, 31 + 4 * k, L_OSL + 1024 * k))
        for k in range(0, 8, 2):
            a('s_waitcnt lgkmcnt(%d)' % (6 - k))
            a('v_pk_add_f32 v[%d:%d], v[%d:%d], v[%d:%d]' % (28 + 4 * k, 29 + 4 * k, 28 + 4 * k, 29 + 4 * k, 32 + 4 * k, 33 + 4 * k))
            a('v_pk_add_f32 v[%d:%d], v[%d:%d], v[%d:%d]' % (30 + 4 * k, 31 + 4 * k, 30 + 4 * k, 31 + 4 * k, 34 + 4 * k, 35 + 4 * k))
        a('''
        v_pk_add_f32 v[28:29], v[28:29], v[36:37]
        v_pk_add_f32 v[30:31], v[30:31], v[38:39]
        v_pk_add_f32 v[44:45], v[44:45], v[52:53]
        v_pk_add_f32 v[46:47], v[46:47], v[54:55]
        v_pk_add_f32 v[28:29], v[28:29], v[44:45]
        v_pk_add_f32 v[30:31], v[30:31], v[46:47]
        v_min_u32 v28, -2, v28
        v_min_u32 v29, -2, v29
        v_min_u32 v30, -2, v30
        v_min_u32 v31, -2, v31
        ''')
        self.store_intra(['buffer_store_dwordx4 v[28:31], v1, s[16:19], s21 offen'])
        a.label('L_S_end')

    def gather24(self, off):
        a = self.a
        a('s_lshl_b32 s21, s5, 7\ns_add_u32 s21, s21, %d\ns_add_u32 s22, s21, 5120' % off)
        self.poll(['buffer_load_dwordx4 v[4:7], v37, s[16:19], s21 offen',
                   'buffer_load_dwordx4 v[8:11], v37, s[16:19], s21 offen offset:2560',
                   'buffer_load_dwordx4 v[12:15], v37, s[16:19], s22 offen'], list(range(4, 16)), 20)
        a('''
        v_pk_add_f32 v[4:5], v[4:5], v[8:9]
        v_pk_add_f32 v[6:7], v[6:7], v[10:11]
        v_pk_add_f32 v[4:5], v[4:5], v[12:13]
        v_pk_add_f32 v[6:7], v[6:7], v[14:15]
        ''')
        self.red8([4, 5, 6, 7])

    def a2_wave(self):
        a = self.a
        a.label('L_A2')
        self.stamp_begin()
        a('s_setprio 3')
        self.srd(12, 48, 1280)
        a('''
        v_mov_b32 v4, -1
        v_mov_b32 v5, -1
        v_mov_b32 v6, -1
        v_mov_b32 v7, -1
        v_lshlrev_b32 v1, 4, v0
        ''')
        def init(base_expr, nbytes, pol):
            a(base_expr)
            assert nbytes <= 1024
            lanes = nbytes // 16
            m = (1 << lanes) - 1
            a('s_mov_b32 exec_lo, 0x%x\ns_mov_b32 exec_hi, 0x%x' % (m & 0xffffffff, m >> 32))
            a('buffer_store_dwordx4 v[4:7], v1, s[16:19], s20 offen %s' % pol)
            a('s_mov_b64 exec, -1')
        def slot(off, gstride, n, sz):
            return 's_min_u32 s21, s5, %d\ns_mul_i32 s21, s21, %d\ns_mul_i32 s20, s4, %d\ns_add_u32 s20, s20, s21\ns_add_u32 s20, s20, %d' % (n - 1, sz, gstride, off)
        def init_intra(pol):
            init('s_mul_i32 s20, s6, 768\ns_add_u32 s20, s20, %d' % OFF_Q, 768, pol)
            init('s_mul_i32 s20, s6, 768\ns_add_u32 s20, s20, %d' % OFF_O, 768, pol)
            init(slot(OFF_H, 2560, 20, 128), 128, pol)
            init(slot(OFF_C, 2560, 20, 128), 128, pol)
            init(slot(OFF_G, 7680, 30, 256), 256, pol)
        def fanout(word):
            a('''
            v_mov_b32 v10, s35
            v_lshlrev_b32 v8, 7, v0
            s_mov_b32 s20, %d
            s_mov_b32 s21, %d
            s_mov_b32 s22, %d
            s_mov_b32 s23, %d
            buffer_store_dword v10, v8, s[16:19], s20 offen sc1
            buffer_store_dword v10, v8, s[16:19], s21 offen sc1
            buffer_store_dword v10, v8, s[16:19], s22 offen sc1
            buffer_store_dword v10, v8, s[16:19], s23 offen sc1
            ''' % tuple(OFF_MB + 4 * word + 8192 * k for k in range(4)))
        init('s_lshl_b32 s20, s6, 7\ns_add_u32 s20, s20, %d' % OFF_MB, 16, 'sc1')
        init('s_lshl_b32 s20, s6, 7\ns_add_u32 s20, s20, %d' % OFF_ST, 16, 'sc1')
        init('s_min_u32 s22, s2, 239\ns_and_b32 s20, s22, 3\ns_mul_i32 s20, s20, 15360\ns_lshr_b32 s21, s22, 2\ns_lshl_b32 s21, s21, 8\ns_add_u32 s20, s20, s21\ns_add_u32 s20, s20, %d\ns_cmp_ge_u32 s2, 240\ns_cselect_b32 s20, %d, s20' % (OFF_MOD, OOB), 256, 'sc1')
        init(slot(OFF_X, 7680, 30, 256), 256, 'sc1')
        init(slot(OFF_F, 7680, 30, 256), 256, 'sc1')
        init_intra('')
        a('''
        s_barrier
        s_getreg_b32 s20, hwreg(HW_REG_XCC_ID)
        s_and_b32 s20, s20, 7
        s_lshl_b32 s22, s20, 3
        s_lshl_b64 s[32:33], 1, s22
        s_lshl_b32 s21, s4, 5
        s_mov_b64 s[34:35], s[32:33]
        s_waitcnt vmcnt(0)
        s_atomic_add_x2 s[34:35], s[72:73], s21 glc
        ''')
        self.lds_set(L_INIT, '1', 9, 12)
        a('''
        s_waitcnt lgkmcnt(0)
        s_add_u32 s34, s34, s32
        s_addc_u32 s35, s35, s33
        v_mov_b32 v10, s34
        v_mov_b32 v11, s35
        v_sad_u8 v12, v10, 0, 0
        v_sad_u8 v12, v11, 0, v12
        s_nop 0
        v_readfirstlane_b32 s36, v12
        ''')
        self.stamp(16)
        a('''
        s_nop 3
        s_cmp_lg_u32 s36, 32
        s_cbranch_scc1 L_A2_mb
        s_or_b32 s34, s34, s35
        s_and_b32 s34, s34, 0xdfdfdfdf
        s_cmp_lg_u32 s34, 0
        s_cselect_b32 s34, 0x10001, 1
        s_mov_b32 s35, s34
        s_atomic_add s35, s[72:73], 0x8 glc
        s_waitcnt lgkmcnt(0)
        s_add_u32 s35, s35, s34
        s_and_b32 s36, s35, 0xffff
        s_cmp_lg_u32 s36, 8
        s_cbranch_scc1 L_A2_mb
        s_lshr_b32 s35, s35, 16
        s_cmp_lg_u32 s35, 0
        s_cselect_b32 s35, 2, 1
        ''')
        fanout(0)
        a.label('L_A2_mb')
        self.mbpoll_(0)
        a('s_cmp_eq_u32 s33, 1\ns_cselect_b32 s45, 1, 2')
        if self.opt.get('force_slow'): a('s_mov_b32 s45, 2')
        a('s_cmp_eq_u32 s45, 1\ns_cbranch_scc1 L_A2_fast')
        init_intra('sc1')
        a('''
        s_mov_b32 s34, 1
        s_lshl_b32 s21, s4, 5
        s_add_u32 s21, s21, 16
        s_waitcnt vmcnt(0)
        s_atomic_add s34, s[72:73], s21 glc
        s_waitcnt lgkmcnt(0)
        s_cmp_lg_u32 s34, 31
        s_cbranch_scc1 L_A2_mb2
        s_mov_b32 s34, 1
        s_atomic_add s34, s[72:73], 0x18 glc
        s_waitcnt lgkmcnt(0)
        s_cmp_lg_u32 s34, 7
        s_cbranch_scc1 L_A2_mb2
        s_mov_b32 s35, 1
        ''')
        fanout(1)
        a.label('L_A2_mb2')
        self.mbpoll_(1, sleep=2)
        a.label('L_A2_fast')
        self.lds_set(L_MODE, 's45', 9, 10)
        self.stamp(13)
        self.red_addrs()
        a('''
        s_cmp_ge_u32 s5, 20
        s_cbranch_scc1 L_TAIL
        s_lshl_b32 s20, s5, 7
        s_add_u32 s20, s20, %d
        s_add_u32 s21, s20, 15360
        s_add_u32 s22, s20, 30720
        s_add_u32 s23, s20, 46080
        v_lshlrev_b32 v25, 2, v24
        v_add_u32 v26, 5120, v25
        v_add_u32 v27, 10240, v25
        s_lshl_b32 s32, s5, 6
        v_lshlrev_b32 v28, 1, v24
        buffer_load_ushort v30, v28, s[12:15], s32 offen
        ''' % OFF_MOD)
        loads = []
        for rs in range(4):
            loads.append('buffer_load_dword v%d, v26, s[16:19], s%d offen' % (4 + rs, 20 + rs))
            loads.append('buffer_load_dword v%d, v26, s[16:19], s%d offen offset:2560' % (8 + rs, 20 + rs))
            loads.append('buffer_load_dword v%d, v27, s[16:19], s%d offen' % (12 + rs, 20 + rs))
            loads.append('buffer_load_dword v%d, v27, s[16:19], s%d offen offset:2560' % (16 + rs, 20 + rs))
        self.poll(loads, list(range(4, 20)), 20, sleep=8)
        for n, dst in enumerate((31, 32, 33, 34)):
            b = 4 + 4 * n
            a('v_add_f32 v%d, v%d, v%d\nv_add_f32 v%d, v%d, v%d\nv_add_f32 v%d, v%d, v%d' % (b, b, b + 1, b + 2, b + 2, b + 3, dst, b, b + 2))
            self.rnd(dst, dst)
        a('''
        v_add_f32 v33, 1.0, v33
        v_cvt_pk_bf16_f32 v33, v33, v32
        v_min_u32 v33, -2, v33
        v_lshlrev_b32 v30, 16, v30
        s_mul_i32 s21, s4, 2560
        s_lshl_b32 s22, s5, 7
        s_add_u32 s21, s21, s22
        s_add_u32 s21, s21, %d
        ''' % OFF_C)
        self.store_intra(['buffer_store_dword v33, v38, s[16:19], s21 offen'])
        a('s_branch L_TAIL')
        self.stl_a2 = list(self.stlist)

    def red_addrs(self):
        self.a('''
        v_and_b32 v24, 7, v0
        v_lshlrev_b32 v24, 2, v24
        v_bfe_u32 v25, v0, 4, 1
        v_lshl_add_u32 v24, v25, 1, v24
        v_lshrrev_b32 v25, 5, v0
        v_add_u32 v24, v24, v25                  ; col in block = 4c + PI[q]
        v_and_b32 v27, 8, v0
        v_cmp_eq_u32 vcc, 0, v27
        v_mov_b32 v27, %s
        v_lshlrev_b32 v38, 2, v24
        v_cndmask_b32 v38, v27, v38, vcc         ; line store offset (dword)
        v_lshlrev_b32 v39, 1, v24
        v_cndmask_b32 v39, v27, v39, vcc         ; out store offset (2B)
        v_lshrrev_b32 v37, 3, v0
        v_mul_u32_u24 v37, 7680, v37
        v_and_b32 v25, 7, v0
        v_lshl_add_u32 v37, v25, 4, v37          ; gather24 lane offset
        ''' % OOB)

    def roles(self):
        self.a('''
        s_mul_i32 s77, s5, 26
        s_lshr_b32 s77, s77, 8
        s_mul_i32 s76, s77, 10
        s_sub_u32 s76, s5, s76              ; cbo
        s_mul_i32 s80, s5, 52
        s_lshr_b32 s80, s80, 8              ; q5 = i/5
        s_mul_i32 s78, s80, 5
        s_sub_u32 s78, s5, s78              ; rs
        s_and_b32 s79, s80, 1               ; m
        s_lshr_b32 s80, s80, 1              ; cb
        ''')

    def a3_wave(self):
        a = self.a; vm = VM(a)
        a.label('L_A3')
        self.stamp_begin()
        a('''
        s_setprio 3
        s_barrier
        s_cmp_ge_u32 s5, 30
        s_cbranch_scc1 L_end
        ''')
        self.roles()
        a('''
        s_cmp_eq_u32 s79, 0
        s_cselect_b32 s8, s60, s62
        s_cselect_b32 s9, s61, s63
        s_mov_b32 s10, %d
        s_mov_b32 s11, 0x20000
        ''' % (640 * 3072))
        self.srd(12, 56, 6144 * 1280)
        self.srd(24, 64, 1536 * 1280)
        a('''
        v_lshrrev_b32 v3, 3, v0
        v_and_b32 v4, 7, v0
        v_mul_u32_u24 v1, 3072, v3
        v_lshl_add_u32 v1, v4, 4, v1
        v_mul_u32_u24 v2, 1280, v3
        v_lshl_add_u32 v2, v4, 4, v2
        ''')
        self.lds_spin(L_MODE, None, 4, 5, sleep=8)
        a('''
        s_mov_b32 s45, s93
        s_mul_i32 s33, s4, %d
        s_mul_i32 s36, s77, %d
        s_add_u32 s33, s33, s36
        s_lshl_b32 s36, s76, 7
        s_add_u32 s33, s33, s36             ; wo tile base
        s_mul_i32 s34, s78, %d
        s_mul_i32 s35, s4, 384
        s_add_u32 s34, s34, s35
        s_lshl_b32 s35, s80, 7
        s_add_u32 s34, s34, s35             ; gate/up tile base
        s_mul_i32 s35, s4, %d
        s_mul_i32 s36, s77, %d
        s_add_u32 s35, s35, s36
        s_lshl_b32 s36, s76, 7
        s_add_u32 s35, s35, s36             ; down tile base
        ''' % (768 * 1280, 256 * 1280, 128 * 3072, 192 * 1280, 64 * 1280))
        def dma(n, lbase, sbase, vo, srd, rstride):
            for t in range(n):
                vm.throttle(self.adepth)
                a('s_mov_b32 m0, %d\ns_add_u32 s36, s%d, %d\nbuffer_load_dwordx4 v%d, s[%d:%d], s36 offen nt lds' % (lbase + 1024 * t, sbase, t * 8 * rstride, vo, srd, srd + 3))
                vm.issue()
        dma(32, L_WO, 33, 2, 12, 1280)
        dma(16, L_WG, 34, 1, 8, 3072)
        dma(8, L_WD, 35, 2, 24, 1280)
        vm.all()
        self.lds_set(L_STAGE, '1', 4, 5)
        self.stamp(21 - 2)
        self.stl_a3 = list(self.stlist)

    def nat_gemv(self, n, W, actaddr, lbase_imm, acc, areg):
        a = self.a
        for m in range(n):
            a('ds_read_b128 v[%d:%d], v%d offset:%d' % (areg + 4 * m, areg + 4 * m + 3, actaddr, lbase_imm + 64 * m))
        for m in range(n):
            a('s_waitcnt lgkmcnt(%d)' % (n - 1 - m))
            c = '0' if m == 0 else 'v[%d:%d]' % (acc, acc + 3)
            a('v_mfma_f32_16x16x32_bf16 v[%d:%d], v[%d:%d], v[%d:%d], %s' % (acc, acc + 3, areg + 4 * m, areg + 4 * m + 3, W + 4 * m, W + 4 * m + 3, c))
        a('s_nop 7\nv_min_u32 v%d, -2, v%d' % (acc, acc))

    def tstamp(self, idx):
        if not self.stamps: return
        r = self.STPOOL[5 + len(self.tl)]
        self.tl.append((idx, r))
        self.a('s_memrealtime s[90:91]\ns_waitcnt lgkmcnt(0)\ns_mov_b32 s%d, s90' % r)

    def tail(self):
        a = self.a
        self.tl = []
        a.label('L_TAIL')
        a('''
        s_setprio 3
        s_cmp_ge_u32 s5, 30
        s_cbranch_scc1 L_T_end
        s_sub_u32 s81, s3, 8                ; a
        ''')
        self.roles()
        self.srd(28, 70, 1280)
        self.red_addrs()
        self.lds_spin(L_STAGE, None, 4, 5, sleep=8)
        WO, WG, WD = 40, 72, 88
        a('''
        v_lshrrev_b32 v4, 4, v0
        v_bfe_u32 v5, v0, 2, 2
        v_lshl_add_u32 v4, v4, 3, v5
        v_lshlrev_b32 v4, 7, v4
        v_and_b32 v5, 3, v0
        v_lshl_add_u32 v4, v5, 3, v4
        s_lshl_b32 s20, s81, 5
        v_add_u32 v4, s20, v4
        v_add_u32 v5, %d, v4
        ''' % L_WG)
        a('v_add_u32 v4, %d, v4' % L_WO)
        for m in range(8):
            a('ds_read_b64_tr_b16 v[%d:%d], v4 offset:%d' % (WO + 4 * m, WO + 4 * m + 1, 4096 * m))
            a('ds_read_b64_tr_b16 v[%d:%d], v4 offset:%d' % (WO + 4 * m + 2, WO + 4 * m + 3, 4096 * m + 512))
            if m % 4 == 3: a('s_waitcnt lgkmcnt(0)')
        for m in range(4):
            a('ds_read_b64_tr_b16 v[%d:%d], v5 offset:%d' % (WG + 4 * m, WG + 4 * m + 1, 4096 * m))
            a('ds_read_b64_tr_b16 v[%d:%d], v5 offset:%d' % (WG + 4 * m + 2, WG + 4 * m + 3, 4096 * m + 512))
        a('s_waitcnt lgkmcnt(0)')
        for m in range(2):
            a('ds_read_b64_tr_b16 v[%d:%d], v5 offset:%d' % (WD + 4 * m, WD + 4 * m + 1, 16384 + 4096 * m))
            a('ds_read_b64_tr_b16 v[%d:%d], v5 offset:%d' % (WD + 4 * m + 2, WD + 4 * m + 3, 16384 + 4096 * m + 512))
        a('''
        s_lshl_b32 s20, s77, 8
        s_lshl_b32 s21, s81, 6
        s_add_u32 s20, s20, s21
        v_add_u32 v4, s20, v0                    ; R' = 256 rb + 64 a + l
        v_mul_u32_u24 v5, 1366, v4
        v_lshrrev_b32 v5, 18, v5                 ; head in group
        v_mul_u32_u24 v5, 5376, v5
        v_lshl_add_u32 v96, v4, 2, v5            ; H1 gather lane offset
        s_mul_i32 s82, s4, 24576
        s_add_u32 s82, s82, %d                   ; B_o group base
        s_add_u32 s83, s82, 4608
        s_lshl_b32 s20, s81, 7
        v_lshl_add_u32 v97, v0, 1, s20           ; L_OB write addr (2B): (64a + l)*2
        v_lshrrev_b32 v98, 4, v0
        v_lshlrev_b32 v98, 4, v98                ; act read addr: 16 g
        s_lshl_b32 s20, s81, 8
        v_add_u32 v99, s20, v98                  ; + a*256 (L_H2)
        s_lshl_b32 s21, s81, 7
        v_add_u32 v100, s21, v98                 ; + a*128 (L_GU)
        v_lshl_add_u32 v101, v0, 2, s20          ; L_H2 write addr
        v_lshl_add_u32 v102, v0, 1, s21          ; L_GU write addr
        v_cmp_gt_u32 vcc, 16, v0
        v_mov_b32 v5, %s
        v_lshlrev_b32 v103, 2, v0                ; lane*4
        v_cndmask_b32 v104, v5, v103, vcc        ; result store offset (lanes<16)
        v_lshlrev_b32 v105, 4, v0                ; lane*16
        v_lshlrev_b32 v106, 3, v0                ; lane*8
        s_mul_i32 s84, s4, 3
        s_add_u32 s84, s84, s77
        s_mul_i32 s84, s84, 2560
        s_lshl_b32 s20, s76, 8
        s_add_u32 s84, s84, s20
        s_lshl_b32 s20, s81, 6
        s_add_u32 s84, s84, s20                  ; offset within B_x / B_f
        s_add_u32 s85, s84, %d                   ; B_f publish
        s_add_u32 s84, s84, %d                   ; B_x publish
        s_mul_i32 s86, s4, 2560
        s_lshl_b32 s21, s78, 9
        s_add_u32 s87, s86, s21
        s_add_u32 s88, s87, %d                   ; B_c own rows
        s_add_u32 s87, s87, %d                   ; B_h own rows
        s_add_u32 s86, s86, %d                   ; B_h group base
        s_mul_i32 s89, s4, 7680
        s_add_u32 s89, s89, %d                   ; B_g group base
        s_mul_i32 s24, s79, 5
        s_add_u32 s24, s24, s78
        s_mul_i32 s24, s24, 768
        s_lshl_b32 s21, s80, 8
        s_add_u32 s24, s24, s21
        s_add_u32 s24, s24, s20
        s_add_u32 s24, s24, s89                  ; B_g publish
        s_lshl_b32 s25, s77, 8
        s_add_u32 s25, s25, s89                  ; B_g gather (g)
        s_add_u32 s26, s25, 3840                 ; (u)
        ''' % (OFF_O, OOB, OFF_F, OFF_X, OFF_C, OFF_H, OFF_H, OFF_G))
        self.poll(['buffer_load_dwordx2 v[108:109], v106, s[16:19], s88 offen'], [108, 109], 20, sleep=8)
        a('''
        v_lshlrev_b32 v110, 16, v108
        v_and_b32 v111, 0xffff0000, v108
        v_lshlrev_b32 v112, 16, v109
        v_and_b32 v113, 0xffff0000, v109
        ''')
        self.lds_spin(L_CNTPV, 8, 4, 5, sleep=1)
        loads = []
        for jj in range(8):
            if jj < 6: loads.append('buffer_load_dword v%d, v96, s[16:19], s82 offen offset:%d' % (4 + jj, jj * 768))
            else: loads.append('buffer_load_dword v%d, v96, s[16:19], s83 offen offset:%d' % (4 + jj, (jj - 6) * 768))
        self.poll(loads, list(range(4, 12)), 20)
        self.tstamp(5)
        a('''
        v_pk_add_f32 v[4:5], v[4:5], v[6:7]
        v_pk_add_f32 v[8:9], v[8:9], v[10:11]
        v_pk_add_f32 v[4:5], v[4:5], v[8:9]
        v_add_f32 v4, v4, v5
        v_cvt_pk_bf16_f32 v4, v4, v4
        ds_write_b16 v97, v4 offset:%d
        v_mov_b32 v5, %d
        v_mov_b32 v6, 1
        s_waitcnt lgkmcnt(0)
        s_mov_b64 exec, 1
        ds_add_u32 v5, v6
        s_mov_b64 exec, -1
        ''' % (L_OB, L_CNTO))
        self.lds_spin(L_CNTO, 4, 6, 5, sleep=0)
        self.nat_gemv(8, WO, 98, L_OB, 4, 116)
        a('buffer_store_dword v4, v104, s[16:19], s84 offen sc1')
        self.tstamp(6)
        a('''
        s_cmp_lg_u32 s81, 2
        s_cbranch_scc1 L_T_h2c
        s_cmp_ge_u32 s5, 20
        s_cbranch_scc1 L_T_h2c
        ''')
        self.gather24(OFF_X)
        self.rnd(4, 4)
        a('v_mul_f32 v4, v31, v4')
        self.rnd(4, 4)
        a('v_add_f32 v4, v30, v4')
        self.rnd(32, 4)
        a('s_lshl_b32 s21, s5, 7\ns_add_u32 s21, s21, s86')
        self.store_intra(['buffer_store_dword v32, v38, s[16:19], s21 offen'])
        self.tstamp(8)
        a.label('L_T_h2c')
        self.poll(['buffer_load_dwordx4 v[4:7], v105, s[16:19], s86 offen',
                   'buffer_load_dwordx4 v[8:11], v105, s[16:19], s86 offen offset:1024',
                   'buffer_load_dwordx2 v[12:13], v106, s[16:19], s86 offen offset:2048',
                   'buffer_load_dwordx2 v[14:15], v106, s[16:19], s87 offen'], list(range(4, 16)), 20)
        self.tstamp(9)
        a('v_readfirstlane_b32 s20, v4\ns_nop 1')
        for k in range(10): a('v_subrev_f32 v%d, s20, v%d' % (4 + k, 4 + k))
        a('''
        v_pk_mul_f32 v[16:17], v[4:5], v[4:5]
        v_pk_add_f32 v[18:19], v[4:5], v[6:7]
        v_pk_fma_f32 v[16:17], v[6:7], v[6:7], v[16:17]
        v_pk_add_f32 v[18:19], v[18:19], v[8:9]
        v_pk_fma_f32 v[16:17], v[8:9], v[8:9], v[16:17]
        v_pk_add_f32 v[18:19], v[18:19], v[10:11]
        v_pk_fma_f32 v[16:17], v[10:11], v[10:11], v[16:17]
        v_pk_add_f32 v[18:19], v[18:19], v[12:13]
        v_pk_fma_f32 v[16:17], v[12:13], v[12:13], v[16:17]
        v_add_f32 v18, v18, v19
        v_add_f32 v16, v16, v17
        s_nop 1
        v_permlane32_swap_b32 v18, v16
        v_add_f32 v18, v18, v16
        ''')
        for r in (8, 4, 2, 1):
            a('s_nop 1\nv_add_f32_dpp v18, v18, v18 row_ror:%d row_mask:0xf bank_mask:0xf' % r)
        a('''
        v_mov_b32 v16, v18
        s_nop 1
        v_permlane16_swap_b32 v18, v16
        v_add_f32 v18, v18, v16
        v_mul_f32 v18, %s, v18
        s_nop 0
        v_readlane_b32 s21, v18, 0
        v_readlane_b32 s22, v18, 32
        s_nop 1
        v_mov_b32 v16, s21
        v_mov_b32 v17, s22
        v_fma_f32 v17, -v16, v16, v17
        v_max_f32 v17, 0, v17
        v_add_f32 v16, s20, v16
        ''' % f32(1.0 / 640))
        self.rnd(17, 17)
        a('v_add_f32 v17, %s, v17' % f32(1e-5))
        self.rnd(17, 17)
        a('v_sqrt_f32 v17, v17')
        self.rnd(16, 16)
        self.rnd(17, 17)
        a('v_rcp_f32 v18, v17')
        a('v_sub_f32 v14, v14, v16\nv_sub_f32 v15, v15, v16')
        a('v_cvt_pk_bf16_f32 v19, v14, v15\nv_lshlrev_b32 v14, 16, v19\nv_and_b32 v15, 0xffff0000, v19')
        a('''
        v_mul_f32 v4, v14, v18
        v_mul_f32 v5, v15, v18
        v_fma_f32 v6, -v4, v17, v14
        v_fma_f32 v7, -v5, v17, v15
        v_fma_f32 v14, v6, v18, v4
        v_fma_f32 v15, v7, v18, v5
        v_cvt_pk_bf16_f32 v19, v14, v15
        v_lshlrev_b32 v14, 16, v19
        v_and_b32 v15, 0xffff0000, v19
        v_mul_f32 v14, v14, v110
        v_mul_f32 v15, v15, v112
        v_cvt_pk_bf16_f32 v19, v14, v15
        v_lshlrev_b32 v14, 16, v19
        v_and_b32 v15, 0xffff0000, v19
        v_add_f32 v14, v14, v111
        v_add_f32 v15, v15, v113
        v_cvt_pk_bf16_f32 v19, v14, v15
        ds_write_b32 v101, v19 offset:%d
        s_waitcnt lgkmcnt(0)
        ''' % L_H2)
        self.nat_gemv(4, WG, 99, L_H2, 4, 116)
        self.store_intra(['buffer_store_dword v4, v104, s[16:19], s24 offen'])
        self.tstamp(10)
        loads = []
        for rs in range(5):
            loads.append('buffer_load_dword v%d, v103, s[16:19], s25 offen offset:%d' % (8 + 2 * rs, rs * 768))
            loads.append('buffer_load_dword v%d, v103, s[16:19], s26 offen offset:%d' % (9 + 2 * rs, rs * 768))
        self.poll(loads, list(range(8, 18)), 20)
        a('''
        v_pk_add_f32 v[8:9], v[8:9], v[10:11]
        v_pk_add_f32 v[12:13], v[12:13], v[14:15]
        v_pk_add_f32 v[8:9], v[8:9], v[16:17]
        v_pk_add_f32 v[8:9], v[8:9], v[12:13]
        v_cvt_pk_bf16_f32 v10, v8, v9
        v_lshlrev_b32 v8, 16, v10
        v_and_b32 v9, 0xffff0000, v10
        v_mul_f32 v8, v8, v9
        v_cvt_pk_bf16_f32 v8, v8, v8
        ds_write_b16 v102, v8 offset:%d
        s_waitcnt lgkmcnt(0)
        ''' % L_GU)
        self.nat_gemv(2, WD, 100, L_GU, 4, 116)
        a('buffer_store_dword v4, v104, s[16:19], s85 offen sc1')
        self.tstamp(11)
        a('''
        s_cmp_lg_u32 s81, 2
        s_cbranch_scc1 L_T_end
        s_cmp_ge_u32 s5, 20
        s_cbranch_scc1 L_T_end
        s_and_b32 s21, s5, 7
        s_cmp_lg_u32 s21, s4
        s_cbranch_scc1 L_T_end
        ''')
        self.gather24(OFF_F)
        self.rnd(4, 4)
        a('v_mul_f32 v4, v34, v4')
        self.rnd(4, 4)
        a('''
        v_add_f32 v4, v32, v4
        v_cvt_pk_bf16_f32 v4, v4, v4
        s_lshl_b32 s21, s5, 6
        buffer_store_short v4, v39, s[28:31], s21 offen
        ''')
        self.tstamp(12)
        a.label('L_T_end')
        if self.stamps:
            for w, lst in ((8, self.stl_a0), (9, self.stl_a1), (10, self.stl_a2 + self.tl), (11, self.stl_a3)):
                l = a.newlabel('SFL')
                a('s_cmp_lg_u32 s3, %d\ns_cbranch_scc1 %s' % (w, l))
                self.stlist = lst
                self.stamp_flush()
                a('s_endpgm')
                a.label(l)
        a.label('L_end')
        a('s_endpgm')

    def build(self):
        self.prologue()
        self.s_wave()
        self.a0_wave()
        self.a1_wave()
        self.a2_wave()
        self.a3_wave()
        self.tail()
        s = wrap(self.a.text(), 256, 768, LDS_BYTES, 168)
        s = s.replace('  .amdhsa_system_sgpr_workgroup_id_x 1\n', '  .amdhsa_system_sgpr_workgroup_id_x 1\n  .amdhsa_float_denorm_mode_32 3\n')
        return s

if __name__ == '__main__':
    import argparse
    ap = argparse.ArgumentParser()
    ap.add_argument('-o', default='k.s')
    ap.add_argument('--stamps', action='store_true')
    ap.add_argument('--opt', default='')
    x = ap.parse_args()
    kw = {}
    for kv in filter(None, x.opt.split(',')):
        k, v = kv.split('=')
        try: v = int(v)
        except ValueError: pass
        kw[k] = v
    kw['v2'] = 1
    open(x.o, 'w').write(Gen2(stamps=x.stamps, **kw).build())
```

```python
import sys, struct
from asmgen import *

OFF_MOD = 0x0
OFF_Q   = 0x10000
OFF_ST  = 0x40000
OFF_O   = 0x50000
OFF_A   = 0x200000
OFF_X   = 0x300000
OFF_H   = 0x310000
OFF_G   = 0x340000
OFF_F   = 0x360000
OFF_MB  = 0x410000
OFF_STAMP = 128 << 20
WS_BYTES = 268435456
OOB = 0x7ffffff0
L_FLAGQ, L_CNTST, L_FLAGP, L_MODE, L_INIT, L_CNTPV, L_FLAGA, L_INIT2 = 0, 4, 8, 12, 16, 20, 24, 28
L_Q = 256
L_STAT = 1024
L_GSTAT = 1152
L_P = 2048
L_S = 4096
L_H = 5120
L_H2 = 5632
L_GU = 6144
LDS_BYTES = 8192

def f32(x):
    return '0x%08x' % struct.unpack('<I', struct.pack('<f', x))[0]

LOG2E = 1.4426950408889634
L2E_HI = struct.unpack('<f', struct.pack('<f', LOG2E))[0]
L2E_LO = LOG2E - L2E_HI
LN2 = 0.6931471805599453

class VM:
    def __init__(self, a):
        self.a = a; self.n = 0; self.done = 0
    def issue(self):
        self.n += 1; return self.n - 1
    def wait(self, idx):
        if idx < self.done: return
        cnt = self.n - 1 - idx
        assert cnt <= 63
        self.a('s_waitcnt vmcnt(%d)' % cnt)
        self.done = idx + 1
    def throttle(self, depth):
        if self.n - self.done >= depth:
            self.wait(self.n - depth)
    def all(self):
        if self.done < self.n:
            self.a('s_waitcnt vmcnt(0)'); self.done = self.n

class Gen:
    def __init__(self, stamps=False, depth=4, qk_after=6, adepth=6, gupol='', **kw):
        self.a = Asm(); self.stamps = stamps; self.depth = depth; self.qk_after = qk_after
        self.adepth = adepth; self.gupol = gupol
        self.opt = kw

    def srd(self, d, p, size):
        self.a('s_mov_b32 s%d, s%d\ns_mov_b32 s%d, s%d\ns_mov_b32 s%d, %d\ns_mov_b32 s%d, 0x20000' % (d, p, d + 1, p + 1, d + 2, size, d + 3))

    STPOOL = [37, 38, 39, 40, 41, 42, 43, 44, 47, 98, 99, 100, 101]
    def stamp_begin(self):
        self.stlist = []
        if self.stamps:
            for r in self.STPOOL: self.a('s_mov_b32 s%d, 0' % r)
    def stamp(self, idx, vm=None, t0=None, t1=None):
        if not self.stamps: return
        r = self.STPOOL[len(self.stlist)]
        self.stlist.append((idx, r))
        self.a('s_memrealtime s[90:91]\ns_waitcnt lgkmcnt(0)\ns_mov_b32 s%d, s90' % r)
    def stamp_flush(self):
        if not self.stamps: return
        a = self.a
        if self.opt.get('dbgst'):
            M = {0: 10, 2: 13, 3: 3, 13: 5, 12: 15, 17: 7, 19: 12}
            for idx, r in self.stlist:
                if idx in M:
                    a('s_atomic_umax s%d, s[72:73], 0x%x' % (r, 4 * M[idx]))
                if idx == 0:
                    a('s_not_b32 s92, s%d\ns_atomic_umax s92, s[72:73], 0x%x' % (r, 44))
            return
        a('s_lshl_b32 s92, s2, 8\ns_add_u32 s92, s92, %d\nv_mov_b32 v1, 0\nv_mov_b32 v3, 0\ns_mov_b64 exec, 1' % OFF_STAMP)
        for idx, r in self.stlist:
            a('v_mov_b32 v2, s%d\nbuffer_store_dwordx2 v[2:3], v1, s[16:19], s92 offen offset:%d\ns_nop 1' % (r, idx * 8))

    def rnd(self, dst, src, tmp=None):
        t = dst if tmp is None else tmp
        self.a('v_cvt_pk_bf16_f32 v%d, v%d, v%d\nv_and_b32 v%d, 0xffff0000, v%d' % (t, src, src, dst, t))

    def wave_reduce(self, v, t, op):
        a = self.a
        for r in (8, 4, 2, 1):
            a('s_nop 1\nv_%s_f32_dpp v%d, v%d, v%d row_ror:%d row_mask:0xf bank_mask:0xf' % (op, v, v, v, r))
        for sw in ('16', '32'):
            a('v_mov_b32 v%d, v%d\ns_nop 1\nv_permlane%s_swap_b32 v%d, v%d\nv_%s_f32 v%d, v%d, v%d' % (t, v, sw, v, t, op, v, v, t))

    def red8(self, r):
        a = self.a
        a('''
        s_nop 1
        v_permlane32_swap_b32 v%d, v%d
        v_permlane32_swap_b32 v%d, v%d
        v_add_f32 v%d, v%d, v%d
        v_add_f32 v%d, v%d, v%d
        s_nop 1
        v_permlane16_swap_b32 v%d, v%d
        v_add_f32 v%d, v%d, v%d
        s_nop 1
        v_add_f32_dpp v%d, v%d, v%d row_ror:8 row_mask:0xf bank_mask:0xf
        ''' % (r[0], r[1], r[2], r[3], r[0], r[0], r[1], r[2], r[2], r[3], r[0], r[2], r[0], r[0], r[2], r[0], r[0], r[0]))

    def exp(self, dst, x, t1, t2):
        self.a('''
        v_mul_f32 v%d, %s, v%d
        v_fma_f32 v%d, v%d, s94, -v%d
        v_fmac_f32 v%d, %s, v%d
        v_exp_f32 v%d, v%d
        v_mul_f32 v%d, %s, v%d
        v_fma_f32 v%d, v%d, v%d, v%d
        ''' % (t1, f32(L2E_HI), x, t2, x, t1, t2, f32(L2E_LO), x, t1, t1, t2, f32(LN2), t2, dst, t1, t2, t1))

    def div(self, dst, n, d, t1, t2):
        self.a('''
        v_rcp_f32 v%d, v%d
        s_nop 0
        v_mul_f32 v%d, v%d, v%d
        v_fma_f32 v%d, -v%d, v%d, v%d
        v_fma_f32 v%d, v%d, v%d, v%d
        ''' % (t1, d, t2, n, t1, dst, t2, d, n, dst, dst, t1, t2))

    def lds_spin(self, addr, val, vt, va, sleep=1, ge=False, out=None, init='0'):
        a = self.a
        l = a.newlabel('SP')
        a('v_mov_b32 v%d, %d\ns_mov_b32 s95, %s' % (va, addr, init))
        a.label(l)
        a('ds_read_b32 v%d, v%d\ns_waitcnt lgkmcnt(0)\nv_readfirstlane_b32 s93, v%d' % (vt, va, vt))
        l2 = a.newlabel('SPD')
        if val is None:
            a('s_cmp_lg_u32 s93, 0')
        else:
            a('s_cmp_eq_u32 s93, %d' % val)
        a('s_cbranch_scc1 %s' % l2)
        if sleep: a('s_sleep %d' % sleep)
        a('s_add_u32 s95, s95, 1\ns_cmp_lt_u32 s95, 0x40000\ns_cbranch_scc1 %s' % l)
        a.label(l2)

    def lds_set(self, addr, val, vt, va):
        self.a('v_mov_b32 v%d, %d\nv_mov_b32 v%d, %s\nds_write_b32 v%d, v%d' % (va, addr, vt, val, va, vt))

    def store_intra(self, instrs):
        a = self.a
        lf = a.newlabel('SF'); lj = a.newlabel('SJ')
        a('s_cmp_eq_u32 s45, 1\ns_cbranch_scc1 %s' % lf)
        for i in instrs: a(i + ' sc1')
        a('s_branch %s' % lj)
        a.label(lf)
        for i in instrs: a(i)
        a.label(lj)

    def poll(self, loads, regs, vt, sleep=0):
        a = self.a
        l = a.newlabel('PL')
        a('s_mov_b32 s95, 0')
        a.label(l)
        for i in loads: a(i + ' sc1')
        a('s_waitcnt vmcnt(0)')
        rs = list(regs)
        if len(rs) == 1:
            a('v_cmp_eq_u32 vcc, -1, v%d' % rs[0])
        else:
            if len(rs) == 2:
                a('v_max_u32 v%d, v%d, v%d' % (vt, rs[0], rs[1])); rest = []
            else:
                a('v_max3_u32 v%d, v%d, v%d, v%d' % (vt, rs[0], rs[1], rs[2])); rest = rs[3:]
            while rest:
                if len(rest) == 1:
                    a('v_max_u32 v%d, v%d, v%d' % (vt, vt, rest[0])); rest = []
                else:
                    a('v_max3_u32 v%d, v%d, v%d, v%d' % (vt, vt, rest[0], rest[1])); rest = rest[2:]
            a('v_cmp_eq_u32 vcc, -1, v%d' % vt)
        l2 = a.newlabel('PD')
        a('s_cbranch_vccz %s' % l2)
        if sleep: a('s_sleep %d' % sleep)
        a('s_add_u32 s95, s95, 1\ns_cmp_lt_u32 s95, 0x10000\ns_cbranch_scc1 %s' % l)
        a.label(l2)

    def sel_masks(self, m, t1, t2):
        a = self.a
        a('''
        v_and_b32 v%d, 1, v0
        v_lshlrev_b32 v%d, 4, v%d
        v_mov_b32 v%d, 0xffff
        v_lshlrev_b32 v%d, v%d, v%d
        v_bfe_u32 v%d, v0, 1, 2
        ''' % (t1, t1, t1, t2, t1, t1, t2, t2))
        for k in range(4):
            a('v_cmp_eq_u32 vcc, %d, v%d\ns_nop 1\nv_cndmask_b32 v%d, 0, v%d, vcc' % (k, t2, m + k, t1))

    def pv_addr(self, dst, t1, base):
        self.a('''
        v_lshrrev_b32 v%d, 4, v0
        v_bfe_u32 v%d, v0, 3, 1
        v_lshl_add_u32 v%d, v%d, 2, v%d
        v_lshlrev_b32 v%d, 2, v%d
        v_add_u32 v%d, %s, v%d
        ''' % (dst, t1, dst, t1, dst, dst, dst, dst, base, dst))

    def vshape_offsets(self, v1, v3, t1, t2, rowstride):
        self.a('''
        v_lshrrev_b32 v%d, 4, v0
        v_and_b32 v%d, 15, v0
        v_mul_u32_u24 v%d, %d, v%d
        v_lshl_add_u32 v%d, v%d, 4, v%d
        v_bfe_u32 v%d, v0, 3, 1
        v_lshl_add_u32 v%d, v%d, 2, v%d
        v_mul_u32_u24 v%d, %d, v%d
        v_and_b32 v%d, 7, v0
        v_lshl_add_u32 v%d, v%d, 4, v%d
        v_add_u32 v%d, 256, v%d
        ''' % (t1, t2, v1, rowstride, t1, v1, t2, v1, t2, v3, t2, t1, v3, rowstride, v3, t2, v3, t2, v3, v3, v3))

    def vshape_combine(self, d1, d2, d3, voff, t1, t2):
        a = self.a
        a('''
        v_and_b32 v%d, 15, v0
        v_lshrrev_b32 v%d, 4, v0
        v_lshlrev_b32 v%d, 5, v%d
        v_lshl_add_u32 v%d, v%d, 4, v%d
        v_add_u32 v%d, %d, v%d
        v_cmp_gt_u32 vcc, 32, v0
        v_mov_b32 v%d, %s
        s_nop 0
        v_cndmask_b32 v%d, v%d, v%d, vcc
        v_and_b32 v%d, 40, v0
        v_cmp_eq_u32 vcc, 32, v%d
        s_nop 1
        v_cndmask_b32 v%d, v%d, v%d, vcc
        ''' % (t1, t2, voff, t1, voff, t2, voff,
               t1, 512 - 256 - 32, voff,
               t2, OOB, voff, t1, voff,
               t1, t1, voff, voff, t2))
        a('s_nop 4')
        for r in range(4):
            a('v_permlane32_swap_b32 v%d, v%d' % (d2 + r, d3 + r))
        for r in range(4):
            a('v_add_f32 v%d, v%d, v%d' % (d1 + r, d1 + r, d3 + r))
        for r in range(4):
            a('v_add_f32_dpp v%d, v%d, v%d row_ror:8 row_mask:0xc bank_mask:0xf' % (d1 + r, d2 + r, d3 + r))
        for r in range(4):
            a('v_min_u32 v%d, -2, v%d' % (d1 + r, d1 + r))

    def t3_gemv(self, n, W, acc, vpv, masks, sel, pvr, wait=None):
        a = self.a
        a('ds_read_b32 v%d, v%d offset:0' % (pvr, vpv))
        if n > 1: a('ds_read_b32 v%d, v%d offset:32' % (pvr + 1, vpv))
        for t in range(n):
            s = sel + 4 * (t & 1); pv = pvr + (t & 1)
            a('s_waitcnt lgkmcnt(%d)' % (1 if t < n - 1 else 0))
            for k in range(4):
                a('v_and_b32 v%d, v%d, v%d' % (s + k, pv, masks + k))
            if t + 2 < n: a('ds_read_b32 v%d, v%d offset:%d' % (pv, vpv, 32 * (t + 2)))
            else: a('s_nop 0')
            a('s_nop 0')
            if wait: wait(t)
            c = '0' if t == 0 else 'v[%d:%d]' % (acc, acc + 3)
            a('v_mfma_f32_16x16x32_bf16 v[%d:%d], v[%d:%d], v[%d:%d], %s' % (acc, acc + 3, s, s + 3, W + 4 * t, W + 4 * t + 3, c))

    def t3_off(self, voff, t1, t2):
        self.a('''
        v_and_b32 v%d, 15, v0
        v_lshrrev_b32 v%d, 4, v0
        v_lshlrev_b32 v%d, 5, v%d
        v_lshl_add_u32 v%d, v%d, 4, v%d
        v_and_b32 v%d, 40, v0
        v_cmp_eq_u32 vcc, 0, v%d
        v_mov_b32 v%d, %s
        s_nop 0
        v_cndmask_b32 v%d, v%d, v%d, vcc
        ''' % (t1, t2, voff, t1, voff, t2, voff, t1, t1, t2, OOB, voff, t2, voff))

    def t3_combine(self, acc, tmp):
        a = self.a
        a('s_nop 7')
        for r in range(4): a('v_permlane32_swap_b32 v%d, v%d' % (acc + r, tmp + r))
        a('s_nop 0')
        for r in range(4): a('v_add_f32_dpp v%d, v%d, v%d row_ror:8 row_mask:0xf bank_mask:0xf' % (acc + r, tmp + r, acc + r))
        for r in range(4): a('v_min_u32 v%d, -2, v%d' % (acc + r, acc + r))

    def t3_lane_off(self, dst, t1, rowstride):
        self.a('''
        v_lshrrev_b32 v%d, 4, v0
        v_bfe_u32 v%d, v0, 3, 1
        v_lshl_add_u32 v%d, v%d, 2, v%d
        v_mul_u32_u24 v%d, %d, v%d
        v_and_b32 v%d, 7, v0
        v_lshl_add_u32 v%d, v%d, 4, v%d
        ''' % (dst, t1, dst, t1, dst, dst, rowstride, dst, t1, dst, t1, dst))

    def mbpoll_(self, word, sleep=0):
        a = self.a
        l = a.newlabel('MB'); l2 = a.newlabel('MBD')
        a('s_lshl_b32 s20, s6, 7\ns_add_u32 s20, s20, %d\ns_mov_b32 s95, 0' % (OFF_MB + 4 * word))
        a.label(l)
        a('s_load_dword s33, s[74:75], s20 glc\ns_waitcnt lgkmcnt(0)\ns_cmp_lg_u32 s33, -1\ns_cbranch_scc1 %s' % l2)
        if sleep: a('s_sleep %d' % sleep)
        a('s_add_u32 s95, s95, 1\ns_cmp_lt_u32 s95, 0x10000\ns_cbranch_scc1 %s' % l)
        a.label(l2)

    def prologue(self):
        a = self.a
        a('''
        s_cmp_ge_u32 s2, 256
        s_cbranch_scc1 L_end
        s_load_dwordx16 s[48:63], s[0:1], 0
        s_load_dwordx8 s[64:71], s[0:1], 64
        s_load_dwordx4 s[72:75], s[0:1], 96
        v_lshrrev_b32 v1, 6, v0
        v_and_b32 v0, 63, v0
        v_readfirstlane_b32 s3, v1
        s_and_b32 s4, s2, 7
        s_lshr_b32 s5, s2, 3
        s_lshl_b32 s6, s4, 5
        s_add_u32 s6, s6, s5
        s_lshr_b32 s7, s6, 3
        s_and_b32 s46, s6, 7
        s_mov_b32 s94, %s
        s_mov_b32 s45, 0
        s_waitcnt lgkmcnt(0)
        ''' % f32(L2E_HI))
        self.srd(16, 74, WS_BYTES)
        a('''
        s_cmp_eq_u32 s3, 8
        s_cbranch_scc1 L_A0
        s_cmp_eq_u32 s3, 9
        s_cbranch_scc1 L_A1
        s_cmp_eq_u32 s3, 10
        s_cbranch_scc1 L_A2
        s_cmp_eq_u32 s3, 11
        s_cbranch_scc1 L_A3
        ''')

    def s_wave(self):
        a = self.a; vm = VM(a); D = self.depth
        self.stamp_begin()
        self.stamp(0)
        self.srd(8, 50, 50331648); self.srd(12, 52, 50331648)
        a('''
        s_lshl_b32 s20, s6, 3
        s_add_u32 s20, s20, s3
        s_mul_i32 s20, s20, 24576
        v_and_b32 v4, 7, v0
        v_mul_u32_u24 v1, 384, v4
        v_bfe_u32 v4, v0, 3, 1
        v_lshl_add_u32 v1, v4, 6, v1
        v_lshrrev_b32 v4, 4, v0
        v_lshl_add_u32 v1, v4, 4, v1
        ''')
        KB = 28; VF = 124; NF = 11
        kreg = lambda t, s: KB + (t * 3 + s) * 4
        kidx = {}
        first = True
        for t in range(8):
            a('s_add_u32 s21, s20, %d' % (t * 3072))
            for s in range(3):
                if vm.n >= self.opt.get('burst', 0): vm.throttle(D)
                a('buffer_load_dwordx4 v[%d:%d], v1, s[8:11], s21 offen offset:%d nt' % (kreg(t, s), kreg(t, s) + 3, s * 128))
                kidx[(t, s)] = vm.issue()
                if vm.n == min(D, 4) and first:
                    first = False
                    self.vshape_offsets(2, 3, 4, 5, 384)
                    a('s_barrier')
        vtiles = [(t, ty) for t in range(8) for ty in range(3)]
        vreg = {}
        for n, tt in enumerate(vtiles):
            vreg[tt] = VF + 4 * n if n < NF else KB + 4 * (n - NF)
        vidx = {}
        def issue_v(n):
            t, ty = vtiles[n]
            vm.throttle(self.opt.get('dend', D) if n >= self.opt.get('nend', 99) else D)
            a('s_add_u32 s21, s20, %d' % (t * 3072))
            r = vreg[(t, ty)]
            if ty == 0: a('buffer_load_dwordx4 v[%d:%d], v2, s[12:15], s21 offen nt' % (r, r + 3))
            elif ty == 1: a('buffer_load_dwordx4 v[%d:%d], v2, s[12:15], s21 offen offset:1536 nt' % (r, r + 3))
            else: a('buffer_load_dwordx4 v[%d:%d], v3, s[12:15], s21 offen nt' % (r, r + 3))
            vidx[(t, ty)] = vm.issue()
        P = self.qk_after
        for n in range(P): issue_v(n)
        self.stamp(17)
        if not self.opt.get('nowait'): self.lds_spin(L_FLAGQ, None, 24, 25, sleep=2)
        a('''
        v_and_b32 v24, 1, v0
        v_lshrrev_b32 v25, 4, v0
        v_lshl_add_u32 v24, v24, 2, v25
        v_lshlrev_b32 v24, 4, v24
        ds_read_b128 v[4:7], v24 offset:%d
        ds_read_b128 v[8:11], v24 offset:%d
        ds_read_b128 v[12:15], v24 offset:%d
        s_waitcnt lgkmcnt(0)
        ''' % (L_Q, L_Q + 128, L_Q + 256))
        vS = 24
        def pack(t):
            acc = 16 + 4 * (t & 1)
            if t % 2 == 0:
                a('v_add_f32_dpp v%d, v%d, v%d row_ror:8 row_mask:0x%x bank_mask:0x3' % (vS, acc + 1, acc, 1 << (t // 2)))
            else:
                a('v_add_f32_dpp v%d, v%d, v%d row_ror:8 row_mask:0x%x bank_mask:0xc' % (vS, acc, acc + 1, 1 << (t // 2)))
        for t in range(8):
            acc = 16 + 4 * (t & 1)
            vm.wait(kidx[(t, 2)])
            for s in range(3):
                c = '0' if s == 0 else 'v[%d:%d]' % (acc, acc + 3)
                a('v_mfma_f32_16x16x32_bf16 v[%d:%d], v[%d:%d], v[%d:%d], %s' % (acc, acc + 3, 4 + 4 * s, 7 + 4 * s, kreg(t, s), kreg(t, s) + 3, c))
            if t >= 1:
                a('s_nop 4')
                pack(t - 1)
                a('s_nop 2')
        a('s_nop 7')
        pack(7)
        a('s_nop 0')
        self.rnd(vS, vS)
        a('v_mul_f32 v%d, %s, v%d' % (vS, f32(192 ** -0.5), vS))
        self.rnd(vS, vS)
        a('v_mov_b32 v16, v%d' % vS)
        self.wave_reduce(16, 17, 'max')
        a('v_sub_f32 v18, v%d, v16\nv_max_f32 v18, %s, v18' % (vS, f32(-200.0)))
        self.exp(17, 18, 19, 20)
        self.wave_reduce(17, 18, 'add')
        a('''
        s_lshl_b32 s21, s3, 3
        s_add_u32 s21, s21, %d
        v_mov_b32 v18, s21
        ds_write_b64 v18, v[16:17]
        v_mov_b32 v18, %d
        v_mov_b32 v19, 1
        s_waitcnt lgkmcnt(0)
        s_mov_b64 exec, 1
        ds_add_u32 v18, v19
        s_mov_b64 exec, -1
        ''' % (L_STAT, L_CNTST))
        self.stamp(15)
        for n in range(P, 24): issue_v(n)
        self.sel_masks(16, 25, 26)
        a('s_lshl_b32 s22, s3, 8\ns_add_u32 s22, s22, %d' % L_P)
        self.pv_addr(1, 25, 's22')
        self.stamp(18)
        if not self.opt.get('nowait'): self.lds_spin(L_FLAGP, None, 25, 26, sleep=2)
        a('''
        v_mov_b32 v25, %d
        ds_read_b64 v[26:27], v25
        v_mov_b32 v25, %d
        ds_read_b32 v25, v25
        v_lshlrev_b32 v2, 2, v0
        v_add_u32 v2, s22, v2
        s_waitcnt lgkmcnt(0)
        v_readfirstlane_b32 s45, v25
        v_sub_f32 v24, v24, v26
        v_max_f32 v24, %s, v24
        ''' % (L_GSTAT, L_MODE, f32(-200.0)))
        self.exp(24, 24, 20, 21)
        self.div(24, 24, 27, 20, 21)
        a('''
        v_cvt_pk_bf16_f32 v24, v24, v24
        ds_write_b32 v2, v24
        s_waitcnt lgkmcnt(0)
        ds_read_b32 v2, v1 offset:0
        ds_read_b32 v3, v1 offset:32
        ''')
        a('s_setprio 3')
        for t in range(8):
            sel = 20 + 4 * (t & 1)
            pv = 2 + (t & 1)
            a('s_waitcnt lgkmcnt(%d)' % (1 if t < 7 else 0))
            if t == 7:
                a('v_mov_b32 v1, %d\nv_mov_b32 v2, 1\ns_mov_b64 exec, 1\nds_add_u32 v1, v2\ns_mov_b64 exec, -1' % L_CNTPV)
            for k in range(4):
                a('v_and_b32 v%d, v%d, v%d' % (sel + k, pv, 16 + k))
            if t + 2 < 8:
                a('ds_read_b32 v%d, v1 offset:%d' % (pv, 32 * (t + 2)))
            else:
                a('s_nop 0')
            a('s_nop 0')
            for ty in range(3):
                vm.wait(vidx[(t, ty)])
                acc = 4 + 4 * ty
                c = '0' if t == 0 else 'v[%d:%d]' % (acc, acc + 3)
                r = vreg[(t, ty)]
                a('v_mfma_f32_16x16x32_bf16 v[%d:%d], v[%d:%d], v[%d:%d], %s' % (acc, acc + 3, sel, sel + 3, r, r + 3, c))
        self.vshape_combine(4, 8, 12, 1, 2, 3)
        if self.opt.get('v2'):
            self.s_end()
        else:
            a('''
            s_lshl_b32 s21, s6, 3
            s_add_u32 s21, s21, s3
            s_mul_i32 s21, s21, 768
            s_add_u32 s21, s21, %d
            ''' % OFF_O)
            self.store_intra(['buffer_store_dwordx4 v[4:7], v1, s[16:19], s21 offen'])
        if self.stamps:
            self.stamp(4)
            r15 = [r for (i, r) in self.stlist if i == self.opt.get('pw', 15)][0]
            if self.opt.get('dbgst'): a('s_atomic_umax s%d, s[72:73], 0x38' % r15)
            else: a('s_lshl_b32 s92, s2, 8\ns_add_u32 s92, s92, %d\ns_lshl_b32 s93, s3, 3\ns_add_u32 s92, s92, s93\nv_mov_b32 v1, 0\nv_mov_b32 v3, 0\nv_mov_b32 v2, s%d\ns_mov_b64 exec, 1\nbuffer_store_dwordx2 v[2:3], v1, s[16:19], s92 offen\ns_nop 1' % (OFF_STAMP + 160, r15))
            a('s_cmp_lg_u32 s3, 0\ns_cbranch_scc1 L_end')
            self.stamp_flush()
        a('s_endpgm')

    def a0_wave(self):
        a = self.a; vm = VM(a)
        a.label('L_A0')
        self.stamp_begin()
        a('s_setprio 2')
        self.srd(8, 68, 640 * 7680); self.srd(12, 66, 1280)
        a('''
        v_lshlrev_b32 v1, 2, v0
        v_mov_b32 v2, 0
        ds_write_b32 v1, v2
        s_cmp_ge_u32 s2, 240
        s_cbranch_scc1 L_A0_bar
        s_and_b32 s20, s2, 3
        s_lshr_b32 s21, s2, 2
        s_mul_i32 s22, s20, %d
        s_lshl_b32 s23, s21, 7
        s_add_u32 s22, s22, s23
        v_lshrrev_b32 v4, 4, v0
        v_bfe_u32 v5, v0, 3, 1
        v_lshl_add_u32 v4, v5, 2, v4
        v_mul_u32_u24 v4, 7680, v4
        v_and_b32 v5, 7, v0
        v_lshl_add_u32 v4, v5, 4, v4
        s_mul_i32 s24, s20, 320
        v_lshlrev_b32 v5, 1, v0
        buffer_load_ushort v6, v5, s[12:15], s24 offen
        buffer_load_ushort v7, v5, s[12:15], s24 offen offset:128
        buffer_load_ushort v8, v5, s[12:15], s24 offen offset:256
        ''' % (160 * 7680))
        for _ in range(3): vm.issue()
        W = 40
        widx = []
        for t in range(20):
            a('s_add_u32 s23, s22, %d' % (t * 8 * 7680))
            a('buffer_load_dwordx4 v[%d:%d], v4, s[8:11], s23 offen nt' % (W + 4 * t, W + 4 * t + 3))
            widx.append(vm.issue())
        a.label('L_A0_bar')
        a('s_waitcnt lgkmcnt(0)\ns_barrier')
        a('s_cmp_ge_u32 s2, 240\ns_cbranch_scc1 L_A0_stats')
        self.sel_masks(16, 9, 10)
        self.pv_addr(1, 9, str(L_S))
        vm.wait(2)
        for k in range(3):
            r = 6 + k
            a('v_lshlrev_b32 v%d, 16, v%d\nv_sub_f32 v9, 0, v%d\nv_min_f32 v9, %s, v9\nv_max_f32 v9, %s, v9' % (r, r, r, f32(88.0), f32(-200.0)))
            self.exp(10, 9, 11, 12)
            a('v_add_f32 v10, 1.0, v10')
            self.div(r, r, 10, 11, 12)
            a('v_cvt_pk_bf16_f32 v%d, v%d, v%d' % (r, r, r))
        a('''
        v_lshlrev_b32 v9, 2, v0
        ds_write_b32 v9, v6 offset:%d
        ds_write_b32 v9, v7 offset:%d
        ds_write_b32 v9, v8 offset:%d
        s_waitcnt lgkmcnt(0)
        ds_read_b32 v2, v1 offset:0
        ds_read_b32 v3, v1 offset:32
        ''' % (L_S, L_S + 256, L_S + 512))
        for t in range(20):
            sel = 20 + 4 * (t & 1); pv = 2 + (t & 1)
            a('s_waitcnt lgkmcnt(%d)' % (1 if t < 19 else 0))
            for k in range(4):
                a('v_and_b32 v%d, v%d, v%d' % (sel + k, pv, 16 + k))
            if t + 2 < 20: a('ds_read_b32 v%d, v1 offset:%d' % (pv, 32 * (t + 2)))
            else: a('s_nop 0')
            a('s_nop 0')
            vm.wait(widx[t])
            c = '0' if t == 0 else 'v[4:7]'
            a('v_mfma_f32_16x16x32_bf16 v[4:7], v[%d:%d], v[%d:%d], %s' % (sel, sel + 3, W + 4 * t, W + 4 * t + 3, c))
        a('''
        v_and_b32 v9, 15, v0
        v_lshrrev_b32 v10, 4, v0
        v_lshlrev_b32 v1, 5, v9
        v_lshl_add_u32 v1, v10, 4, v1
        v_and_b32 v9, 40, v0
        v_cmp_eq_u32 vcc, 0, v9
        v_mov_b32 v10, %s
        s_nop 0
        v_cndmask_b32 v1, v10, v1, vcc
        s_nop 2
        ''' % OOB)
        for r in range(4): a('v_permlane32_swap_b32 v%d, v%d' % (4 + r, 8 + r))
        a('s_nop 1')
        for r in range(4): a('v_add_f32_dpp v%d, v%d, v%d row_ror:8 row_mask:0xf bank_mask:0xf' % (4 + r, 8 + r, 4 + r))
        for r in range(4): a('v_min_u32 v%d, -2, v%d' % (4 + r, 4 + r))
        self.lds_spin(L_INIT, None, 9, 10, sleep=1)
        a('''
        s_mul_i32 s22, s20, 15360
        s_lshl_b32 s23, s21, 8
        s_add_u32 s22, s22, s23
        s_add_u32 s22, s22, %d
        buffer_store_dwordx4 v[4:7], v1, s[16:19], s22 offen sc1
        ''' % OFF_MOD)
        self.stamp(1, None, 12, 14)
        a.label('L_A0_stats')
        self.lds_spin(L_MODE, None, 9, 10, sleep=4)
        a('s_mov_b32 s45, s93')
        if not self.opt.get('v2'): self.mbpoll_(1, sleep=4)
        self.lds_spin(L_CNTST, 8, 9, 10, sleep=2)
        a('''
        v_and_b32 v1, 7, v0
        v_lshlrev_b32 v2, 3, v1
        ds_read_b64 v[4:5], v2 offset:%d
        s_waitcnt lgkmcnt(0)
        ''' % L_STAT)
        def combine_stats():
            a('v_mov_b32 v6, v4')
            for r in (4, 2, 1):
                a('s_nop 1\nv_max_f32_dpp v6, v6, v6 row_ror:%d row_mask:0xf bank_mask:0xf' % r)
            a('v_sub_f32 v8, v4, v6\nv_max_f32 v8, %s, v8' % f32(-200.0))
            self.exp(7, 8, 9, 10)
            a('v_mul_f32 v7, v7, v5')
            for r in (4, 2, 1):
                a('s_nop 1\nv_add_f32_dpp v7, v7, v7 row_ror:%d row_mask:0xf bank_mask:0xf' % r)
        combine_stats()
        a('''
        v_min_u32 v6, -2, v6
        v_min_u32 v7, -2, v7
        s_lshl_b32 s22, s6, 7
        s_add_u32 s22, s22, %d
        v_readfirstlane_b32 s24, v6
        v_readfirstlane_b32 s25, v7
        s_lshl_b32 s23, s7, 10
        s_add_u32 s23, s23, %d
        s_nop 2
        s_atomic_swap_x2 s[24:25], s[74:75], s22
        s_mov_b32 s95, 0
        L_A0_sp:
        ''' % (OFF_ST, OFF_ST))
        for k in range(8):
            a('s_load_dwordx2 s[%d:%d], s[74:75], s23 offset:%d glc' % (76 + 2 * k, 77 + 2 * k, 128 * k))
        a('s_waitcnt lgkmcnt(0)\ns_max_u32 s26, s76, s77')
        for k in range(2, 16): a('s_max_u32 s26, s26, s%d' % (76 + k))
        a('''
        s_cmp_lg_u32 s26, -1
        s_cbranch_scc1 L_A0_spd
        s_add_u32 s95, s95, 1
        s_cmp_lt_u32 s95, 0x10000
        s_cbranch_scc1 L_A0_sp
        L_A0_spd:
        ''')
        for k in range(8):
            a('v_writelane_b32 v4, s%d, %d\nv_writelane_b32 v4, s%d, %d\nv_writelane_b32 v5, s%d, %d\nv_writelane_b32 v5, s%d, %d' % (76 + 2 * k, k, 76 + 2 * k, k + 8, 77 + 2 * k, k, 77 + 2 * k, k + 8))
        combine_stats()
        a('''
        v_mov_b32 v2, %d
        s_mov_b64 exec, 1
        ds_write_b64 v2, v[6:7]
        s_mov_b64 exec, -1
        s_waitcnt lgkmcnt(0)
        ''' % L_GSTAT)
        self.lds_set(L_FLAGP, '1', 9, 10)
        self.stamp(3)
        if self.opt.get('v2'):
            self.stl_a0 = list(self.stlist); a('s_mov_b32 s96, 0\ns_branch L_TAIL'); return
        self.stamp_flush()
        a('s_endpgm')

    def ln_stats(self, vals, vmu, vden, t):
        a = self.a
        a('v_add_f32 v%d, v%d, v%d' % (vmu, vals[0], vals[1]))
        for v in vals[2:]: a('v_add_f32 v%d, v%d, v%d' % (vmu, vmu, v))
        self.wave_reduce(vmu, t[0], 'add')
        a('v_mul_f32 v%d, %s, v%d' % (vmu, f32(1.0 / 640), vmu))
        a('v_sub_f32 v%d, v%d, v%d\nv_mul_f32 v%d, v%d, v%d' % (t[0], vals[0], vmu, vden, t[0], t[0]))
        for v in vals[1:]:
            a('v_sub_f32 v%d, v%d, v%d\nv_fmac_f32 v%d, v%d, v%d' % (t[0], v, vmu, vden, t[0], t[0]))
        self.wave_reduce(vden, t[0], 'add')
        a('v_mul_f32 v%d, %s, v%d' % (vden, f32(1.0 / 640), vden))
        self.rnd(vden, vden)
        a('v_add_f32 v%d, %s, v%d' % (vden, f32(1e-5), vden))
        self.rnd(vden, vden)
        a('v_sqrt_f32 v%d, v%d\ns_nop 0' % (vden, vden))
        self.rnd(vden, vden)
        self.rnd(vmu, vmu)

    def modulate(self, x, c1, sb, vmu, vden, vrcp, t1, t2):
        a = self.a
        a('v_sub_f32 v%d, v%d, v%d' % (x, x, vmu))
        self.rnd(x, x)
        a('''
        v_mul_f32 v%d, v%d, v%d
        v_fma_f32 v%d, -v%d, v%d, v%d
        v_fma_f32 v%d, v%d, v%d, v%d
        ''' % (t1, x, vrcp, t2, t1, vden, x, x, t2, vrcp, t1))
        self.rnd(x, x)
        a('v_mul_f32 v%d, v%d, v%d' % (x, x, c1))
        self.rnd(x, x)
        a('v_add_f32 v%d, v%d, v%d' % (x, x, sb))

    def a1_wave(self):
        a = self.a; vm = VM(a)
        a.label('L_A1')
        self.stamp_begin()
        a('s_setprio 2')
        self.srd(8, 54, 640 * 12288); self.srd(12, 48, 1280)
        a('''
        v_lshlrev_b32 v4, 2, v0
        buffer_load_dword v20, v4, s[12:15], 0 offen
        buffer_load_dword v21, v4, s[12:15], 0 offen offset:256
        buffer_load_dword v22, v4, s[12:15], 0 offen offset:512
        buffer_load_dword v23, v4, s[12:15], 0 offen offset:768
        buffer_load_dword v24, v4, s[12:15], 0 offen offset:1024
        v_min_u32 v1, 19, v0
        v_lshlrev_b32 v4, 3, v1
        s_mul_i32 s20, s46, 160
        buffer_load_dwordx2 v[26:27], v4, s[12:15], s20 offen
        ''')
        for _ in range(6): vm.issue()
        self.vshape_offsets(2, 3, 4, 5, 12288)
        a('''
        s_barrier
        s_mul_i32 s20, s46, %d
        s_mul_i32 s21, s7, 384
        s_add_u32 s20, s20, s21
        ''' % (80 * 12288))
        W = 40
        widx = {}
        for t in range(10):
            a('s_add_u32 s21, s20, %d\ns_add_u32 s22, s20, %d' % (t * 8 * 12288, (t * 8 + 4) * 12288))
            for ty in range(3):
                vm.throttle(self.opt.get('a1depth', 40))
                r = W + (t * 3 + ty) * 4
                if ty == 0: a('buffer_load_dwordx4 v[%d:%d], v2, s[8:11], s21 offen nt' % (r, r + 3))
                elif ty == 1: a('buffer_load_dwordx4 v[%d:%d], v2, s[8:11], s22 offen nt' % (r, r + 3))
                else: a('buffer_load_dwordx4 v[%d:%d], v3, s[8:11], s21 offen nt' % (r, r + 3))
                widx[(t, ty)] = vm.issue()
        vm.wait(5)
        for k in range(5):
            a('v_lshlrev_b32 v%d, 16, v%d\nv_and_b32 v%d, 0xffff0000, v%d' % (28 + 2 * k, 20 + k, 29 + 2 * k, 20 + k))
        self.ln_stats(list(range(28, 38)), 38, 39, [4, 5, 6, 7])
        a('''
        v_lshlrev_b32 v28, 16, v26
        v_and_b32 v29, 0xffff0000, v26
        v_lshlrev_b32 v30, 16, v27
        v_and_b32 v31, 0xffff0000, v27
        v_rcp_f32 v32, v39
        ''')
        self.lds_spin(L_MODE, None, 4, 5, sleep=4)
        a('''
        s_mov_b32 s45, s93
        s_mul_i32 s20, s46, 320
        s_add_u32 s20, s20, %d
        s_add_u32 s21, s20, 15360
        s_add_u32 s22, s20, 30720
        s_add_u32 s23, s20, 46080
        v_lshlrev_b32 v2, 4, v1
        ''' % OFF_MOD)
        g = [4, 8, 12, 16, 20, 24, 160, 164]
        loads = []
        for rs in range(4):
            loads.append('buffer_load_dwordx4 v[%d:%d], v2, s[16:19], s%d offen' % (g[rs], g[rs] + 3, 20 + rs))
            loads.append('buffer_load_dwordx4 v[%d:%d], v2, s[16:19], s%d offen offset:2560' % (g[4 + rs], g[4 + rs] + 3, 20 + rs))
        regs = [b + k for b in g for k in range(4)]
        self.poll(loads, regs, 33, sleep=2)
        vm.done = vm.n
        self.stamp(14, None, 34, 36)
        for k in range(4):
            a('v_add_f32 v%d, v%d, v%d\nv_add_f32 v%d, v%d, v%d\nv_add_f32 v%d, v%d, v%d' % (4 + k, 4 + k, 8 + k, 12 + k, 12 + k, 16 + k, 4 + k, 4 + k, 12 + k))
            a('v_add_f32 v%d, v%d, v%d\nv_add_f32 v%d, v%d, v%d\nv_add_f32 v%d, v%d, v%d' % (20 + k, 20 + k, 24 + k, 160 + k, 160 + k, 164 + k, 20 + k, 20 + k, 160 + k))
            self.rnd(4 + k, 4 + k)
            self.rnd(20 + k, 20 + k)
            a('v_add_f32 v%d, 1.0, v%d' % (20 + k, 20 + k))
            self.rnd(20 + k, 20 + k)
            self.modulate(28 + k, 20 + k, 4 + k, 38, 39, 32, 33, 34)
            a('v_cvt_pk_bf16_f32 v%d, v%d, v%d' % (28 + k, 28 + k, 28 + k))
        a('ds_write_b128 v2, v[28:31] offset:%d' % L_H)
        self.sel_masks(16, 33, 34)
        self.pv_addr(1, 33, str(L_H))
        a('''
        s_waitcnt lgkmcnt(0)
        ds_read_b32 v2, v1 offset:0
        ds_read_b32 v3, v1 offset:32
        ''')
        for t in range(10):
            sel = 20 + 4 * (t & 1); pv = 2 + (t & 1)
            a('s_waitcnt lgkmcnt(%d)' % (1 if t < 9 else 0))
            for k in range(4):
                a('v_and_b32 v%d, v%d, v%d' % (sel + k, pv, 16 + k))
            if t + 2 < 10: a('ds_read_b32 v%d, v1 offset:%d' % (pv, 32 * (t + 2)))
            else: a('s_nop 0')
            a('s_nop 0')
            for ty in range(3):
                acc = 4 + 4 * ty
                c = '0' if t == 0 else 'v[%d:%d]' % (acc, acc + 3)
                r = W + (t * 3 + ty) * 4
                a('v_mfma_f32_16x16x32_bf16 v[%d:%d], v[%d:%d], v[%d:%d], %s' % (acc, acc + 3, sel, sel + 3, r, r + 3, c))
        self.vshape_combine(4, 8, 12, 1, 2, 3)
        a('s_mul_i32 s21, s6, 768\ns_add_u32 s21, s21, %d' % OFF_Q)
        self.store_intra(['buffer_store_dwordx4 v[4:7], v1, s[16:19], s21 offen'])
        a('''
        s_mul_i32 s21, s7, 6144
        s_add_u32 s21, s21, %d
        s_add_u32 s22, s21, 3072
        v_min_u32 v1, 47, v0
        v_lshlrev_b32 v2, 4, v1
        ''' % OFF_Q)
        loads = []
        for p in range(8):
            loads.append('buffer_load_dwordx4 v[%d:%d], v2, s[16:19], s%d offen offset:%d' % (40 + 4 * p, 43 + 4 * p, 21 + p // 4, (p % 4) * 768))
        self.poll(loads, list(range(40, 72)), 33, sleep=1)
        for k in range(4):
            for st in (1, 2, 4):
                for p in range(0, 8, 2 * st):
                    a('v_add_f32 v%d, v%d, v%d' % (40 + 4 * p + k, 40 + 4 * p + k, 40 + 4 * (p + st) + k))
        a('''
        v_cvt_pk_bf16_f32 v4, v40, v41
        v_cvt_pk_bf16_f32 v5, v42, v43
        v_lshlrev_b32 v2, 3, v1
        ds_write_b64 v2, v[4:5] offset:%d
        s_waitcnt lgkmcnt(0)
        ''' % L_Q)
        self.lds_set(L_FLAGQ, '1', 9, 10)
        self.stamp(2)
        if self.opt.get('v2'):
            self.stl_a1 = list(self.stlist); a('s_mov_b32 s96, 0\ns_branch L_TAIL'); return
        self.stamp_flush()
        a('s_endpgm')

    def interleave(self, ra, rb, t1):
        self.a('''
        v_perm_b32 v%d, v%d, v%d, s96
        v_perm_b32 v%d, v%d, v%d, s97
        v_mov_b32 v%d, v%d
        ''' % (t1, rb, ra, rb, rb, ra, ra, t1))

    def reduce32(self, off_src, off_dst):
        a = self.a
        a('''
        s_mul_i32 s21, s4, %d
        s_lshl_b32 s22, s5, 7
        s_add_u32 s21, s21, s22
        s_add_u32 s21, s21, %d
        s_add_u32 s22, s21, 5120
        ''' % (32 * 2560, off_src))
        loads = ['buffer_load_dwordx4 v[%d:%d], v1, s[16:19], s%d offen offset:%d' % (4 + 4 * n, 7 + 4 * n, 21 + n // 2, (n % 2) * 2560) for n in range(4)]
        self.poll(loads, list(range(4, 20)), 20)
        a('''
        v_pk_add_f32 v[4:5], v[4:5], v[8:9]
        v_pk_add_f32 v[6:7], v[6:7], v[10:11]
        v_pk_add_f32 v[12:13], v[12:13], v[16:17]
        v_pk_add_f32 v[14:15], v[14:15], v[18:19]
        v_pk_add_f32 v[4:5], v[4:5], v[12:13]
        v_pk_add_f32 v[6:7], v[6:7], v[14:15]
        ''')
        self.red8([4, 5, 6, 7])
        a('''
        v_min_u32 v4, -2, v4
        s_lshl_b32 s21, s6, 7
        s_add_u32 s21, s21, %d
        buffer_store_dword v4, v2, s[16:19], s21 offen sc1
        ''' % off_dst)

    def gather8(self, off_src):
        a = self.a
        a('s_lshl_b32 s21, s5, 7\ns_add_u32 s21, s21, %d' % off_src)
        self.poll(['buffer_load_dwordx4 v[4:7], v3, s[16:19], s21 offen'], [4, 5, 6, 7], 20)
        self.red8([4, 5, 6, 7])

    def a2_wave(self):
        a = self.a; vm = VM(a)
        a.label('L_A2')
        self.stamp_begin()
        a('s_setprio 3')
        self.srd(8, 56, 6144 * 1280); self.srd(12, 48, 1280); self.srd(24, 72, 256); self.srd(28, 70, 1280)
        a('''
        s_mov_b32 s96, 0x05040100
        s_mov_b32 s97, 0x07060302
        v_mov_b32 v4, -1
        v_mov_b32 v5, -1
        v_mov_b32 v6, -1
        v_mov_b32 v7, -1
        v_lshlrev_b32 v1, 4, v0
        ''')
        def init(base_expr, nbytes, pol):
            a(base_expr)
            off = 0
            while off < nbytes:
                n = min(1024, nbytes - off)
                if n < 1024:
                    lanes = n // 16
                    m = (1 << lanes) - 1
                    a('s_mov_b32 exec_lo, 0x%x\ns_mov_b32 exec_hi, 0x%x' % (m & 0xffffffff, m >> 32))
                if off < 4096:
                    a('buffer_store_dwordx4 v[4:7], v1, s[16:19], s20 offen offset:%d %s' % (off, pol))
                else:
                    a('s_add_u32 s21, s20, %d\nbuffer_store_dwordx4 v[4:7], v1, s[16:19], s21 offen %s' % (off, pol))
                if n < 1024: a('s_mov_b64 exec, -1')
                off += n
        def fanout(word):
            a('''
            v_mov_b32 v10, s35
            v_lshlrev_b32 v8, 7, v0
            s_mov_b32 s20, %d
            s_mov_b32 s21, %d
            s_mov_b32 s22, %d
            s_mov_b32 s23, %d
            buffer_store_dword v10, v8, s[16:19], s20 offen sc1
            buffer_store_dword v10, v8, s[16:19], s21 offen sc1
            buffer_store_dword v10, v8, s[16:19], s22 offen sc1
            buffer_store_dword v10, v8, s[16:19], s23 offen sc1
            ''' % tuple(OFF_MB + 4 * word + 8192 * k for k in range(4)))
        mbpoll = self.mbpoll_
        init('s_lshl_b32 s20, s6, 7\ns_add_u32 s20, s20, %d' % OFF_MB, 16, 'sc1')
        init('s_lshl_b32 s20, s6, 7\ns_add_u32 s20, s20, %d' % OFF_ST, 16, 'sc1')
        init('s_mul_i32 s20, s6, 768\ns_add_u32 s20, s20, %d' % OFF_Q, 768, '')
        a('s_cmp_ge_u32 s2, 240\ns_cbranch_scc1 L_A2_nomod')
        init('s_and_b32 s20, s2, 3\ns_mul_i32 s20, s20, 15360\ns_lshr_b32 s21, s2, 2\ns_lshl_b32 s21, s21, 8\ns_add_u32 s20, s20, s21\ns_add_u32 s20, s20, %d' % OFF_MOD, 256, 'sc1')
        a.label('L_A2_nomod')
        a('''
        s_barrier
        s_getreg_b32 s20, hwreg(HW_REG_XCC_ID)
        s_and_b32 s20, s20, 7
        s_lshl_b32 s22, s20, 3
        s_lshl_b64 s[32:33], 1, s22
        s_lshl_b32 s21, s4, 5
        s_mov_b64 s[34:35], s[32:33]
        s_waitcnt vmcnt(0)
        s_atomic_add_x2 s[34:35], s[72:73], s21 glc
        ''')
        self.lds_set(L_INIT, '1', 9, 12)
        a('''
        s_waitcnt lgkmcnt(0)
        s_add_u32 s34, s34, s32
        s_addc_u32 s35, s35, s33
        v_mov_b32 v10, s34
        v_mov_b32 v11, s35
        v_sad_u8 v12, v10, 0, 0
        v_sad_u8 v12, v11, 0, v12
        s_nop 0
        v_readfirstlane_b32 s36, v12
        ''')
        self.stamp(16)
        a('''
        s_nop 3
        s_cmp_lg_u32 s36, 32
        s_cbranch_scc1 L_A2_mb
        ; last of the group: bad if any field not in {0,32}
        s_or_b32 s34, s34, s35
        s_and_b32 s34, s34, 0xdfdfdfdf
        s_cmp_lg_u32 s34, 0
        s_cselect_b32 s34, 0x10001, 1
        s_mov_b32 s35, s34
        s_atomic_add s35, s[72:73], 0x8 glc
        s_waitcnt lgkmcnt(0)
        s_add_u32 s35, s35, s34
        s_and_b32 s36, s35, 0xffff
        s_cmp_lg_u32 s36, 8
        s_cbranch_scc1 L_A2_mb
        s_lshr_b32 s35, s35, 16
        s_cmp_lg_u32 s35, 0
        s_cselect_b32 s35, 2, 1
        ''')
        self.stamp(19)
        fanout(0)
        a.label('L_A2_mb')
        mbpoll(0)
        a('s_cmp_eq_u32 s33, 1\ns_cselect_b32 s45, 1, 2')
        if self.opt.get('force_slow'): a('s_mov_b32 s45, 2')
        a('s_cmp_lg_u32 s45, 1\ns_cbranch_scc1 L_A2_slow1')
        self.lds_set(L_MODE, '1', 9, 10)
        self.stamp(13)
        def init2(pol):
            init('s_mul_i32 s20, s6, 6144\ns_add_u32 s20, s20, %d' % OFF_O, 6144, pol)
            init('s_mul_i32 s20, s6, 2560\ns_add_u32 s20, s20, %d' % OFF_A, 2560, pol)
            init('s_lshl_b32 s20, s6, 8\ns_add_u32 s20, s20, %d' % OFF_H, 256, pol)
            init('s_min_u32 s21, s5, 29\ns_lshl_b32 s21, s21, 8\ns_mul_i32 s20, s4, 7680\ns_add_u32 s20, s20, s21\ns_add_u32 s20, s20, %d' % OFF_G, 256, pol)
        init2('')
        a('s_branch L_A2_p2')
        a.label('L_A2_slow1')
        init2('sc1')
        init('s_mul_i32 s20, s6, 768\ns_add_u32 s20, s20, %d' % OFF_Q, 768, 'sc1')
        a.label('L_A2_p2')
        init('s_lshl_b32 s20, s6, 7\ns_add_u32 s20, s20, %d' % OFF_X, 128, 'sc1')
        init('s_min_u32 s21, s5, 29\ns_lshl_b32 s21, s21, 8\ns_mul_i32 s20, s4, 7680\ns_add_u32 s20, s20, s21\ns_add_u32 s20, s20, %d' % OFF_F, 256, 'sc1')
        a('''
        s_mov_b32 s34, 1
        s_lshl_b32 s21, s4, 5
        s_add_u32 s21, s21, 16
        s_waitcnt vmcnt(0)
        s_atomic_add s34, s[72:73], s21 glc
        s_waitcnt lgkmcnt(0)
        s_cmp_lg_u32 s34, 31
        s_cbranch_scc1 L_A2_mb2
        s_mov_b32 s34, 1
        s_atomic_add s34, s[72:73], 0x18 glc
        s_waitcnt lgkmcnt(0)
        s_cmp_lg_u32 s34, 7
        s_cbranch_scc1 L_A2_mb2
        s_mov_b32 s35, 1
        ''')
        fanout(1)
        a.label('L_A2_mb2')
        a('s_cmp_eq_u32 s45, 1\ns_cbranch_scc1 L_A2_fast')
        mbpoll(1, sleep=2)
        self.lds_set(L_MODE, '2', 9, 10)
        a.label('L_A2_fast')
        W = 40
        a('''
        s_mul_i32 s20, s6, 30720
        v_lshlrev_b32 v2, 2, v0
        ''')
        for r in range(24):
            base = W + 5 * r
            pass
        def wreg(r):
            g = r // 2; b = W + 10 * g
            return (b + 4 * (r & 1), b + 8 + (r & 1))
        idx = []
        for r in range(24):
            x4, d1 = wreg(r)
            a('s_add_u32 s21, s20, %d' % (r * 1280))
            vm.throttle(self.adepth)
            a('buffer_load_dwordx4 v[%d:%d], v1, s[8:11], s21 offen nt' % (x4, x4 + 3)); vm.issue()
            a('buffer_load_dword v%d, v2, s[8:11], s21 offen offset:1024 nt' % d1); idx.append(vm.issue())
        vm.all()
        pairs = [(p + k, p + k + 4) for p in (0, 8, 16) for k in range(4)]
        for (ra, rb) in pairs:
            xa, da = wreg(ra); xb, db = wreg(rb)
            for k in range(4): self.interleave(xa + k, xb + k, 4)
            self.interleave(da, db, 4)
        self.mbpoll_(1, sleep=2)
        a('''
        v_and_b32 v24, 7, v0
        v_lshlrev_b32 v24, 2, v24
        v_bfe_u32 v25, v0, 4, 1
        v_lshl_add_u32 v24, v25, 1, v24
        v_lshrrev_b32 v25, 5, v0
        v_add_u32 v24, v24, v25
        s_cmp_ge_u32 s5, 20
        s_cbranch_scc1 L_A2_h1
        s_lshl_b32 s20, s5, 7
        s_add_u32 s20, s20, %d
        s_add_u32 s21, s20, 15360
        s_add_u32 s22, s20, 30720
        s_add_u32 s23, s20, 46080
        v_lshlrev_b32 v25, 2, v24
        v_add_u32 v26, 5120, v25
        v_add_u32 v27, 10240, v25
        s_lshl_b32 s32, s5, 6
        v_lshlrev_b32 v28, 1, v24
        buffer_load_ushort v30, v28, s[12:15], s32 offen
        ''' % OFF_MOD)
        loads = []
        for rs in range(4):
            loads.append('buffer_load_dword v%d, v26, s[16:19], s%d offen' % (4 + rs, 20 + rs))
            loads.append('buffer_load_dword v%d, v26, s[16:19], s%d offen offset:2560' % (8 + rs, 20 + rs))
            loads.append('buffer_load_dword v%d, v27, s[16:19], s%d offen' % (12 + rs, 20 + rs))
            loads.append('buffer_load_dword v%d, v27, s[16:19], s%d offen offset:2560' % (16 + rs, 20 + rs))
        self.poll(loads, list(range(4, 20)), 20, sleep=4)
        for n, dst in enumerate((31, 32, 33, 34)):
            b = 4 + 4 * n
            a('v_add_f32 v%d, v%d, v%d\nv_add_f32 v%d, v%d, v%d\nv_add_f32 v%d, v%d, v%d' % (b, b, b + 1, b + 2, b + 2, b + 3, dst, b, b + 2))
            self.rnd(dst, dst)
        a('v_add_f32 v33, 1.0, v33')
        a('''
        v_cvt_pk_bf16_f32 v33, v33, v32
        v_min_u32 v33, -2, v33
        v_lshlrev_b32 v30, 16, v30
        ''')
        a.label('L_A2_h1')
        a('''
        v_and_b32 v25, 7, v0
        v_lshrrev_b32 v26, 3, v0
        v_min_u32 v27, 5, v25
        v_mul_u32_u24 v35, 6144, v26
        v_lshl_add_u32 v35, v27, 4, v35          ; H1 gather offset: pslot*8*768 + piece*16
        v_mul_u32_u24 v36, 10240, v26
        v_lshl_add_u32 v36, v25, 4, v36          ; reduce32 gather: pslot*4*2560 + c*16
        v_lshlrev_b32 v37, 12, v26
        v_lshl_add_u32 v37, v25, 4, v37          ; gather8: pslot*32*128 + c*16
        v_and_b32 v27, 8, v0
        v_cmp_eq_u32 vcc, 0, v27
        v_mov_b32 v27, %s
        v_lshlrev_b32 v38, 2, v24
        v_cndmask_b32 v38, v27, v38, vcc         ; line store offset (dword)
        v_lshlrev_b32 v39, 3, v24
        v_cndmask_b32 v39, v27, v39, vcc         ; B_h store offset (8B)
        v_lshlrev_b32 v29, 1, v24
        v_cndmask_b32 v29, v27, v29, vcc         ; out store offset (2B)
        v_lshlrev_b32 v160, 5, v0                ; B_a store offsets
        v_lshlrev_b32 v161, 3, v0
        s_mul_i32 s21, s7, 49152
        s_mul_i32 s22, s46, 96
        s_add_u32 s21, s21, s22
        s_add_u32 s21, s21, %d
        s_add_u32 s22, s21, 3072
        ''' % (OOB, OFF_O))
        self.lds_spin(L_CNTPV, 8, 4, 5, sleep=1)
        loads = ['buffer_load_dwordx4 v[%d:%d], v35, s[16:19], s%d offen offset:%d' % (4 + 4 * n, 7 + 4 * n, 21, n * 768) for n in range(4)]
        self.poll(loads, list(range(4, 20)), 28)
        a('''
        v_pk_add_f32 v[4:5], v[4:5], v[8:9]
        v_pk_add_f32 v[6:7], v[6:7], v[10:11]
        v_pk_add_f32 v[12:13], v[12:13], v[16:17]
        v_pk_add_f32 v[14:15], v[14:15], v[18:19]
        v_pk_add_f32 v[20:21], v[4:5], v[12:13]
        v_pk_add_f32 v[22:23], v[6:7], v[14:15]
        ''')
        loads = ['buffer_load_dwordx4 v[%d:%d], v35, s[16:19], s%d offen offset:%d' % (4 + 4 * n, 7 + 4 * n, 22, n * 768) for n in range(4)]
        self.poll(loads, list(range(4, 20)), 28)
        self.stamp(5, None, 162, 164)
        a('''
        v_pk_add_f32 v[4:5], v[4:5], v[8:9]
        v_pk_add_f32 v[6:7], v[6:7], v[10:11]
        v_pk_add_f32 v[12:13], v[12:13], v[16:17]
        v_pk_add_f32 v[14:15], v[14:15], v[18:19]
        v_pk_add_f32 v[4:5], v[4:5], v[12:13]
        v_pk_add_f32 v[6:7], v[6:7], v[14:15]
        v_pk_add_f32 v[4:5], v[4:5], v[20:21]
        v_pk_add_f32 v[6:7], v[6:7], v[22:23]
        ''')
        self.red8([4, 5, 6, 7])
        a('''
        s_nop 1
        v_mov_b32_dpp v5, v4 quad_perm:[1,0,3,2] row_mask:0xf bank_mask:0xf
        v_cvt_pk_bf16_f32 v4, v4, v5
        s_nop 0
        ''')
        PI = [0, 2, 1, 3]
        sp = {}
        n = 0
        for p in (0, 2, 4):
            for q in range(4):
                a('v_readlane_b32 s%d, v4, %d' % (76 + n, p + 16 * q))
                sp[4 * p + PI[q]] = 76 + n; n += 1
        acc = 4
        for k in range(10): a('v_mov_b32 v%d, 0' % (acc + k))
        for (ra, rb) in pairs:
            xa, da = wreg(ra); xb, db = wreg(rb)
            s = sp[ra]
            for k in range(4):
                a('v_dot2c_f32_bf16 v%d, s%d, v%d' % (acc + 2 * k, s, xa + k))
                a('v_dot2c_f32_bf16 v%d, s%d, v%d' % (acc + 2 * k + 1, s, xb + k))
            a('v_dot2c_f32_bf16 v%d, s%d, v%d' % (acc + 8, s, da))
            a('v_dot2c_f32_bf16 v%d, s%d, v%d' % (acc + 9, s, db))
        a('s_nop 2')
        for k in range(10): a('v_min_u32 v%d, -2, v%d' % (acc + k, acc + k))
        a('s_mul_i32 s21, s6, 2560\ns_add_u32 s21, s21, %d' % OFF_A)
        self.store_intra(['buffer_store_dwordx4 v[4:7], v160, s[16:19], s21 offen',
                          'buffer_store_dwordx4 v[8:11], v160, s[16:19], s21 offen offset:16',
                          'buffer_store_dwordx2 v[12:13], v161, s[16:19], s21 offen offset:2048'])
        self.lds_set(L_FLAGA, '1', 14, 15)
        self.stamp(6)
        a('s_cmp_ge_u32 s5, 20\ns_cbranch_scc1 L_A2_end')
        a('v_mov_b32 v1, v36\nv_mov_b32 v2, v38\nv_mov_b32 v3, v37')
        self.reduce32(OFF_A, OFF_X)
        self.stamp(7, None, 162, 164)
        self.gather8(OFF_X)
        self.rnd(4, 4)
        a('v_mul_f32 v4, v31, v4')
        self.rnd(4, 4)
        a('v_add_f32 v4, v30, v4')
        self.rnd(32, 4)
        a('s_lshl_b32 s21, s6, 8\ns_add_u32 s21, s21, %d' % OFF_H)
        self.store_intra(['buffer_store_dwordx2 v[32:33], v39, s[16:19], s21 offen'])
        self.stamp(8, None, 162, 164)
        a('s_and_b32 s21, s5, 7\ns_cmp_lg_u32 s21, s4\ns_cbranch_scc1 L_A2_end')
        a('''
        v_lshrrev_b32 v1, 3, v0
        v_mul_u32_u24 v1, 7680, v1
        v_and_b32 v2, 7, v0
        v_lshl_add_u32 v1, v2, 4, v1
        s_lshl_b32 s21, s5, 7
        s_add_u32 s21, s21, %d
        s_add_u32 s22, s21, 5120
        ''' % OFF_F)
        self.poll(['buffer_load_dwordx4 v[4:7], v1, s[16:19], s21 offen',
                   'buffer_load_dwordx4 v[8:11], v1, s[16:19], s21 offen offset:2560',
                   'buffer_load_dwordx4 v[12:15], v1, s[16:19], s22 offen'], list(range(4, 16)), 20)
        a('''
        v_pk_add_f32 v[4:5], v[4:5], v[8:9]
        v_pk_add_f32 v[6:7], v[6:7], v[10:11]
        v_pk_add_f32 v[4:5], v[4:5], v[12:13]
        v_pk_add_f32 v[6:7], v[6:7], v[14:15]
        ''')
        self.red8([4, 5, 6, 7])
        self.rnd(4, 4)
        a('v_mul_f32 v4, v34, v4')
        self.rnd(4, 4)
        a('''
        v_add_f32 v4, v32, v4
        v_cvt_pk_bf16_f32 v4, v4, v4
        s_lshl_b32 s21, s5, 6
        buffer_store_short v4, v29, s[28:31], s21 offen
        ''')
        self.stamp(12)
        a.label('L_A2_end')
        self.stamp_flush()
        a('s_endpgm')

    def a3_wave(self):
        a = self.a; vm = VM(a)
        a.label('L_A3')
        self.stamp_begin()
        a('''
        s_setprio 3
        s_barrier
        s_cmp_ge_u32 s5, 30
        s_cbranch_scc1 L_end
        s_mul_i32 s20, s5, 52
        s_lshr_b32 s20, s20, 8              ; q5 = i/5
        s_mul_i32 s21, s20, 5
        s_sub_u32 s21, s5, s21              ; rs
        s_and_b32 s22, s20, 1               ; m
        s_lshr_b32 s23, s20, 1              ; cb
        s_mul_i32 s32, s5, 26
        s_lshr_b32 s32, s32, 8              ; fb = i/10
        s_mul_i32 s33, s32, 10
        s_sub_u32 s33, s5, s33              ; cbo
        s_cmp_eq_u32 s22, 0
        s_cselect_b32 s8, s60, s62
        s_cselect_b32 s9, s61, s63
        s_mov_b32 s10, %d
        s_mov_b32 s11, 0x20000
        ''' % (640 * 3072))
        self.srd(24, 64, 1536 * 1280)
        self.t3_lane_off(1, 4, 3072)
        self.t3_lane_off(2, 4, 1280)
        self.lds_spin(L_MODE, None, 4, 5, sleep=8)
        a('''
        s_mov_b32 s45, s93
        s_mul_i32 s34, s21, %d
        s_mul_i32 s35, s4, 384
        s_add_u32 s34, s34, s35
        s_lshl_b32 s35, s23, 7
        s_add_u32 s34, s34, s35             ; gate/up tile base
        s_mul_i32 s35, s4, %d
        s_mul_i32 s36, s32, %d
        s_add_u32 s35, s35, s36
        s_lshl_b32 s36, s33, 7
        s_add_u32 s35, s35, s36             ; down tile base
        ''' % (128 * 3072, 192 * 1280, 64 * 1280))
        GW = 40; DW = 104
        for t in range(16):
            vm.throttle(self.adepth)
            a('s_add_u32 s36, s34, %d\nbuffer_load_dwordx4 v[%d:%d], v1, s[8:11], s36 offen nt' % (t * 8 * 3072, GW + 4 * t, GW + 4 * t + 3)); vm.issue()
        for t in range(8):
            vm.throttle(self.adepth)
            a('s_add_u32 s36, s35, %d\nbuffer_load_dwordx4 v[%d:%d], v2, s[24:27], s36 offen nt' % (t * 8 * 1280, DW + 4 * t, DW + 4 * t + 3)); vm.issue()
        self.sel_masks(136, 4, 5)
        self.pv_addr(140, 4, str(L_H2))
        self.pv_addr(141, 4, str(L_GU))
        self.t3_off(142, 4, 5)
        a('''
        v_lshlrev_b32 v2, 4, v0
        v_lshlrev_b32 v143, 3, v0
        v_lshlrev_b32 v144, 2, v0
        s_lshl_b32 s76, s4, 13
        s_add_u32 s76, s76, %d
        s_add_u32 s77, s76, 4096
        s_lshl_b32 s78, s21, 10
        s_add_u32 s78, s78, s76             ; own 128 rows
        s_mul_i32 s79, s4, 7680
        s_add_u32 s79, s79, %d              ; B_g group base
        s_mul_i32 s80, s22, 5
        s_add_u32 s80, s80, s21
        s_mul_i32 s80, s80, 768
        s_lshl_b32 s81, s23, 8
        s_add_u32 s80, s80, s81
        s_add_u32 s80, s80, s79             ; B_g publish address
        s_lshl_b32 s81, s32, 8
        s_add_u32 s81, s81, s79             ; B_g gather base (g)
        s_add_u32 s82, s81, 3840            ; (u)
        s_mul_i32 s83, s4, 3
        s_add_u32 s83, s83, s32
        s_mul_i32 s83, s83, 2560
        s_lshl_b32 s84, s33, 8
        s_add_u32 s83, s83, s84
        s_add_u32 s83, s83, %d              ; B_f publish address
        ''' % (OFF_H, OFF_G, OFF_F))
        vm.all()
        self.lds_spin(L_FLAGA, None, 4, 5, sleep=2)
        loads = ['buffer_load_dwordx4 v[%d:%d], v2, s[16:19], s%d offen offset:%d' % (4 + 4 * k, 7 + 4 * k, 76 + k // 4, (k % 4) * 1024) for k in range(5)]
        loads.append('buffer_load_dwordx4 v[24:27], v2, s[16:19], s78 offen')
        self.poll(loads, list(range(4, 28)), 28)
        self.stamp(9)
        xs = [4 + 2 * n for n in range(10)]
        self.ln_stats(xs, 28, 29, [30, 31, 32, 33])
        a('v_rcp_f32 v30, v29')
        for n in range(2):
            x = 24 + 2 * n; p = x + 1
            a('v_lshlrev_b32 v31, 16, v%d\nv_and_b32 v32, 0xffff0000, v%d' % (p, p))
            self.modulate(x, 31, 32, 28, 29, 30, 33, 34)
        a('''
        v_cvt_pk_bf16_f32 v24, v24, v24
        v_cvt_pk_bf16_f32 v25, v26, v26
        ds_write_b64 v143, v[24:25] offset:%d
        s_waitcnt lgkmcnt(0)
        ''' % L_H2)
        self.t3_gemv(16, GW, 4, 140, 136, 12, 20)
        self.t3_combine(4, 8)
        self.store_intra(['buffer_store_dwordx4 v[4:7], v142, s[16:19], s80 offen'])
        self.stamp(10)
        loads = []
        for rs in range(5):
            loads.append('buffer_load_dword v%d, v144, s[16:19], s81 offen offset:%d' % (8 + rs, rs * 768))
            loads.append('buffer_load_dword v%d, v144, s[16:19], s82 offen offset:%d' % (13 + rs, rs * 768))
        self.poll(loads, list(range(8, 18)), 28)
        a('''
        v_add_f32 v8, v8, v9
        v_add_f32 v13, v13, v14
        v_add_f32 v10, v10, v11
        v_add_f32 v15, v15, v16
        v_add_f32 v8, v8, v12
        v_add_f32 v13, v13, v17
        v_add_f32 v8, v8, v10
        v_add_f32 v13, v13, v15
        ''')
        self.rnd(8, 8); self.rnd(13, 13)
        a('''
        v_mul_f32 v8, v8, v13
        v_cvt_pk_bf16_f32 v8, v8, v8
        ds_write_b32 v144, v8 offset:%d
        s_waitcnt lgkmcnt(0)
        ''' % L_GU)
        self.t3_gemv(8, DW, 4, 141, 136, 12, 20)
        self.t3_combine(4, 8)
        a('buffer_store_dwordx4 v[4:7], v142, s[16:19], s83 offen sc1')
        self.stamp(11)
        self.stamp_flush()
        a.label('L_end')
        a('s_endpgm')

    def build(self):
        self.prologue()
        self.s_wave()
        self.a0_wave()
        self.a1_wave()
        self.a2_wave()
        self.a3_wave()
        s = wrap(self.a.text(), 256, 768, LDS_BYTES, 168)
        s = s.replace('  .amdhsa_system_sgpr_workgroup_id_x 1\n', '  .amdhsa_system_sgpr_workgroup_id_x 1\n  .amdhsa_float_denorm_mode_32 3\n')
        return s

if __name__ == '__main__':
    import argparse
    ap = argparse.ArgumentParser()
    ap.add_argument('-o', default='k.s')
    ap.add_argument('--stamps', action='store_true')
    ap.add_argument('--opt', default='')
    x = ap.parse_args()
    kw = {}
    for kv in filter(None, x.opt.split(',')):
        k, v = kv.split('=')
        try: v = int(v)
        except ValueError: pass
        kw[k] = v
    open(x.o, 'w').write(Gen(stamps=x.stamps, **kw).build())
```

```python
import gen as G1
from gen import *

OFF_MOD = 0x0
OFF_Q   = 0x10000
OFF_ST  = 0x40000
OFF_O   = 0x50000
OFF_X   = 0x100000
OFF_H   = 0x90000
OFF_C   = 0x98000
OFF_G   = 0xA0000
OFF_F   = 0x120000
OFF_MB  = 0xC0000
for k in ('OFF_MOD', 'OFF_Q', 'OFF_ST', 'OFF_O', 'OFF_X', 'OFF_H', 'OFF_G', 'OFF_F', 'OFF_MB'):
    setattr(G1, k, globals()[k])
L_STAGE, L_CNTO, L_CNTSL = 32, 36, 40
L_OSL = 6144
L_OB = 14336
L_H2 = 14848
L_GU = 15872
L_W = 16384
L_WO, L_WG, L_WD = L_W, L_W + 32768, L_W + 49152
LDS_BYTES = L_W + 57344

class Gen2(Gen):
    def s_end(self):
        a = self.a
        a('''
        v_min_u32 v2, 1008, v1
        s_lshl_b32 s21, s3, 10
        v_add_u32 v3, s21, v2
        ds_write_b128 v3, v[4:7] offset:%d
        v_mov_b32 v8, %d
        v_mov_b32 v9, 1
        s_mul_i32 s21, s6, 768
        s_add_u32 s21, s21, %d
        s_waitcnt lgkmcnt(0)
        s_mov_b64 exec, 1
        ds_add_rtn_u32 v9, v8, v9
        s_mov_b64 exec, -1
        s_waitcnt lgkmcnt(0)
        v_readfirstlane_b32 s22, v9
        s_cmp_lg_u32 s22, 7
        s_cbranch_scc1 L_S_end
        ''' % (L_OSL, L_CNTSL, OFF_O))
        for k in range(8):
            a('ds_read_b128 v[%d:%d], v2 offset:%d' % (28 + 4 * k, 31 + 4 * k, L_OSL + 1024 * k))
        for k in range(0, 8, 2):
            a('s_waitcnt lgkmcnt(%d)' % (6 - k))
            a('v_pk_add_f32 v[%d:%d], v[%d:%d], v[%d:%d]' % (28 + 4 * k, 29 + 4 * k, 28 + 4 * k, 29 + 4 * k, 32 + 4 * k, 33 + 4 * k))
            a('v_pk_add_f32 v[%d:%d], v[%d:%d], v[%d:%d]' % (30 + 4 * k, 31 + 4 * k, 30 + 4 * k, 31 + 4 * k, 34 + 4 * k, 35 + 4 * k))
        a('''
        v_pk_add_f32 v[28:29], v[28:29], v[36:37]
        v_pk_add_f32 v[30:31], v[30:31], v[38:39]
        v_pk_add_f32 v[44:45], v[44:45], v[52:53]
        v_pk_add_f32 v[46:47], v[46:47], v[54:55]
        v_pk_add_f32 v[28:29], v[28:29], v[44:45]
        v_pk_add_f32 v[30:31], v[30:31], v[46:47]
        v_min_u32 v28, -2, v28
        v_min_u32 v29, -2, v29
        v_min_u32 v30, -2, v30
        v_min_u32 v31, -2, v31
        ''')
        self.store_intra(['buffer_store_dwordx4 v[28:31], v1, s[16:19], s21 offen'])
        a.label('L_S_end')

    PSETS = [130, 142, 154]
    def mpoll(self, loads_fn, nregs, post, K, stagger, vt=20):
        a = self.a
        if K == 1:
            b = self.PSETS[0]
            self.poll(loads_fn(b), list(range(b, b + nregs)), vt)
            post(b); return
        sets = self.PSETS[:K]
        n = len(loads_fn(sets[0]))
        lj = a.newlabel('MJ'); ll = a.newlabel('ML')
        ld = [a.newlabel('MD') for _ in sets]
        a('s_mov_b32 s95, 0')
        for k, b in enumerate(sets):
            for i in loads_fn(b): a(i + ' sc1')
            if k < K - 1 and stagger: a('s_sleep %d' % stagger)
        a.label(ll)
        for k, b in enumerate(sets):
            a('s_waitcnt vmcnt(%d)' % ((K - 1) * n))
            rs = list(range(b, b + nregs))
            a('v_max3_u32 v%d, v%d, v%d, v%d' % (vt, rs[0], rs[1], rs[2])); rest = rs[3:]
            while rest:
                if len(rest) == 1:
                    a('v_max_u32 v%d, v%d, v%d' % (vt, vt, rest[0])); rest = []
                else:
                    a('v_max3_u32 v%d, v%d, v%d, v%d' % (vt, vt, rest[0], rest[1])); rest = rest[2:]
            a('v_cmp_eq_u32 vcc, -1, v%d\ns_cbranch_vccz %s' % (vt, ld[k]))
            for i in loads_fn(b): a(i + ' sc1')
        a('s_add_u32 s95, s95, 1\ns_cmp_lt_u32 s95, 0x8000\ns_cbranch_scc1 %s' % ll)
        a('s_waitcnt vmcnt(0)')
        for k in range(K - 1, -1, -1):
            a.label(ld[k])
            post(sets[k])
            if k > 0: a('s_branch %s' % lj)
        a.label(lj)

    def gather24(self, off):
        a = self.a
        a('s_lshl_b32 s21, s5, 8\ns_add_u32 s21, s21, %d\ns_add_u32 s22, s21, 5120\ns_add_u32 s23, s21, 10240' % off)
        def lf(b):
            return ['buffer_load_dwordx4 v[%d:%d], v37, s[16:19], s%d offen' % (b + 4 * k, b + 4 * k + 3, 21 + k) for k in range(3)]
        def post(b):
            a('''
            v_pk_add_f32 v[4:5], v[%d:%d], v[%d:%d]
            v_pk_add_f32 v[6:7], v[%d:%d], v[%d:%d]
            v_pk_add_f32 v[4:5], v[4:5], v[%d:%d]
            v_pk_add_f32 v[6:7], v[6:7], v[%d:%d]
            ''' % (b, b + 1, b + 4, b + 5, b + 2, b + 3, b + 6, b + 7, b + 8, b + 9, b + 10, b + 11))
        self.mpoll(lf, 12, post, self.opt.get('kx', 3), self.opt.get('sx', 6))
        self.red8([4, 5, 6, 7])

    def a2_wave(self):
        a = self.a
        a.label('L_A2')
        self.stamp_begin()
        a('s_setprio 3')
        self.srd(12, 48, 1280)
        a('''
        v_mov_b32 v4, -1
        v_mov_b32 v5, -1
        v_mov_b32 v6, -1
        v_mov_b32 v7, -1
        v_lshlrev_b32 v1, 4, v0
        ''')
        def init(base_expr, nbytes, pol):
            a(base_expr)
            assert nbytes <= 1024
            lanes = nbytes // 16
            m = (1 << lanes) - 1
            a('s_mov_b32 exec_lo, 0x%x\ns_mov_b32 exec_hi, 0x%x' % (m & 0xffffffff, m >> 32))
            a('buffer_store_dwordx4 v[4:7], v1, s[16:19], s20 offen %s' % pol)
            a('s_mov_b64 exec, -1')
        def slot(off, gstride, n, sz):
            return 's_min_u32 s21, s5, %d\ns_mul_i32 s21, s21, %d\ns_mul_i32 s20, s4, %d\ns_add_u32 s20, s20, s21\ns_add_u32 s20, s20, %d' % (n - 1, sz, gstride, off)
        def init_intra(pol):
            init('s_mul_i32 s20, s6, 768\ns_add_u32 s20, s20, %d' % OFF_Q, 768, pol)
            init('s_mul_i32 s20, s6, 768\ns_add_u32 s20, s20, %d' % OFF_O, 768, pol)
            init(slot(OFF_H, 2560, 20, 128), 128, pol)
            init(slot(OFF_C, 2560, 20, 128), 128, pol)
            init(slot(OFF_G, 7680, 30, 256), 256, pol)
        def fanout(word):
            a('''
            v_mov_b32 v10, s35
            v_lshlrev_b32 v8, 7, v0
            s_lshl_b32 s20, s4, 12
            s_add_u32 s20, s20, %d
            s_mov_b32 exec_hi, 0
            buffer_store_dword v10, v8, s[16:19], s20 offen sc1
            s_mov_b64 exec, -1
            ''' % (OFF_MB + 4 * word))
        def toppoll(off, lbl):
            l = a.newlabel('TP'); l2 = a.newlabel('TPD')
            a('s_mov_b32 s95, 0')
            a.label(l)
            a('''
            s_and_b32 s36, s35, 0xffff
            s_cmp_eq_u32 s36, 8
            s_cbranch_scc1 %s
            s_load_dword s35, s[72:73], 0x%x glc
            s_waitcnt lgkmcnt(0)
            s_add_u32 s95, s95, 1
            s_cmp_lt_u32 s95, 0x10000
            s_cbranch_scc1 %s
            ''' % (l2, off, l))
            a.label(l2)
        init('s_lshl_b32 s20, s6, 7\ns_add_u32 s20, s20, %d' % OFF_MB, 16, 'sc1')
        init('s_lshl_b32 s20, s6, 7\ns_add_u32 s20, s20, %d' % OFF_ST, 16, 'sc1')
        init('s_min_u32 s22, s2, 239\ns_and_b32 s20, s22, 3\ns_mul_i32 s20, s20, 15360\ns_lshr_b32 s21, s22, 2\ns_lshl_b32 s21, s21, 8\ns_add_u32 s20, s20, s21\ns_add_u32 s20, s20, %d\ns_cmp_ge_u32 s2, 240\ns_cselect_b32 s20, %d, s20' % (OFF_MOD, OOB), 256, 'sc1')
        init(slot(OFF_X, 15360, 30, 512), 512, 'sc1')
        init(slot(OFF_F, 15360, 30, 512), 512, 'sc1')
        init_intra('')
        a('''
        s_barrier
        s_getreg_b32 s20, hwreg(HW_REG_XCC_ID)
        s_and_b32 s20, s20, 7
        s_lshl_b32 s22, s20, 3
        s_lshl_b64 s[32:33], 1, s22
        s_lshl_b32 s21, s4, 5
        s_mov_b64 s[34:35], s[32:33]
        s_waitcnt vmcnt(0)
        s_atomic_add_x2 s[34:35], s[72:73], s21 glc
        ''')
        self.lds_set(L_INIT, '1', 9, 12)
        a('''
        s_waitcnt lgkmcnt(0)
        s_add_u32 s34, s34, s32
        s_addc_u32 s35, s35, s33
        v_mov_b32 v10, s34
        v_mov_b32 v11, s35
        v_sad_u8 v12, v10, 0, 0
        v_sad_u8 v12, v11, 0, v12
        s_nop 0
        v_readfirstlane_b32 s36, v12
        ''')
        self.stamp(16)
        a('''
        s_nop 3
        s_cmp_lg_u32 s36, 32
        s_cbranch_scc1 L_A2_mb
        s_or_b32 s34, s34, s35
        s_and_b32 s34, s34, 0xdfdfdfdf
        s_cmp_lg_u32 s34, 0
        s_cselect_b32 s34, 0x10001, 1
        s_mov_b32 s35, s34
        s_atomic_add s35, s[72:73], 0x8 glc
        s_waitcnt lgkmcnt(0)
        s_add_u32 s35, s35, s34
        ''')
        toppoll(0x8, 'a')
        a('''
        s_lshr_b32 s35, s35, 16
        s_cmp_lg_u32 s35, 0
        s_cselect_b32 s35, 2, 1
        ''')
        fanout(0)
        a.label('L_A2_mb')
        self.mbpoll_(0)
        a('s_cmp_eq_u32 s33, 1\ns_cselect_b32 s45, 1, 2')
        if self.opt.get('force_slow'): a('s_mov_b32 s45, 2')
        a('s_cmp_eq_u32 s45, 1\ns_cbranch_scc1 L_A2_fast')
        init_intra('sc1')
        a('''
        s_mov_b32 s34, 1
        s_lshl_b32 s21, s4, 5
        s_add_u32 s21, s21, 16
        s_waitcnt vmcnt(0)
        s_atomic_add s34, s[72:73], s21 glc
        s_waitcnt lgkmcnt(0)
        s_cmp_lg_u32 s34, 31
        s_cbranch_scc1 L_A2_mb2
        s_mov_b32 s35, 1
        s_atomic_add s35, s[72:73], 0x18 glc
        s_waitcnt lgkmcnt(0)
        s_add_u32 s35, s35, 1
        ''')
        toppoll(0x18, 'b')
        a('s_mov_b32 s35, 1')
        fanout(1)
        a.label('L_A2_mb2')
        self.mbpoll_(1, sleep=2)
        a.label('L_A2_fast')
        self.lds_set(L_MODE, 's45', 9, 10)
        self.stamp(13)
        self.red_addrs()
        a('''
        s_mov_b32 s96, 0
        s_cmp_ge_u32 s5, 20
        s_cbranch_scc1 L_TAIL
        s_lshl_b32 s20, s5, 7
        s_add_u32 s20, s20, %d
        s_add_u32 s21, s20, 15360
        s_add_u32 s22, s20, 30720
        s_add_u32 s23, s20, 46080
        v_lshlrev_b32 v25, 2, v24
        v_add_u32 v26, 5120, v25
        v_add_u32 v27, 10240, v25
        s_lshl_b32 s32, s5, 6
        v_lshlrev_b32 v28, 1, v24
        buffer_load_ushort v30, v28, s[12:15], s32 offen
        ''' % OFF_MOD)
        loads = []
        for rs in range(4):
            loads.append('buffer_load_dword v%d, v26, s[16:19], s%d offen' % (4 + rs, 20 + rs))
            loads.append('buffer_load_dword v%d, v26, s[16:19], s%d offen offset:2560' % (8 + rs, 20 + rs))
            loads.append('buffer_load_dword v%d, v27, s[16:19], s%d offen' % (12 + rs, 20 + rs))
            loads.append('buffer_load_dword v%d, v27, s[16:19], s%d offen offset:2560' % (16 + rs, 20 + rs))
        self.poll(loads, list(range(4, 20)), 20, sleep=8)
        for n, dst in enumerate((31, 32, 33, 34)):
            b = 4 + 4 * n
            a('v_add_f32 v%d, v%d, v%d\nv_add_f32 v%d, v%d, v%d\nv_add_f32 v%d, v%d, v%d' % (b, b, b + 1, b + 2, b + 2, b + 3, dst, b, b + 2))
            self.rnd(dst, dst)
        a('''
        v_add_f32 v33, 1.0, v33
        v_cvt_pk_bf16_f32 v33, v33, v32
        v_min_u32 v33, -2, v33
        v_lshlrev_b32 v30, 16, v30
        s_mul_i32 s21, s4, 2560
        s_lshl_b32 s22, s5, 7
        s_add_u32 s21, s21, s22
        s_add_u32 s21, s21, %d
        ''' % OFF_C)
        self.store_intra(['buffer_store_dword v33, v38, s[16:19], s21 offen'])
        a('s_branch L_TAIL')
        self.stl_a2 = list(self.stlist)

    def red_addrs(self):
        self.a('''
        v_and_b32 v24, 7, v0
        v_lshlrev_b32 v24, 2, v24
        v_bfe_u32 v25, v0, 4, 1
        v_lshl_add_u32 v24, v25, 1, v24
        v_lshrrev_b32 v25, 5, v0
        v_add_u32 v24, v24, v25                  ; col in block = 4c + PI[q]
        v_and_b32 v27, 8, v0
        v_cmp_eq_u32 vcc, 0, v27
        v_mov_b32 v27, %s
        v_lshlrev_b32 v38, 2, v24
        v_cndmask_b32 v38, v27, v38, vcc         ; line store offset (dword)
        v_lshlrev_b32 v39, 1, v24
        v_cndmask_b32 v39, v27, v39, vcc         ; out store offset (2B)
        v_lshrrev_b32 v37, 3, v0
        v_mul_u32_u24 v37, 15360, v37
        v_and_b32 v25, 3, v0
        v_lshl_add_u32 v37, v25, 4, v37
        v_bfe_u32 v25, v0, 2, 1
        v_lshl_add_u32 v37, v25, 7, v37          ; gather24 lane offset
        ''' % OOB)

    def roles(self):
        self.a('''
        s_mul_i32 s77, s5, 26
        s_lshr_b32 s77, s77, 8
        s_mul_i32 s76, s77, 10
        s_sub_u32 s76, s5, s76              ; cbo
        s_mul_i32 s80, s5, 52
        s_lshr_b32 s80, s80, 8              ; q5 = i/5
        s_mul_i32 s78, s80, 5
        s_sub_u32 s78, s5, s78              ; rs
        s_and_b32 s79, s80, 1               ; m
        s_lshr_b32 s80, s80, 1              ; cb
        ''')

    def a3_wave(self):
        a = self.a; vm = VM(a)
        a.label('L_A3')
        self.stamp_begin()
        a('''
        s_setprio 3
        s_barrier
        s_cmp_ge_u32 s5, 30
        s_cbranch_scc1 L_end
        ''')
        if self.opt.get('dry', 1):
            a('s_mov_b32 s96, 1\ns_branch L_TAIL')
        else:
            a('s_mov_b32 s96, 3\ns_branch L_TAIL')
        a.label('L_A3_stage')
        self.roles()
        a('''
        s_cmp_eq_u32 s79, 0
        s_cselect_b32 s8, s60, s62
        s_cselect_b32 s9, s61, s63
        s_mov_b32 s10, %d
        s_mov_b32 s11, 0x20000
        ''' % (640 * 3072))
        self.srd(12, 56, 6144 * 1280)
        self.srd(24, 64, 1536 * 1280)
        a('''
        v_lshrrev_b32 v3, 3, v0
        v_and_b32 v4, 7, v0
        v_mul_u32_u24 v1, 3072, v3
        v_lshl_add_u32 v1, v4, 4, v1
        v_mul_u32_u24 v2, 1280, v3
        v_lshl_add_u32 v2, v4, 4, v2
        ''')
        self.lds_spin(L_MODE, None, 4, 5, sleep=8)
        a('''
        s_mov_b32 s45, s93
        s_mul_i32 s33, s4, %d
        s_mul_i32 s36, s77, %d
        s_add_u32 s33, s33, s36
        s_lshl_b32 s36, s76, 7
        s_add_u32 s33, s33, s36             ; wo tile base
        s_mul_i32 s34, s78, %d
        s_mul_i32 s35, s4, 384
        s_add_u32 s34, s34, s35
        s_lshl_b32 s35, s80, 7
        s_add_u32 s34, s34, s35             ; gate/up tile base
        s_mul_i32 s35, s4, %d
        s_mul_i32 s36, s77, %d
        s_add_u32 s35, s35, s36
        s_lshl_b32 s36, s76, 7
        s_add_u32 s35, s35, s36             ; down tile base
        ''' % (768 * 1280, 256 * 1280, 128 * 3072, 192 * 1280, 64 * 1280))
        def dma(n, lbase, sbase, vo, srd, rstride):
            for t in range(n):
                vm.throttle(self.adepth)
                a('s_mov_b32 m0, %d\ns_add_u32 s36, s%d, %d\nbuffer_load_dwordx4 v%d, s[%d:%d], s36 offen nt lds' % (lbase + 1024 * t, sbase, t * 8 * rstride, vo, srd, srd + 3))
                vm.issue()
        dma(32, L_WO, 33, 2, 12, 1280)
        dma(16, L_WG, 34, 1, 8, 3072)
        dma(8, L_WD, 35, 2, 24, 1280)
        vm.all()
        self.lds_set(L_STAGE, '1', 4, 5)
        self.stamp(21 - 2)
        self.stl_a3 = list(self.stlist)
        a('s_branch L_T_pre')

    def nat_gemv(self, n, W, actaddr, lbase_imm, acc, areg):
        a = self.a
        R = 4
        for m in range(min(n, R)):
            a('ds_read_b128 v[%d:%d], v%d offset:%d' % (areg + 4 * m, areg + 4 * m + 3, actaddr, lbase_imm + 64 * m))
        issued = min(n, R)
        for m in range(n):
            a('s_waitcnt lgkmcnt(%d)' % (issued - 1 - m))
            c = '0' if m == 0 else 'v[%d:%d]' % (acc, acc + 3)
            ar = areg + 4 * (m % R)
            a('v_mfma_f32_16x16x32_bf16 v[%d:%d], v[%d:%d], v[%d:%d], %s' % (acc, acc + 3, ar, ar + 3, W + 4 * m, W + 4 * m + 3, c))
            if issued < n:
                a('ds_read_b128 v[%d:%d], v%d offset:%d' % (ar, ar + 3, actaddr, lbase_imm + 64 * issued)); issued += 1
        a('s_nop 7\nv_min_u32 v%d, -2, v%d' % (acc, acc))

    def tstamp(self, idx):
        if not self.stamps: return
        if self.opt.get('minst') and idx != 12: return
        r = self.STPOOL[5 + len(self.tl)]
        self.tl.append((idx, r))
        self.a('s_memrealtime s[90:91]\ns_waitcnt lgkmcnt(0)\ns_mov_b32 s%d, s90' % r)

    def tail(self):
        a = self.a
        self.tl = []
        a.label('L_TAIL')
        a('s_setprio %d' % self.opt.get('tp', 1))
        a('''
        s_cmp_ge_u32 s5, 30
        s_cbranch_scc1 L_T_end
        s_sub_u32 s81, s3, 8                ; a
        ''')
        self.roles()
        self.srd(28, 70, 1280)
        self.red_addrs()
        WO, WG, WD = 40, 72, 88
        a('''
        s_lshl_b32 s20, s77, 8
        s_lshl_b32 s21, s81, 6
        s_add_u32 s20, s20, s21
        v_add_u32 v4, s20, v0                    ; R' = 256 rb + 64 a + l
        v_mul_u32_u24 v5, 1366, v4
        v_lshrrev_b32 v5, 18, v5                 ; head in group
        v_mul_u32_u24 v5, 5376, v5
        v_lshl_add_u32 v96, v4, 2, v5            ; H1 gather lane offset
        s_mul_i32 s82, s4, 24576
        s_add_u32 s82, s82, %d                   ; B_o group base
        s_add_u32 s83, s82, 4608
        s_lshl_b32 s20, s81, 7
        v_lshl_add_u32 v97, v0, 1, s20           ; L_OB write addr (2B): (64a + l)*2
        v_lshrrev_b32 v98, 4, v0
        v_lshlrev_b32 v98, 4, v98                ; act read addr: 16 g
        s_lshl_b32 s20, s81, 8
        v_add_u32 v99, s20, v98                  ; + a*256 (L_H2)
        s_lshl_b32 s21, s81, 7
        v_add_u32 v100, s21, v98                 ; + a*128 (L_GU)
        v_lshl_add_u32 v101, v0, 2, s20          ; L_H2 write addr
        v_lshl_add_u32 v102, v0, 1, s21          ; L_GU write addr
        v_cmp_gt_u32 vcc, 16, v0
        v_mov_b32 v5, %s
        v_lshlrev_b32 v103, 2, v0                ; lane*4
        v_cndmask_b32 v104, v5, v103, vcc        ; result store offset (lanes<16)
        v_lshlrev_b32 v105, 4, v0                ; lane*16
        v_lshlrev_b32 v106, 3, v0                ; lane*8
        s_mul_i32 s84, s4, 3
        s_add_u32 s84, s84, s77
        s_mul_i32 s84, s84, 5120
        s_lshl_b32 s20, s76, 9
        s_add_u32 s84, s84, s20
        s_lshl_b32 s20, s81, 7
        s_add_u32 s84, s84, s20                  ; offset within B_x / B_f
        s_lshl_b32 s20, s81, 6
        s_add_u32 s85, s84, %d                   ; B_f publish
        s_add_u32 s84, s84, %d                   ; B_x publish
        s_mul_i32 s86, s4, 2560
        s_lshl_b32 s21, s78, 9
        s_add_u32 s87, s86, s21
        s_add_u32 s88, s87, %d                   ; B_c own rows
        s_add_u32 s87, s87, %d                   ; B_h own rows
        s_add_u32 s86, s86, %d                   ; B_h group base
        s_mul_i32 s89, s4, 7680
        s_add_u32 s89, s89, %d                   ; B_g group base
        s_mul_i32 s48, s79, 5
        s_add_u32 s48, s48, s78
        s_mul_i32 s48, s48, 768
        s_lshl_b32 s21, s80, 8
        s_add_u32 s48, s48, s21
        s_add_u32 s48, s48, s20
        s_add_u32 s48, s48, s89                  ; B_g publish
        s_lshl_b32 s49, s77, 8
        s_add_u32 s49, s49, s89                  ; B_g gather (g)
        s_add_u32 s50, s49, 3840                 ; (u)
        ''' % (OFF_O, OOB, OFF_F, OFF_X, OFF_C, OFF_H, OFF_H, OFF_G))
        a('''
        s_mov_b64 s[52:53], -1
        s_mov_b64 s[54:55], 1
        s_lshr_b32 s66, s5, 8
        s_cmp_eq_u32 s81, 2
        s_cselect_b32 s20, 1, 0
        s_cmp_lt_u32 s5, 20
        s_cselect_b32 s21, 1, 0
        s_and_b32 s58, s20, s21
        s_and_b32 s21, s5, 7
        s_cmp_eq_u32 s21, s4
        s_cselect_b32 s21, 1, 0
        s_and_b32 s59, s58, s21
        s_cmp_eq_u32 s96, 3
        s_cbranch_scc1 L_A3_stage
        s_cmp_lg_u32 s96, 1
        s_cbranch_scc1 L_T_pre
        v_mov_b32 v110, 0
        v_mov_b32 v111, 0
        v_mov_b32 v112, 0
        v_mov_b32 v113, 0
        v_mov_b32 v5, 0
        s_mov_b64 s[52:53], 0
        s_mov_b64 s[54:55], 0
        s_or_b32 s66, s5, 0x40000
        s_or_b32 s58, s5, 64
        s_or_b32 s59, s5, 64
        s_mov_b32 s45, 1
        s_mov_b64 exec, 0
        s_branch L_T_pass
        L_T_pre:
        ''')
        self.lds_spin(L_STAGE, None, 4, 5, sleep=8)
        a('''
        v_lshrrev_b32 v4, 4, v0
        v_bfe_u32 v5, v0, 2, 2
        v_lshl_add_u32 v4, v4, 3, v5
        v_lshlrev_b32 v4, 7, v4
        v_and_b32 v5, 3, v0
        v_lshl_add_u32 v4, v5, 3, v4
        s_lshl_b32 s20, s81, 5
        v_add_u32 v4, s20, v4
        v_add_u32 v5, %d, v4
        ''' % L_WG)
        a('v_add_u32 v4, %d, v4' % L_WO)
        for m in range(8):
            a('ds_read_b64_tr_b16 v[%d:%d], v4 offset:%d' % (WO + 4 * m, WO + 4 * m + 1, 4096 * m))
            a('ds_read_b64_tr_b16 v[%d:%d], v4 offset:%d' % (WO + 4 * m + 2, WO + 4 * m + 3, 4096 * m + 512))
            if m % 4 == 3: a('s_waitcnt lgkmcnt(0)')
        for m in range(4):
            a('ds_read_b64_tr_b16 v[%d:%d], v5 offset:%d' % (WG + 4 * m, WG + 4 * m + 1, 4096 * m))
            a('ds_read_b64_tr_b16 v[%d:%d], v5 offset:%d' % (WG + 4 * m + 2, WG + 4 * m + 3, 4096 * m + 512))
        a('s_waitcnt lgkmcnt(0)')
        for m in range(2):
            a('ds_read_b64_tr_b16 v[%d:%d], v5 offset:%d' % (WD + 4 * m, WD + 4 * m + 1, 16384 + 4096 * m))
            a('ds_read_b64_tr_b16 v[%d:%d], v5 offset:%d' % (WD + 4 * m + 2, WD + 4 * m + 3, 16384 + 4096 * m + 512))
        self.poll(['buffer_load_dwordx2 v[108:109], v106, s[16:19], s88 offen'], [108, 109], 20, sleep=8)
        a('''
        v_lshlrev_b32 v110, 16, v108
        v_and_b32 v111, 0xffff0000, v108
        v_lshlrev_b32 v112, 16, v109
        v_and_b32 v113, 0xffff0000, v109
        ''')
        self.lds_spin(L_CNTPV, 8, 4, 5, sleep=1)
        a.label('L_T_pass')
        def lf(b):
            return ['buffer_load_dword v%d, v96, s[16:19], s%d offen offset:%d' % (b + jj, 82 if jj < 6 else 83, (jj if jj < 6 else jj - 6) * 768) for jj in range(8)]
        def post(b):
            a('v_pk_add_f32 v[4:5], v[%d:%d], v[%d:%d]\nv_pk_add_f32 v[8:9], v[%d:%d], v[%d:%d]' % (b, b + 1, b + 2, b + 3, b + 4, b + 5, b + 6, b + 7))
        KI, SI = self.opt.get('ki', 2), self.opt.get('si', 4)
        self.mpoll(lf, 8, post, KI, SI)
        self.tstamp(5)
        a('''
        v_pk_add_f32 v[4:5], v[4:5], v[8:9]
        v_add_f32 v4, v4, v5
        v_cvt_pk_bf16_f32 v4, v4, v4
        ds_write_b16 v97, v4 offset:%d
        v_mov_b32 v5, %d
        v_mov_b32 v6, 1
        s_waitcnt lgkmcnt(0)
        s_mov_b64 exec, s[54:55]
        ds_add_u32 v5, v6
        s_mov_b64 exec, s[52:53]
        ''' % (L_OB, L_CNTO))
        self.lds_spin(L_CNTO, 4, 6, 5, sleep=0, init='s66')
        self.nat_gemv(8, WO, 98, L_OB, 4, 114)
        a('buffer_store_dword v4, v104, s[16:19], s84 offen sc1')
        self.tstamp(6)
        a('''
        s_cmp_eq_u32 s58, 0
        s_cbranch_scc1 L_T_h2c
        ''')
        self.gather24(OFF_X)
        self.rnd(4, 4)
        a('v_mul_f32 v4, v31, v4')
        self.rnd(4, 4)
        a('v_add_f32 v4, v30, v4')
        self.rnd(32, 4)
        a('s_lshl_b32 s21, s5, 7\ns_add_u32 s21, s21, s86')
        self.store_intra(['buffer_store_dword v32, v38, s[16:19], s21 offen'])
        self.tstamp(8)
        a.label('L_T_h2c')
        def lf(b):
            return ['buffer_load_dwordx4 v[%d:%d], v105, s[16:19], s86 offen' % (b, b + 3),
                    'buffer_load_dwordx4 v[%d:%d], v105, s[16:19], s86 offen offset:1024' % (b + 4, b + 7),
                    'buffer_load_dwordx2 v[%d:%d], v106, s[16:19], s86 offen offset:2048' % (b + 8, b + 9),
                    'buffer_load_dwordx2 v[%d:%d], v106, s[16:19], s87 offen' % (b + 10, b + 11)]
        def post(b):
            a('v_readfirstlane_b32 s20, v%d\nv_mov_b32 v14, v%d\nv_mov_b32 v15, v%d' % (b, b + 10, b + 11))
            for k in range(10): a('v_subrev_f32 v%d, s20, v%d' % (4 + k, b + k))
        self.mpoll(lf, 12, post, KI, SI)
        self.tstamp(9)
        a('''
        v_pk_mul_f32 v[16:17], v[4:5], v[4:5]
        v_pk_add_f32 v[18:19], v[4:5], v[6:7]
        v_pk_fma_f32 v[16:17], v[6:7], v[6:7], v[16:17]
        v_pk_add_f32 v[18:19], v[18:19], v[8:9]
        v_pk_fma_f32 v[16:17], v[8:9], v[8:9], v[16:17]
        v_pk_add_f32 v[18:19], v[18:19], v[10:11]
        v_pk_fma_f32 v[16:17], v[10:11], v[10:11], v[16:17]
        v_pk_add_f32 v[18:19], v[18:19], v[12:13]
        v_pk_fma_f32 v[16:17], v[12:13], v[12:13], v[16:17]
        v_add_f32 v18, v18, v19
        v_add_f32 v16, v16, v17
        s_nop 1
        v_permlane32_swap_b32 v18, v16
        v_add_f32 v18, v18, v16
        ''')
        for r in (8, 4, 2, 1):
            a('s_nop 1\nv_add_f32_dpp v18, v18, v18 row_ror:%d row_mask:0xf bank_mask:0xf' % r)
        a('''
        v_mov_b32 v16, v18
        s_nop 1
        v_permlane16_swap_b32 v18, v16
        v_add_f32 v18, v18, v16
        v_mul_f32 v18, %s, v18
        s_nop 0
        v_readlane_b32 s21, v18, 0
        v_readlane_b32 s22, v18, 32
        s_nop 1
        v_mov_b32 v16, s21
        v_mov_b32 v17, s22
        v_fma_f32 v17, -v16, v16, v17
        v_max_f32 v17, 0, v17
        v_add_f32 v16, s20, v16
        ''' % f32(1.0 / 640))
        self.rnd(17, 17)
        a('v_add_f32 v17, %s, v17' % f32(1e-5))
        self.rnd(17, 17)
        a('v_sqrt_f32 v17, v17')
        self.rnd(16, 16)
        self.rnd(17, 17)
        a('v_rcp_f32 v18, v17')
        a('v_sub_f32 v14, v14, v16\nv_sub_f32 v15, v15, v16')
        a('v_cvt_pk_bf16_f32 v19, v14, v15\nv_lshlrev_b32 v14, 16, v19\nv_and_b32 v15, 0xffff0000, v19')
        a('''
        v_mul_f32 v4, v14, v18
        v_mul_f32 v5, v15, v18
        v_fma_f32 v6, -v4, v17, v14
        v_fma_f32 v7, -v5, v17, v15
        v_fma_f32 v14, v6, v18, v4
        v_fma_f32 v15, v7, v18, v5
        v_cvt_pk_bf16_f32 v19, v14, v15
        v_lshlrev_b32 v14, 16, v19
        v_and_b32 v15, 0xffff0000, v19
        v_mul_f32 v14, v14, v110
        v_mul_f32 v15, v15, v112
        v_cvt_pk_bf16_f32 v19, v14, v15
        v_lshlrev_b32 v14, 16, v19
        v_and_b32 v15, 0xffff0000, v19
        v_add_f32 v14, v14, v111
        v_add_f32 v15, v15, v113
        v_cvt_pk_bf16_f32 v19, v14, v15
        ds_write_b32 v101, v19 offset:%d
        s_waitcnt lgkmcnt(0)
        ''' % L_H2)
        self.nat_gemv(4, WG, 99, L_H2, 4, 114)
        self.store_intra(['buffer_store_dword v4, v104, s[16:19], s48 offen'])
        self.tstamp(10)
        def lf(b):
            r = []
            for rs in range(5):
                r.append('buffer_load_dword v%d, v103, s[16:19], s49 offen offset:%d' % (b + 2 * rs, rs * 768))
                r.append('buffer_load_dword v%d, v103, s[16:19], s50 offen offset:%d' % (b + 1 + 2 * rs, rs * 768))
            return r
        def post(b):
            a('''
            v_pk_add_f32 v[8:9], v[%d:%d], v[%d:%d]
            v_pk_add_f32 v[12:13], v[%d:%d], v[%d:%d]
            v_pk_add_f32 v[8:9], v[8:9], v[%d:%d]
            ''' % (b, b + 1, b + 2, b + 3, b + 4, b + 5, b + 6, b + 7, b + 8, b + 9))
        self.mpoll(lf, 10, post, KI, SI)
        a('''
        v_pk_add_f32 v[8:9], v[8:9], v[12:13]
        v_cvt_pk_bf16_f32 v10, v8, v9
        v_lshlrev_b32 v8, 16, v10
        v_and_b32 v9, 0xffff0000, v10
        v_mul_f32 v8, v8, v9
        v_cvt_pk_bf16_f32 v8, v8, v8
        ds_write_b16 v102, v8 offset:%d
        s_waitcnt lgkmcnt(0)
        ''' % L_GU)
        self.nat_gemv(2, WD, 100, L_GU, 4, 114)
        a('buffer_store_dword v4, v104, s[16:19], s85 offen sc1')
        self.tstamp(11)
        a('''
        s_cmp_eq_u32 s59, 0
        s_cbranch_scc1 L_T_end
        ''')
        self.gather24(OFF_F)
        self.rnd(4, 4)
        a('v_mul_f32 v4, v34, v4')
        self.rnd(4, 4)
        a('''
        v_add_f32 v4, v32, v4
        v_cvt_pk_bf16_f32 v4, v4, v4
        s_lshl_b32 s21, s5, 6
        buffer_store_short v4, v39, s[28:31], s21 offen
        ''')
        self.tstamp(12)
        a('''
        s_cmp_lg_u32 s96, 1
        s_cbranch_scc1 L_T_end
        s_mov_b64 exec, -1
        s_mov_b32 s96, 2
        s_mov_b64 s[52:53], -1
        s_mov_b64 s[54:55], 1
        s_lshr_b32 s66, s5, 8
        s_lshr_b32 s58, s5, 8
        s_lshr_b32 s59, s5, 8
        s_branch L_A3_stage
        ''')
        a.label('L_T_end')
        if self.stamps:
            for w, lst in ((8, self.stl_a0), (9, self.stl_a1), (10, self.stl_a2 + self.tl), (11, self.stl_a3)):
                l = a.newlabel('SFL')
                a('s_cmp_lg_u32 s3, %d\ns_cbranch_scc1 %s' % (w, l))
                self.stlist = lst
                self.stamp_flush()
                a('s_endpgm')
                a.label(l)
        a.label('L_end')
        a('s_endpgm')

    def build(self):
        self.prologue()
        self.s_wave()
        self.a0_wave()
        self.a1_wave()
        self.a2_wave()
        self.a3_wave()
        self.tail()
        s = wrap(self.a.text(), 256, 768, LDS_BYTES, 168)
        s = s.replace('  .amdhsa_system_sgpr_workgroup_id_x 1\n', '  .amdhsa_system_sgpr_workgroup_id_x 1\n  .amdhsa_float_denorm_mode_32 3\n')
        return s

if __name__ == '__main__':
    import argparse
    ap = argparse.ArgumentParser()
    ap.add_argument('-o', default='k.s')
    ap.add_argument('--stamps', action='store_true')
    ap.add_argument('--opt', default='')
    x = ap.parse_args()
    kw = {}
    for kv in filter(None, x.opt.split(',')):
        k, v = kv.split('=')
        try: v = int(v)
        except ValueError: pass
        kw[k] = v
    kw['v2'] = 1
    open(x.o, 'w').write(Gen2(stamps=x.stamps, **kw).build())
```

```python
import sys, struct
from asmgen import *

OFF_MOD = 0x0
OFF_Q   = 0x10000
OFF_ST  = 0x40000
OFF_O   = 0x50000
OFF_A   = 0x200000
OFF_X   = 0x300000
OFF_H   = 0x310000
OFF_G   = 0x340000
OFF_F   = 0x360000
OFF_MB  = 0x410000
OFF_STAMP = 128 << 20
WS_BYTES = 268435456
OOB = 0x7ffffff0
L_FLAGQ, L_CNTST, L_FLAGP, L_MODE, L_INIT, L_CNTPV, L_FLAGA, L_INIT2 = 0, 4, 8, 12, 16, 20, 24, 28
L_Q = 256
L_STAT = 1024
L_GSTAT = 1152
L_P = 2048
L_S = 4096
L_H = 5120
L_H2 = 5632
L_GU = 6144
LDS_BYTES = 8192

def f32(x):
    return '0x%08x' % struct.unpack('<I', struct.pack('<f', x))[0]

LOG2E = 1.4426950408889634
L2E_HI = struct.unpack('<f', struct.pack('<f', LOG2E))[0]
L2E_LO = LOG2E - L2E_HI
LN2 = 0.6931471805599453

class VM:
    def __init__(self, a):
        self.a = a; self.n = 0; self.done = 0
    def issue(self):
        self.n += 1; return self.n - 1
    def wait(self, idx):
        if idx < self.done: return
        cnt = self.n - 1 - idx
        assert cnt <= 63
        self.a('s_waitcnt vmcnt(%d)' % cnt)
        self.done = idx + 1
    def throttle(self, depth):
        if self.n - self.done >= depth:
            self.wait(self.n - depth)
    def all(self):
        if self.done < self.n:
            self.a('s_waitcnt vmcnt(0)'); self.done = self.n

class Gen:
    def __init__(self, stamps=False, depth=4, qk_after=6, adepth=6, gupol='', **kw):
        self.a = Asm(); self.stamps = stamps; self.depth = depth; self.qk_after = qk_after
        self.adepth = adepth; self.gupol = gupol
        self.opt = kw

    def srd(self, d, p, size):
        self.a('s_mov_b32 s%d, s%d\ns_mov_b32 s%d, s%d\ns_mov_b32 s%d, %d\ns_mov_b32 s%d, 0x20000' % (d, p, d + 1, p + 1, d + 2, size, d + 3))

    STPOOL = [37, 38, 39, 40, 41, 42, 43, 44, 47, 98, 99, 100, 101]
    def stamp_begin(self):
        self.stlist = []
        if self.stamps:
            for r in self.STPOOL: self.a('s_mov_b32 s%d, 0' % r)
    def stamp(self, idx, vm=None, t0=None, t1=None):
        if not self.stamps: return
        r = self.STPOOL[len(self.stlist)]
        self.stlist.append((idx, r))
        self.a('s_memrealtime s[90:91]\ns_waitcnt lgkmcnt(0)\ns_mov_b32 s%d, s90' % r)
    def stamp_flush(self):
        if not self.stamps: return
        a = self.a
        if self.opt.get('dbgst'):
            for idx, r in self.stlist:
                if idx == 12:
                    l = a.newlabel('DS')
                    a('s_cmp_eq_u32 s%d, 0\ns_cbranch_scc1 %s\ns_atomic_umax s%d, s[72:73], 0x3c' % (r, l, r))
                    a.label(l)
                if idx == 0:
                    l = a.newlabel('DS')
                    a('s_cmp_ge_u32 s2, 8\ns_cbranch_scc1 %s\ns_atomic_umax s%d, s[72:73], 0x28\ns_not_b32 s92, s%d\ns_atomic_umax s92, s[72:73], 0x2c' % (l, r, r))
                    a.label(l)
            return
        a('s_lshl_b32 s92, s2, 8\ns_add_u32 s92, s92, %d\nv_mov_b32 v1, 0\nv_mov_b32 v3, 0\ns_mov_b64 exec, 1' % OFF_STAMP)
        for idx, r in self.stlist:
            a('v_mov_b32 v2, s%d\nbuffer_store_dwordx2 v[2:3], v1, s[16:19], s92 offen offset:%d\ns_nop 1' % (r, idx * 8))

    def rnd(self, dst, src, tmp=None):
        t = dst if tmp is None else tmp
        self.a('v_cvt_pk_bf16_f32 v%d, v%d, v%d\nv_and_b32 v%d, 0xffff0000, v%d' % (t, src, src, dst, t))

    def wave_reduce(self, v, t, op):
        a = self.a
        for r in (8, 4, 2, 1):
            a('s_nop 1\nv_%s_f32_dpp v%d, v%d, v%d row_ror:%d row_mask:0xf bank_mask:0xf' % (op, v, v, v, r))
        for sw in ('16', '32'):
            a('v_mov_b32 v%d, v%d\ns_nop 1\nv_permlane%s_swap_b32 v%d, v%d\nv_%s_f32 v%d, v%d, v%d' % (t, v, sw, v, t, op, v, v, t))

    def red8(self, r):
        a = self.a
        a('''
        s_nop 1
        v_permlane32_swap_b32 v%d, v%d
        v_permlane32_swap_b32 v%d, v%d
        v_add_f32 v%d, v%d, v%d
        v_add_f32 v%d, v%d, v%d
        s_nop 1
        v_permlane16_swap_b32 v%d, v%d
        v_add_f32 v%d, v%d, v%d
        s_nop 1
        v_add_f32_dpp v%d, v%d, v%d row_ror:8 row_mask:0xf bank_mask:0xf
        ''' % (r[0], r[1], r[2], r[3], r[0], r[0], r[1], r[2], r[2], r[3], r[0], r[2], r[0], r[0], r[2], r[0], r[0], r[0]))

    def exp(self, dst, x, t1, t2):
        self.a('''
        v_mul_f32 v%d, %s, v%d
        v_fma_f32 v%d, v%d, s94, -v%d
        v_fmac_f32 v%d, %s, v%d
        v_exp_f32 v%d, v%d
        v_mul_f32 v%d, %s, v%d
        v_fma_f32 v%d, v%d, v%d, v%d
        ''' % (t1, f32(L2E_HI), x, t2, x, t1, t2, f32(L2E_LO), x, t1, t1, t2, f32(LN2), t2, dst, t1, t2, t1))

    def div(self, dst, n, d, t1, t2):
        self.a('''
        v_rcp_f32 v%d, v%d
        s_nop 0
        v_mul_f32 v%d, v%d, v%d
        v_fma_f32 v%d, -v%d, v%d, v%d
        v_fma_f32 v%d, v%d, v%d, v%d
        ''' % (t1, d, t2, n, t1, dst, t2, d, n, dst, dst, t1, t2))

    def lds_spin(self, addr, val, vt, va, sleep=1, ge=False, out=None, init='0'):
        a = self.a
        l = a.newlabel('SP')
        a('v_mov_b32 v%d, %d\ns_mov_b32 s95, %s' % (va, addr, init))
        a.label(l)
        a('ds_read_b32 v%d, v%d\ns_waitcnt lgkmcnt(0)\nv_readfirstlane_b32 s93, v%d' % (vt, va, vt))
        l2 = a.newlabel('SPD')
        if val is None:
            a('s_cmp_lg_u32 s93, 0')
        else:
            a('s_cmp_eq_u32 s93, %d' % val)
        a('s_cbranch_scc1 %s' % l2)
        if sleep: a('s_sleep %d' % sleep)
        a('s_add_u32 s95, s95, 1\ns_cmp_lt_u32 s95, 0x40000\ns_cbranch_scc1 %s' % l)
        a.label(l2)

    def lds_set(self, addr, val, vt, va):
        self.a('v_mov_b32 v%d, %d\nv_mov_b32 v%d, %s\nds_write_b32 v%d, v%d' % (va, addr, vt, val, va, vt))

    def store_intra(self, instrs):
        a = self.a
        lf = a.newlabel('SF'); lj = a.newlabel('SJ')
        a('s_cmp_eq_u32 s45, 1\ns_cbranch_scc1 %s' % lf)
        for i in instrs: a(i + ' sc1')
        a('s_branch %s' % lj)
        a.label(lf)
        for i in instrs: a(i)
        a.label(lj)

    def poll(self, loads, regs, vt, sleep=0):
        a = self.a
        l = a.newlabel('PL')
        a('s_mov_b32 s95, 0')
        a.label(l)
        for i in loads: a(i + ' sc1')
        a('s_waitcnt vmcnt(0)')
        rs = list(regs)
        if len(rs) == 1:
            a('v_cmp_eq_u32 vcc, -1, v%d' % rs[0])
        else:
            if len(rs) == 2:
                a('v_max_u32 v%d, v%d, v%d' % (vt, rs[0], rs[1])); rest = []
            else:
                a('v_max3_u32 v%d, v%d, v%d, v%d' % (vt, rs[0], rs[1], rs[2])); rest = rs[3:]
            while rest:
                if len(rest) == 1:
                    a('v_max_u32 v%d, v%d, v%d' % (vt, vt, rest[0])); rest = []
                else:
                    a('v_max3_u32 v%d, v%d, v%d, v%d' % (vt, vt, rest[0], rest[1])); rest = rest[2:]
            a('v_cmp_eq_u32 vcc, -1, v%d' % vt)
        l2 = a.newlabel('PD')
        a('s_cbranch_vccz %s' % l2)
        if sleep: a('s_sleep %d' % sleep)
        a('s_add_u32 s95, s95, 1\ns_cmp_lt_u32 s95, 0x10000\ns_cbranch_scc1 %s' % l)
        a.label(l2)

    def sel_masks(self, m, t1, t2):
        a = self.a
        a('''
        v_and_b32 v%d, 1, v0
        v_lshlrev_b32 v%d, 4, v%d
        v_mov_b32 v%d, 0xffff
        v_lshlrev_b32 v%d, v%d, v%d
        v_bfe_u32 v%d, v0, 1, 2
        ''' % (t1, t1, t1, t2, t1, t1, t2, t2))
        for k in range(4):
            a('v_cmp_eq_u32 vcc, %d, v%d\ns_nop 1\nv_cndmask_b32 v%d, 0, v%d, vcc' % (k, t2, m + k, t1))

    def pv_addr(self, dst, t1, base):
        self.a('''
        v_lshrrev_b32 v%d, 4, v0
        v_bfe_u32 v%d, v0, 3, 1
        v_lshl_add_u32 v%d, v%d, 2, v%d
        v_lshlrev_b32 v%d, 2, v%d
        v_add_u32 v%d, %s, v%d
        ''' % (dst, t1, dst, t1, dst, dst, dst, dst, base, dst))

    def vshape_offsets(self, v1, v3, t1, t2, rowstride):
        self.a('''
        v_lshrrev_b32 v%d, 4, v0
        v_and_b32 v%d, 15, v0
        v_mul_u32_u24 v%d, %d, v%d
        v_lshl_add_u32 v%d, v%d, 4, v%d
        v_bfe_u32 v%d, v0, 3, 1
        v_lshl_add_u32 v%d, v%d, 2, v%d
        v_mul_u32_u24 v%d, %d, v%d
        v_and_b32 v%d, 7, v0
        v_lshl_add_u32 v%d, v%d, 4, v%d
        v_add_u32 v%d, 256, v%d
        ''' % (t1, t2, v1, rowstride, t1, v1, t2, v1, t2, v3, t2, t1, v3, rowstride, v3, t2, v3, t2, v3, v3, v3))

    def vshape_combine(self, d1, d2, d3, voff, t1, t2):
        a = self.a
        a('''
        v_and_b32 v%d, 15, v0
        v_lshrrev_b32 v%d, 4, v0
        v_lshlrev_b32 v%d, 5, v%d
        v_lshl_add_u32 v%d, v%d, 4, v%d
        v_add_u32 v%d, %d, v%d
        v_cmp_gt_u32 vcc, 32, v0
        v_mov_b32 v%d, %s
        s_nop 0
        v_cndmask_b32 v%d, v%d, v%d, vcc
        v_and_b32 v%d, 40, v0
        v_cmp_eq_u32 vcc, 32, v%d
        s_nop 1
        v_cndmask_b32 v%d, v%d, v%d, vcc
        ''' % (t1, t2, voff, t1, voff, t2, voff,
               t1, 512 - 256 - 32, voff,
               t2, OOB, voff, t1, voff,
               t1, t1, voff, voff, t2))
        a('s_nop 4')
        for r in range(4):
            a('v_permlane32_swap_b32 v%d, v%d' % (d2 + r, d3 + r))
        for r in range(4):
            a('v_add_f32 v%d, v%d, v%d' % (d1 + r, d1 + r, d3 + r))
        for r in range(4):
            a('v_add_f32_dpp v%d, v%d, v%d row_ror:8 row_mask:0xc bank_mask:0xf' % (d1 + r, d2 + r, d3 + r))
        for r in range(4):
            a('v_min_u32 v%d, -2, v%d' % (d1 + r, d1 + r))

    def t3_gemv(self, n, W, acc, vpv, masks, sel, pvr, wait=None):
        a = self.a
        a('ds_read_b32 v%d, v%d offset:0' % (pvr, vpv))
        if n > 1: a('ds_read_b32 v%d, v%d offset:32' % (pvr + 1, vpv))
        for t in range(n):
            s = sel + 4 * (t & 1); pv = pvr + (t & 1)
            a('s_waitcnt lgkmcnt(%d)' % (1 if t < n - 1 else 0))
            for k in range(4):
                a('v_and_b32 v%d, v%d, v%d' % (s + k, pv, masks + k))
            if t + 2 < n: a('ds_read_b32 v%d, v%d offset:%d' % (pv, vpv, 32 * (t + 2)))
            else: a('s_nop 0')
            a('s_nop 0')
            if wait: wait(t)
            c = '0' if t == 0 else 'v[%d:%d]' % (acc, acc + 3)
            a('v_mfma_f32_16x16x32_bf16 v[%d:%d], v[%d:%d], v[%d:%d], %s' % (acc, acc + 3, s, s + 3, W + 4 * t, W + 4 * t + 3, c))

    def t3_off(self, voff, t1, t2):
        self.a('''
        v_and_b32 v%d, 15, v0
        v_lshrrev_b32 v%d, 4, v0
        v_lshlrev_b32 v%d, 5, v%d
        v_lshl_add_u32 v%d, v%d, 4, v%d
        v_and_b32 v%d, 40, v0
        v_cmp_eq_u32 vcc, 0, v%d
        v_mov_b32 v%d, %s
        s_nop 0
        v_cndmask_b32 v%d, v%d, v%d, vcc
        ''' % (t1, t2, voff, t1, voff, t2, voff, t1, t1, t2, OOB, voff, t2, voff))

    def t3_combine(self, acc, tmp):
        a = self.a
        a('s_nop 7')
        for r in range(4): a('v_permlane32_swap_b32 v%d, v%d' % (acc + r, tmp + r))
        a('s_nop 0')
        for r in range(4): a('v_add_f32_dpp v%d, v%d, v%d row_ror:8 row_mask:0xf bank_mask:0xf' % (acc + r, tmp + r, acc + r))
        for r in range(4): a('v_min_u32 v%d, -2, v%d' % (acc + r, acc + r))

    def t3_lane_off(self, dst, t1, rowstride):
        self.a('''
        v_lshrrev_b32 v%d, 4, v0
        v_bfe_u32 v%d, v0, 3, 1
        v_lshl_add_u32 v%d, v%d, 2, v%d
        v_mul_u32_u24 v%d, %d, v%d
        v_and_b32 v%d, 7, v0
        v_lshl_add_u32 v%d, v%d, 4, v%d
        ''' % (dst, t1, dst, t1, dst, dst, rowstride, dst, t1, dst, t1, dst))

    def mbpoll_(self, word, sleep=0):
        a = self.a
        l = a.newlabel('MB'); l2 = a.newlabel('MBD')
        a('s_lshl_b32 s20, s6, 7\ns_add_u32 s20, s20, %d\ns_mov_b32 s95, 0' % (OFF_MB + 4 * word))
        a.label(l)
        a('s_load_dword s33, s[74:75], s20 glc\ns_waitcnt lgkmcnt(0)\ns_cmp_lg_u32 s33, -1\ns_cbranch_scc1 %s' % l2)
        if sleep: a('s_sleep %d' % sleep)
        a('s_add_u32 s95, s95, 1\ns_cmp_lt_u32 s95, 0x10000\ns_cbranch_scc1 %s' % l)
        a.label(l2)

    def prologue(self):
        a = self.a
        a('''
        s_cmp_ge_u32 s2, 256
        s_cbranch_scc1 L_end
        s_load_dwordx16 s[48:63], s[0:1], 0
        s_load_dwordx8 s[64:71], s[0:1], 64
        s_load_dwordx4 s[72:75], s[0:1], 96
        v_lshrrev_b32 v1, 6, v0
        v_and_b32 v0, 63, v0
        v_readfirstlane_b32 s3, v1
        s_and_b32 s4, s2, 7
        s_lshr_b32 s5, s2, 3
        s_lshl_b32 s6, s4, 5
        s_add_u32 s6, s6, s5
        s_lshr_b32 s7, s6, 3
        s_and_b32 s46, s6, 7
        s_mov_b32 s94, %s
        s_mov_b32 s45, 0
        s_waitcnt lgkmcnt(0)
        ''' % f32(L2E_HI))
        self.srd(16, 74, WS_BYTES)
        a('''
        s_cmp_eq_u32 s3, 8
        s_cbranch_scc1 L_A0
        s_cmp_eq_u32 s3, 9
        s_cbranch_scc1 L_A1
        s_cmp_eq_u32 s3, 10
        s_cbranch_scc1 L_A2
        s_cmp_eq_u32 s3, 11
        s_cbranch_scc1 L_A3
        ''')

    def s_wave(self):
        a = self.a; vm = VM(a); D = self.depth
        self.stamp_begin()
        self.stamp(0)
        self.srd(8, 50, 50331648); self.srd(12, 52, 50331648)
        a('''
        s_lshl_b32 s20, s6, 3
        s_add_u32 s20, s20, s3
        s_mul_i32 s20, s20, 24576
        v_and_b32 v4, 7, v0
        v_mul_u32_u24 v1, 384, v4
        v_bfe_u32 v4, v0, 3, 1
        v_lshl_add_u32 v1, v4, 6, v1
        v_lshrrev_b32 v4, 4, v0
        v_lshl_add_u32 v1, v4, 4, v1
        ''')
        KB = 28; VF = 124; NF = 11
        kreg = lambda t, s: KB + (t * 3 + s) * 4
        kidx = {}
        first = True
        for t in range(8):
            a('s_add_u32 s21, s20, %d' % (t * 3072))
            for s in range(3):
                if vm.n >= self.opt.get('burst', 0): vm.throttle(D)
                a('buffer_load_dwordx4 v[%d:%d], v1, s[8:11], s21 offen offset:%d nt' % (kreg(t, s), kreg(t, s) + 3, s * 128))
                kidx[(t, s)] = vm.issue()
                if vm.n == min(D, 4) and first:
                    first = False
                    self.vshape_offsets(2, 3, 4, 5, 384)
                    a('s_barrier')
        vtiles = [(t, ty) for t in range(8) for ty in range(3)]
        vreg = {}
        for n, tt in enumerate(vtiles):
            vreg[tt] = VF + 4 * n if n < NF else KB + 4 * (n - NF)
        vidx = {}
        def issue_v(n):
            t, ty = vtiles[n]
            vm.throttle(self.opt.get('dend', D) if n >= self.opt.get('nend', 99) else D)
            a('s_add_u32 s21, s20, %d' % (t * 3072))
            r = vreg[(t, ty)]
            if ty == 0: a('buffer_load_dwordx4 v[%d:%d], v2, s[12:15], s21 offen nt' % (r, r + 3))
            elif ty == 1: a('buffer_load_dwordx4 v[%d:%d], v2, s[12:15], s21 offen offset:1536 nt' % (r, r + 3))
            else: a('buffer_load_dwordx4 v[%d:%d], v3, s[12:15], s21 offen nt' % (r, r + 3))
            vidx[(t, ty)] = vm.issue()
        P = self.qk_after
        for n in range(P): issue_v(n)
        self.stamp(17)
        if not self.opt.get('nowait'): self.lds_spin(L_FLAGQ, None, 24, 25, sleep=2)
        a('''
        v_and_b32 v24, 1, v0
        v_lshrrev_b32 v25, 4, v0
        v_lshl_add_u32 v24, v24, 2, v25
        v_lshlrev_b32 v24, 4, v24
        ds_read_b128 v[4:7], v24 offset:%d
        ds_read_b128 v[8:11], v24 offset:%d
        ds_read_b128 v[12:15], v24 offset:%d
        s_waitcnt lgkmcnt(0)
        ''' % (L_Q, L_Q + 128, L_Q + 256))
        vS = 24
        def pack(t):
            acc = 16 + 4 * (t & 1)
            if t % 2 == 0:
                a('v_add_f32_dpp v%d, v%d, v%d row_ror:8 row_mask:0x%x bank_mask:0x3' % (vS, acc + 1, acc, 1 << (t // 2)))
            else:
                a('v_add_f32_dpp v%d, v%d, v%d row_ror:8 row_mask:0x%x bank_mask:0xc' % (vS, acc, acc + 1, 1 << (t // 2)))
        for t in range(8):
            acc = 16 + 4 * (t & 1)
            vm.wait(kidx[(t, 2)])
            for s in range(3):
                c = '0' if s == 0 else 'v[%d:%d]' % (acc, acc + 3)
                a('v_mfma_f32_16x16x32_bf16 v[%d:%d], v[%d:%d], v[%d:%d], %s' % (acc, acc + 3, 4 + 4 * s, 7 + 4 * s, kreg(t, s), kreg(t, s) + 3, c))
            if t >= 1:
                a('s_nop 4')
                pack(t - 1)
                a('s_nop 2')
        a('s_nop 7')
        pack(7)
        a('s_nop 0')
        self.rnd(vS, vS)
        a('v_mul_f32 v%d, %s, v%d' % (vS, f32(192 ** -0.5), vS))
        self.rnd(vS, vS)
        a('v_mov_b32 v16, v%d' % vS)
        self.wave_reduce(16, 17, 'max')
        a('v_sub_f32 v18, v%d, v16\nv_max_f32 v18, %s, v18' % (vS, f32(-200.0)))
        self.exp(17, 18, 19, 20)
        self.wave_reduce(17, 18, 'add')
        a('''
        s_lshl_b32 s21, s3, 3
        s_add_u32 s21, s21, %d
        v_mov_b32 v18, s21
        ds_write_b64 v18, v[16:17]
        v_mov_b32 v18, %d
        v_mov_b32 v19, 1
        s_waitcnt lgkmcnt(0)
        s_mov_b64 exec, 1
        ds_add_u32 v18, v19
        s_mov_b64 exec, -1
        ''' % (L_STAT, L_CNTST))
        self.stamp(15)
        for n in range(P, 24): issue_v(n)
        self.sel_masks(16, 25, 26)
        a('s_lshl_b32 s22, s3, 8\ns_add_u32 s22, s22, %d' % L_P)
        self.pv_addr(1, 25, 's22')
        self.stamp(18)
        if not self.opt.get('nowait'): self.lds_spin(L_FLAGP, None, 25, 26, sleep=2)
        a('''
        v_mov_b32 v25, %d
        ds_read_b64 v[26:27], v25
        v_mov_b32 v25, %d
        ds_read_b32 v25, v25
        v_lshlrev_b32 v2, 2, v0
        v_add_u32 v2, s22, v2
        s_waitcnt lgkmcnt(0)
        v_readfirstlane_b32 s45, v25
        v_sub_f32 v24, v24, v26
        v_max_f32 v24, %s, v24
        ''' % (L_GSTAT, L_MODE, f32(-200.0)))
        self.exp(24, 24, 20, 21)
        self.div(24, 24, 27, 20, 21)
        a('''
        v_cvt_pk_bf16_f32 v24, v24, v24
        ds_write_b32 v2, v24
        s_waitcnt lgkmcnt(0)
        ds_read_b32 v2, v1 offset:0
        ds_read_b32 v3, v1 offset:32
        ''')
        a('s_setprio 3')
        for t in range(8):
            sel = 20 + 4 * (t & 1)
            pv = 2 + (t & 1)
            a('s_waitcnt lgkmcnt(%d)' % (1 if t < 7 else 0))
            if t == 7:
                a('v_mov_b32 v1, %d\nv_mov_b32 v2, 1\ns_mov_b64 exec, 1\nds_add_u32 v1, v2\ns_mov_b64 exec, -1' % L_CNTPV)
            for k in range(4):
                a('v_and_b32 v%d, v%d, v%d' % (sel + k, pv, 16 + k))
            if t + 2 < 8:
                a('ds_read_b32 v%d, v1 offset:%d' % (pv, 32 * (t + 2)))
            else:
                a('s_nop 0')
            a('s_nop 0')
            for ty in range(3):
                vm.wait(vidx[(t, ty)])
                acc = 4 + 4 * ty
                c = '0' if t == 0 else 'v[%d:%d]' % (acc, acc + 3)
                r = vreg[(t, ty)]
                a('v_mfma_f32_16x16x32_bf16 v[%d:%d], v[%d:%d], v[%d:%d], %s' % (acc, acc + 3, sel, sel + 3, r, r + 3, c))
        self.vshape_combine(4, 8, 12, 1, 2, 3)
        if self.opt.get('v2'):
            self.s_end()
        else:
            a('''
            s_lshl_b32 s21, s6, 3
            s_add_u32 s21, s21, s3
            s_mul_i32 s21, s21, 768
            s_add_u32 s21, s21, %d
            ''' % OFF_O)
            self.store_intra(['buffer_store_dwordx4 v[4:7], v1, s[16:19], s21 offen'])
        if self.stamps:
            self.stamp(4)
            r15 = [r for (i, r) in self.stlist if i == self.opt.get('pw', 15)][0]
            if self.opt.get('dbgst'): pass
            else: a('s_lshl_b32 s92, s2, 8\ns_add_u32 s92, s92, %d\ns_lshl_b32 s93, s3, 3\ns_add_u32 s92, s92, s93\nv_mov_b32 v1, 0\nv_mov_b32 v3, 0\nv_mov_b32 v2, s%d\ns_mov_b64 exec, 1\nbuffer_store_dwordx2 v[2:3], v1, s[16:19], s92 offen\ns_nop 1' % (OFF_STAMP + 160, r15))
            a('s_cmp_lg_u32 s3, 0\ns_cbranch_scc1 L_end')
            self.stamp_flush()
        a('s_endpgm')

    def a0_wave(self):
        a = self.a; vm = VM(a)
        a.label('L_A0')
        self.stamp_begin()
        a('s_setprio 2')
        self.srd(8, 68, 640 * 7680); self.srd(12, 66, 1280)
        a('''
        v_lshlrev_b32 v1, 2, v0
        v_mov_b32 v2, 0
        ds_write_b32 v1, v2
        s_cmp_ge_u32 s2, 240
        s_cbranch_scc1 L_A0_bar
        s_and_b32 s20, s2, 3
        s_lshr_b32 s21, s2, 2
        s_mul_i32 s22, s20, %d
        s_lshl_b32 s23, s21, 7
        s_add_u32 s22, s22, s23
        v_lshrrev_b32 v4, 4, v0
        v_bfe_u32 v5, v0, 3, 1
        v_lshl_add_u32 v4, v5, 2, v4
        v_mul_u32_u24 v4, 7680, v4
        v_and_b32 v5, 7, v0
        v_lshl_add_u32 v4, v5, 4, v4
        s_mul_i32 s24, s20, 320
        v_lshlrev_b32 v5, 1, v0
        buffer_load_ushort v6, v5, s[12:15], s24 offen
        buffer_load_ushort v7, v5, s[12:15], s24 offen offset:128
        buffer_load_ushort v8, v5, s[12:15], s24 offen offset:256
        ''' % (160 * 7680))
        for _ in range(3): vm.issue()
        W = 40
        widx = []
        for t in range(20):
            a('s_add_u32 s23, s22, %d' % (t * 8 * 7680))
            a('buffer_load_dwordx4 v[%d:%d], v4, s[8:11], s23 offen nt' % (W + 4 * t, W + 4 * t + 3))
            widx.append(vm.issue())
        a.label('L_A0_bar')
        a('s_waitcnt lgkmcnt(0)\ns_barrier')
        a('s_cmp_ge_u32 s2, 240\ns_cbranch_scc1 L_A0_stats')
        self.sel_masks(16, 9, 10)
        self.pv_addr(1, 9, str(L_S))
        vm.wait(2)
        for k in range(3):
            r = 6 + k
            a('v_lshlrev_b32 v%d, 16, v%d\nv_sub_f32 v9, 0, v%d\nv_min_f32 v9, %s, v9\nv_max_f32 v9, %s, v9' % (r, r, r, f32(88.0), f32(-200.0)))
            self.exp(10, 9, 11, 12)
            a('v_add_f32 v10, 1.0, v10')
            self.div(r, r, 10, 11, 12)
            a('v_cvt_pk_bf16_f32 v%d, v%d, v%d' % (r, r, r))
        a('''
        v_lshlrev_b32 v9, 2, v0
        ds_write_b32 v9, v6 offset:%d
        ds_write_b32 v9, v7 offset:%d
        ds_write_b32 v9, v8 offset:%d
        s_waitcnt lgkmcnt(0)
        ds_read_b32 v2, v1 offset:0
        ds_read_b32 v3, v1 offset:32
        ''' % (L_S, L_S + 256, L_S + 512))
        for t in range(20):
            sel = 20 + 4 * (t & 1); pv = 2 + (t & 1)
            a('s_waitcnt lgkmcnt(%d)' % (1 if t < 19 else 0))
            for k in range(4):
                a('v_and_b32 v%d, v%d, v%d' % (sel + k, pv, 16 + k))
            if t + 2 < 20: a('ds_read_b32 v%d, v1 offset:%d' % (pv, 32 * (t + 2)))
            else: a('s_nop 0')
            a('s_nop 0')
            vm.wait(widx[t])
            c = '0' if t == 0 else 'v[4:7]'
            a('v_mfma_f32_16x16x32_bf16 v[4:7], v[%d:%d], v[%d:%d], %s' % (sel, sel + 3, W + 4 * t, W + 4 * t + 3, c))
        a('''
        v_and_b32 v9, 15, v0
        v_lshrrev_b32 v10, 4, v0
        v_lshlrev_b32 v1, 5, v9
        v_lshl_add_u32 v1, v10, 4, v1
        v_and_b32 v9, 40, v0
        v_cmp_eq_u32 vcc, 0, v9
        v_mov_b32 v10, %s
        s_nop 0
        v_cndmask_b32 v1, v10, v1, vcc
        s_nop 2
        ''' % OOB)
        for r in range(4): a('v_permlane32_swap_b32 v%d, v%d' % (4 + r, 8 + r))
        a('s_nop 1')
        for r in range(4): a('v_add_f32_dpp v%d, v%d, v%d row_ror:8 row_mask:0xf bank_mask:0xf' % (4 + r, 8 + r, 4 + r))
        for r in range(4): a('v_min_u32 v%d, -2, v%d' % (4 + r, 4 + r))
        self.lds_spin(L_INIT, None, 9, 10, sleep=1)
        a('''
        s_mul_i32 s22, s20, 15360
        s_lshl_b32 s23, s21, 8
        s_add_u32 s22, s22, s23
        s_add_u32 s22, s22, %d
        buffer_store_dwordx4 v[4:7], v1, s[16:19], s22 offen sc1
        ''' % OFF_MOD)
        self.stamp(1, None, 12, 14)
        a.label('L_A0_stats')
        self.lds_spin(L_MODE, None, 9, 10, sleep=4)
        a('s_mov_b32 s45, s93')
        if not self.opt.get('v2'): self.mbpoll_(1, sleep=4)
        self.lds_spin(L_CNTST, 8, 9, 10, sleep=2)
        a('''
        v_and_b32 v1, 7, v0
        v_lshlrev_b32 v2, 3, v1
        ds_read_b64 v[4:5], v2 offset:%d
        s_waitcnt lgkmcnt(0)
        ''' % L_STAT)
        def combine_stats():
            a('v_mov_b32 v6, v4')
            for r in (4, 2, 1):
                a('s_nop 1\nv_max_f32_dpp v6, v6, v6 row_ror:%d row_mask:0xf bank_mask:0xf' % r)
            a('v_sub_f32 v8, v4, v6\nv_max_f32 v8, %s, v8' % f32(-200.0))
            self.exp(7, 8, 9, 10)
            a('v_mul_f32 v7, v7, v5')
            for r in (4, 2, 1):
                a('s_nop 1\nv_add_f32_dpp v7, v7, v7 row_ror:%d row_mask:0xf bank_mask:0xf' % r)
        combine_stats()
        a('''
        v_min_u32 v6, -2, v6
        v_min_u32 v7, -2, v7
        s_lshl_b32 s22, s6, 7
        s_add_u32 s22, s22, %d
        v_readfirstlane_b32 s24, v6
        v_readfirstlane_b32 s25, v7
        s_lshl_b32 s23, s7, 10
        s_add_u32 s23, s23, %d
        s_nop 2
        s_atomic_swap_x2 s[24:25], s[74:75], s22
        s_mov_b32 s95, 0
        L_A0_sp:
        ''' % (OFF_ST, OFF_ST))
        for k in range(8):
            a('s_load_dwordx2 s[%d:%d], s[74:75], s23 offset:%d glc' % (76 + 2 * k, 77 + 2 * k, 128 * k))
        a('s_waitcnt lgkmcnt(0)\ns_max_u32 s26, s76, s77')
        for k in range(2, 16): a('s_max_u32 s26, s26, s%d' % (76 + k))
        a('''
        s_cmp_lg_u32 s26, -1
        s_cbranch_scc1 L_A0_spd
        s_add_u32 s95, s95, 1
        s_cmp_lt_u32 s95, 0x10000
        s_cbranch_scc1 L_A0_sp
        L_A0_spd:
        ''')
        for k in range(8):
            a('v_writelane_b32 v4, s%d, %d\nv_writelane_b32 v4, s%d, %d\nv_writelane_b32 v5, s%d, %d\nv_writelane_b32 v5, s%d, %d' % (76 + 2 * k, k, 76 + 2 * k, k + 8, 77 + 2 * k, k, 77 + 2 * k, k + 8))
        combine_stats()
        a('''
        v_mov_b32 v2, %d
        s_mov_b64 exec, 1
        ds_write_b64 v2, v[6:7]
        s_mov_b64 exec, -1
        s_waitcnt lgkmcnt(0)
        ''' % L_GSTAT)
        self.lds_set(L_FLAGP, '1', 9, 10)
        self.stamp(3)
        if self.opt.get('v2'):
            self.stl_a0 = list(self.stlist); a('s_mov_b32 s96, 0\ns_branch L_TAIL'); return
        self.stamp_flush()
        a('s_endpgm')

    def ln_stats(self, vals, vmu, vden, t):
        a = self.a
        a('v_add_f32 v%d, v%d, v%d' % (vmu, vals[0], vals[1]))
        for v in vals[2:]: a('v_add_f32 v%d, v%d, v%d' % (vmu, vmu, v))
        self.wave_reduce(vmu, t[0], 'add')
        a('v_mul_f32 v%d, %s, v%d' % (vmu, f32(1.0 / 640), vmu))
        a('v_sub_f32 v%d, v%d, v%d\nv_mul_f32 v%d, v%d, v%d' % (t[0], vals[0], vmu, vden, t[0], t[0]))
        for v in vals[1:]:
            a('v_sub_f32 v%d, v%d, v%d\nv_fmac_f32 v%d, v%d, v%d' % (t[0], v, vmu, vden, t[0], t[0]))
        self.wave_reduce(vden, t[0], 'add')
        a('v_mul_f32 v%d, %s, v%d' % (vden, f32(1.0 / 640), vden))
        self.rnd(vden, vden)
        a('v_add_f32 v%d, %s, v%d' % (vden, f32(1e-5), vden))
        self.rnd(vden, vden)
        a('v_sqrt_f32 v%d, v%d\ns_nop 0' % (vden, vden))
        self.rnd(vden, vden)
        self.rnd(vmu, vmu)

    def modulate(self, x, c1, sb, vmu, vden, vrcp, t1, t2):
        a = self.a
        a('v_sub_f32 v%d, v%d, v%d' % (x, x, vmu))
        self.rnd(x, x)
        a('''
        v_mul_f32 v%d, v%d, v%d
        v_fma_f32 v%d, -v%d, v%d, v%d
        v_fma_f32 v%d, v%d, v%d, v%d
        ''' % (t1, x, vrcp, t2, t1, vden, x, x, t2, vrcp, t1))
        self.rnd(x, x)
        a('v_mul_f32 v%d, v%d, v%d' % (x, x, c1))
        self.rnd(x, x)
        a('v_add_f32 v%d, v%d, v%d' % (x, x, sb))

    def a1_wave(self):
        a = self.a; vm = VM(a)
        a.label('L_A1')
        self.stamp_begin()
        a('s_setprio 2')
        self.srd(8, 54, 640 * 12288); self.srd(12, 48, 1280)
        a('''
        v_lshlrev_b32 v4, 2, v0
        buffer_load_dword v20, v4, s[12:15], 0 offen
        buffer_load_dword v21, v4, s[12:15], 0 offen offset:256
        buffer_load_dword v22, v4, s[12:15], 0 offen offset:512
        buffer_load_dword v23, v4, s[12:15], 0 offen offset:768
        buffer_load_dword v24, v4, s[12:15], 0 offen offset:1024
        v_min_u32 v1, 19, v0
        v_lshlrev_b32 v4, 3, v1
        s_mul_i32 s20, s46, 160
        buffer_load_dwordx2 v[26:27], v4, s[12:15], s20 offen
        ''')
        for _ in range(6): vm.issue()
        self.vshape_offsets(2, 3, 4, 5, 12288)
        a('''
        s_barrier
        s_mul_i32 s20, s46, %d
        s_mul_i32 s21, s7, 384
        s_add_u32 s20, s20, s21
        ''' % (80 * 12288))
        W = 40
        widx = {}
        for t in range(10):
            a('s_add_u32 s21, s20, %d\ns_add_u32 s22, s20, %d' % (t * 8 * 12288, (t * 8 + 4) * 12288))
            for ty in range(3):
                vm.throttle(self.opt.get('a1depth', 40))
                r = W + (t * 3 + ty) * 4
                if ty == 0: a('buffer_load_dwordx4 v[%d:%d], v2, s[8:11], s21 offen nt' % (r, r + 3))
                elif ty == 1: a('buffer_load_dwordx4 v[%d:%d], v2, s[8:11], s22 offen nt' % (r, r + 3))
                else: a('buffer_load_dwordx4 v[%d:%d], v3, s[8:11], s21 offen nt' % (r, r + 3))
                widx[(t, ty)] = vm.issue()
        vm.wait(5)
        for k in range(5):
            a('v_lshlrev_b32 v%d, 16, v%d\nv_and_b32 v%d, 0xffff0000, v%d' % (28 + 2 * k, 20 + k, 29 + 2 * k, 20 + k))
        self.ln_stats(list(range(28, 38)), 38, 39, [4, 5, 6, 7])
        a('''
        v_lshlrev_b32 v28, 16, v26
        v_and_b32 v29, 0xffff0000, v26
        v_lshlrev_b32 v30, 16, v27
        v_and_b32 v31, 0xffff0000, v27
        v_rcp_f32 v32, v39
        ''')
        self.lds_spin(L_MODE, None, 4, 5, sleep=4)
        a('''
        s_mov_b32 s45, s93
        s_mul_i32 s20, s46, 320
        s_add_u32 s20, s20, %d
        s_add_u32 s21, s20, 15360
        s_add_u32 s22, s20, 30720
        s_add_u32 s23, s20, 46080
        v_lshlrev_b32 v2, 4, v1
        ''' % OFF_MOD)
        g = [4, 8, 12, 16, 20, 24, 160, 164]
        loads = []
        for rs in range(4):
            loads.append('buffer_load_dwordx4 v[%d:%d], v2, s[16:19], s%d offen' % (g[rs], g[rs] + 3, 20 + rs))
            loads.append('buffer_load_dwordx4 v[%d:%d], v2, s[16:19], s%d offen offset:2560' % (g[4 + rs], g[4 + rs] + 3, 20 + rs))
        regs = [b + k for b in g for k in range(4)]
        self.poll(loads, regs, 33, sleep=2)
        vm.done = vm.n
        self.stamp(14, None, 34, 36)
        for k in range(4):
            a('v_add_f32 v%d, v%d, v%d\nv_add_f32 v%d, v%d, v%d\nv_add_f32 v%d, v%d, v%d' % (4 + k, 4 + k, 8 + k, 12 + k, 12 + k, 16 + k, 4 + k, 4 + k, 12 + k))
            a('v_add_f32 v%d, v%d, v%d\nv_add_f32 v%d, v%d, v%d\nv_add_f32 v%d, v%d, v%d' % (20 + k, 20 + k, 24 + k, 160 + k, 160 + k, 164 + k, 20 + k, 20 + k, 160 + k))
            self.rnd(4 + k, 4 + k)
            self.rnd(20 + k, 20 + k)
            a('v_add_f32 v%d, 1.0, v%d' % (20 + k, 20 + k))
            self.rnd(20 + k, 20 + k)
            self.modulate(28 + k, 20 + k, 4 + k, 38, 39, 32, 33, 34)
            a('v_cvt_pk_bf16_f32 v%d, v%d, v%d' % (28 + k, 28 + k, 28 + k))
        a('ds_write_b128 v2, v[28:31] offset:%d' % L_H)
        self.sel_masks(16, 33, 34)
        self.pv_addr(1, 33, str(L_H))
        a('''
        s_waitcnt lgkmcnt(0)
        ds_read_b32 v2, v1 offset:0
        ds_read_b32 v3, v1 offset:32
        ''')
        for t in range(10):
            sel = 20 + 4 * (t & 1); pv = 2 + (t & 1)
            a('s_waitcnt lgkmcnt(%d)' % (1 if t < 9 else 0))
            for k in range(4):
                a('v_and_b32 v%d, v%d, v%d' % (sel + k, pv, 16 + k))
            if t + 2 < 10: a('ds_read_b32 v%d, v1 offset:%d' % (pv, 32 * (t + 2)))
            else: a('s_nop 0')
            a('s_nop 0')
            for ty in range(3):
                acc = 4 + 4 * ty
                c = '0' if t == 0 else 'v[%d:%d]' % (acc, acc + 3)
                r = W + (t * 3 + ty) * 4
                a('v_mfma_f32_16x16x32_bf16 v[%d:%d], v[%d:%d], v[%d:%d], %s' % (acc, acc + 3, sel, sel + 3, r, r + 3, c))
        self.vshape_combine(4, 8, 12, 1, 2, 3)
        a('s_mul_i32 s21, s6, 768\ns_add_u32 s21, s21, %d' % OFF_Q)
        self.store_intra(['buffer_store_dwordx4 v[4:7], v1, s[16:19], s21 offen'])
        a('''
        s_mul_i32 s21, s7, 6144
        s_add_u32 s21, s21, %d
        s_add_u32 s22, s21, 3072
        v_min_u32 v1, 47, v0
        v_lshlrev_b32 v2, 4, v1
        ''' % OFF_Q)
        loads = []
        for p in range(8):
            loads.append('buffer_load_dwordx4 v[%d:%d], v2, s[16:19], s%d offen offset:%d' % (40 + 4 * p, 43 + 4 * p, 21 + p // 4, (p % 4) * 768))
        self.poll(loads, list(range(40, 72)), 33, sleep=1)
        for k in range(4):
            for st in (1, 2, 4):
                for p in range(0, 8, 2 * st):
                    a('v_add_f32 v%d, v%d, v%d' % (40 + 4 * p + k, 40 + 4 * p + k, 40 + 4 * (p + st) + k))
        a('''
        v_cvt_pk_bf16_f32 v4, v40, v41
        v_cvt_pk_bf16_f32 v5, v42, v43
        v_lshlrev_b32 v2, 3, v1
        ds_write_b64 v2, v[4:5] offset:%d
        s_waitcnt lgkmcnt(0)
        ''' % L_Q)
        self.lds_set(L_FLAGQ, '1', 9, 10)
        self.stamp(2)
        if self.opt.get('v2'):
            self.stl_a1 = list(self.stlist); a('s_mov_b32 s96, 0\ns_branch L_TAIL'); return
        self.stamp_flush()
        a('s_endpgm')

    def interleave(self, ra, rb, t1):
        self.a('''
        v_perm_b32 v%d, v%d, v%d, s96
        v_perm_b32 v%d, v%d, v%d, s97
        v_mov_b32 v%d, v%d
        ''' % (t1, rb, ra, rb, rb, ra, ra, t1))

    def reduce32(self, off_src, off_dst):
        a = self.a
        a('''
        s_mul_i32 s21, s4, %d
        s_lshl_b32 s22, s5, 7
        s_add_u32 s21, s21, s22
        s_add_u32 s21, s21, %d
        s_add_u32 s22, s21, 5120
        ''' % (32 * 2560, off_src))
        loads = ['buffer_load_dwordx4 v[%d:%d], v1, s[16:19], s%d offen offset:%d' % (4 + 4 * n, 7 + 4 * n, 21 + n // 2, (n % 2) * 2560) for n in range(4)]
        self.poll(loads, list(range(4, 20)), 20)
        a('''
        v_pk_add_f32 v[4:5], v[4:5], v[8:9]
        v_pk_add_f32 v[6:7], v[6:7], v[10:11]
        v_pk_add_f32 v[12:13], v[12:13], v[16:17]
        v_pk_add_f32 v[14:15], v[14:15], v[18:19]
        v_pk_add_f32 v[4:5], v[4:5], v[12:13]
        v_pk_add_f32 v[6:7], v[6:7], v[14:15]
        ''')
        self.red8([4, 5, 6, 7])
        a('''
        v_min_u32 v4, -2, v4
        s_lshl_b32 s21, s6, 7
        s_add_u32 s21, s21, %d
        buffer_store_dword v4, v2, s[16:19], s21 offen sc1
        ''' % off_dst)

    def gather8(self, off_src):
        a = self.a
        a('s_lshl_b32 s21, s5, 7\ns_add_u32 s21, s21, %d' % off_src)
        self.poll(['buffer_load_dwordx4 v[4:7], v3, s[16:19], s21 offen'], [4, 5, 6, 7], 20)
        self.red8([4, 5, 6, 7])

    def a2_wave(self):
        a = self.a; vm = VM(a)
        a.label('L_A2')
        self.stamp_begin()
        a('s_setprio 3')
        self.srd(8, 56, 6144 * 1280); self.srd(12, 48, 1280); self.srd(24, 72, 256); self.srd(28, 70, 1280)
        a('''
        s_mov_b32 s96, 0x05040100
        s_mov_b32 s97, 0x07060302
        v_mov_b32 v4, -1
        v_mov_b32 v5, -1
        v_mov_b32 v6, -1
        v_mov_b32 v7, -1
        v_lshlrev_b32 v1, 4, v0
        ''')
        def init(base_expr, nbytes, pol):
            a(base_expr)
            off = 0
            while off < nbytes:
                n = min(1024, nbytes - off)
                if n < 1024:
                    lanes = n // 16
                    m = (1 << lanes) - 1
                    a('s_mov_b32 exec_lo, 0x%x\ns_mov_b32 exec_hi, 0x%x' % (m & 0xffffffff, m >> 32))
                if off < 4096:
                    a('buffer_store_dwordx4 v[4:7], v1, s[16:19], s20 offen offset:%d %s' % (off, pol))
                else:
                    a('s_add_u32 s21, s20, %d\nbuffer_store_dwordx4 v[4:7], v1, s[16:19], s21 offen %s' % (off, pol))
                if n < 1024: a('s_mov_b64 exec, -1')
                off += n
        def fanout(word):
            a('''
            v_mov_b32 v10, s35
            v_lshlrev_b32 v8, 7, v0
            s_mov_b32 s20, %d
            s_mov_b32 s21, %d
            s_mov_b32 s22, %d
            s_mov_b32 s23, %d
            buffer_store_dword v10, v8, s[16:19], s20 offen sc1
            buffer_store_dword v10, v8, s[16:19], s21 offen sc1
            buffer_store_dword v10, v8, s[16:19], s22 offen sc1
            buffer_store_dword v10, v8, s[16:19], s23 offen sc1
            ''' % tuple(OFF_MB + 4 * word + 8192 * k for k in range(4)))
        mbpoll = self.mbpoll_
        init('s_lshl_b32 s20, s6, 7\ns_add_u32 s20, s20, %d' % OFF_MB, 16, 'sc1')
        init('s_lshl_b32 s20, s6, 7\ns_add_u32 s20, s20, %d' % OFF_ST, 16, 'sc1')
        init('s_mul_i32 s20, s6, 768\ns_add_u32 s20, s20, %d' % OFF_Q, 768, '')
        a('s_cmp_ge_u32 s2, 240\ns_cbranch_scc1 L_A2_nomod')
        init('s_and_b32 s20, s2, 3\ns_mul_i32 s20, s20, 15360\ns_lshr_b32 s21, s2, 2\ns_lshl_b32 s21, s21, 8\ns_add_u32 s20, s20, s21\ns_add_u32 s20, s20, %d' % OFF_MOD, 256, 'sc1')
        a.label('L_A2_nomod')
        a('''
        s_barrier
        s_getreg_b32 s20, hwreg(HW_REG_XCC_ID)
        s_and_b32 s20, s20, 7
        s_lshl_b32 s22, s20, 3
        s_lshl_b64 s[32:33], 1, s22
        s_lshl_b32 s21, s4, 5
        s_mov_b64 s[34:35], s[32:33]
        s_waitcnt vmcnt(0)
        s_atomic_add_x2 s[34:35], s[72:73], s21 glc
        ''')
        self.lds_set(L_INIT, '1', 9, 12)
        a('''
        s_waitcnt lgkmcnt(0)
        s_add_u32 s34, s34, s32
        s_addc_u32 s35, s35, s33
        v_mov_b32 v10, s34
        v_mov_b32 v11, s35
        v_sad_u8 v12, v10, 0, 0
        v_sad_u8 v12, v11, 0, v12
        s_nop 0
        v_readfirstlane_b32 s36, v12
        ''')
        self.stamp(16)
        a('''
        s_nop 3
        s_cmp_lg_u32 s36, 32
        s_cbranch_scc1 L_A2_mb
        ; last of the group: bad if any field not in {0,32}
        s_or_b32 s34, s34, s35
        s_and_b32 s34, s34, 0xdfdfdfdf
        s_cmp_lg_u32 s34, 0
        s_cselect_b32 s34, 0x10001, 1
        s_mov_b32 s35, s34
        s_atomic_add s35, s[72:73], 0x8 glc
        s_waitcnt lgkmcnt(0)
        s_add_u32 s35, s35, s34
        s_and_b32 s36, s35, 0xffff
        s_cmp_lg_u32 s36, 8
        s_cbranch_scc1 L_A2_mb
        s_lshr_b32 s35, s35, 16
        s_cmp_lg_u32 s35, 0
        s_cselect_b32 s35, 2, 1
        ''')
        self.stamp(19)
        fanout(0)
        a.label('L_A2_mb')
        mbpoll(0)
        a('s_cmp_eq_u32 s33, 1\ns_cselect_b32 s45, 1, 2')
        if self.opt.get('force_slow'): a('s_mov_b32 s45, 2')
        a('s_cmp_lg_u32 s45, 1\ns_cbranch_scc1 L_A2_slow1')
        self.lds_set(L_MODE, '1', 9, 10)
        self.stamp(13)
        def init2(pol):
            init('s_mul_i32 s20, s6, 6144\ns_add_u32 s20, s20, %d' % OFF_O, 6144, pol)
            init('s_mul_i32 s20, s6, 2560\ns_add_u32 s20, s20, %d' % OFF_A, 2560, pol)
            init('s_lshl_b32 s20, s6, 8\ns_add_u32 s20, s20, %d' % OFF_H, 256, pol)
            init('s_min_u32 s21, s5, 29\ns_lshl_b32 s21, s21, 8\ns_mul_i32 s20, s4, 7680\ns_add_u32 s20, s20, s21\ns_add_u32 s20, s20, %d' % OFF_G, 256, pol)
        init2('')
        a('s_branch L_A2_p2')
        a.label('L_A2_slow1')
        init2('sc1')
        init('s_mul_i32 s20, s6, 768\ns_add_u32 s20, s20, %d' % OFF_Q, 768, 'sc1')
        a.label('L_A2_p2')
        init('s_lshl_b32 s20, s6, 7\ns_add_u32 s20, s20, %d' % OFF_X, 128, 'sc1')
        init('s_min_u32 s21, s5, 29\ns_lshl_b32 s21, s21, 8\ns_mul_i32 s20, s4, 7680\ns_add_u32 s20, s20, s21\ns_add_u32 s20, s20, %d' % OFF_F, 256, 'sc1')
        a('''
        s_mov_b32 s34, 1
        s_lshl_b32 s21, s4, 5
        s_add_u32 s21, s21, 16
        s_waitcnt vmcnt(0)
        s_atomic_add s34, s[72:73], s21 glc
        s_waitcnt lgkmcnt(0)
        s_cmp_lg_u32 s34, 31
        s_cbranch_scc1 L_A2_mb2
        s_mov_b32 s34, 1
        s_atomic_add s34, s[72:73], 0x18 glc
        s_waitcnt lgkmcnt(0)
        s_cmp_lg_u32 s34, 7
        s_cbranch_scc1 L_A2_mb2
        s_mov_b32 s35, 1
        ''')
        fanout(1)
        a.label('L_A2_mb2')
        a('s_cmp_eq_u32 s45, 1\ns_cbranch_scc1 L_A2_fast')
        mbpoll(1, sleep=2)
        self.lds_set(L_MODE, '2', 9, 10)
        a.label('L_A2_fast')
        W = 40
        a('''
        s_mul_i32 s20, s6, 30720
        v_lshlrev_b32 v2, 2, v0
        ''')
        for r in range(24):
            base = W + 5 * r
            pass
        def wreg(r):
            g = r // 2; b = W + 10 * g
            return (b + 4 * (r & 1), b + 8 + (r & 1))
        idx = []
        for r in range(24):
            x4, d1 = wreg(r)
            a('s_add_u32 s21, s20, %d' % (r * 1280))
            vm.throttle(self.adepth)
            a('buffer_load_dwordx4 v[%d:%d], v1, s[8:11], s21 offen nt' % (x4, x4 + 3)); vm.issue()
            a('buffer_load_dword v%d, v2, s[8:11], s21 offen offset:1024 nt' % d1); idx.append(vm.issue())
        vm.all()
        pairs = [(p + k, p + k + 4) for p in (0, 8, 16) for k in range(4)]
        for (ra, rb) in pairs:
            xa, da = wreg(ra); xb, db = wreg(rb)
            for k in range(4): self.interleave(xa + k, xb + k, 4)
            self.interleave(da, db, 4)
        self.mbpoll_(1, sleep=2)
        a('''
        v_and_b32 v24, 7, v0
        v_lshlrev_b32 v24, 2, v24
        v_bfe_u32 v25, v0, 4, 1
        v_lshl_add_u32 v24, v25, 1, v24
        v_lshrrev_b32 v25, 5, v0
        v_add_u32 v24, v24, v25
        s_cmp_ge_u32 s5, 20
        s_cbranch_scc1 L_A2_h1
        s_lshl_b32 s20, s5, 7
        s_add_u32 s20, s20, %d
        s_add_u32 s21, s20, 15360
        s_add_u32 s22, s20, 30720
        s_add_u32 s23, s20, 46080
        v_lshlrev_b32 v25, 2, v24
        v_add_u32 v26, 5120, v25
        v_add_u32 v27, 10240, v25
        s_lshl_b32 s32, s5, 6
        v_lshlrev_b32 v28, 1, v24
        buffer_load_ushort v30, v28, s[12:15], s32 offen
        ''' % OFF_MOD)
        loads = []
        for rs in range(4):
            loads.append('buffer_load_dword v%d, v26, s[16:19], s%d offen' % (4 + rs, 20 + rs))
            loads.append('buffer_load_dword v%d, v26, s[16:19], s%d offen offset:2560' % (8 + rs, 20 + rs))
            loads.append('buffer_load_dword v%d, v27, s[16:19], s%d offen' % (12 + rs, 20 + rs))
            loads.append('buffer_load_dword v%d, v27, s[16:19], s%d offen offset:2560' % (16 + rs, 20 + rs))
        self.poll(loads, list(range(4, 20)), 20, sleep=4)
        for n, dst in enumerate((31, 32, 33, 34)):
            b = 4 + 4 * n
            a('v_add_f32 v%d, v%d, v%d\nv_add_f32 v%d, v%d, v%d\nv_add_f32 v%d, v%d, v%d' % (b, b, b + 1, b + 2, b + 2, b + 3, dst, b, b + 2))
            self.rnd(dst, dst)
        a('v_add_f32 v33, 1.0, v33')
        a('''
        v_cvt_pk_bf16_f32 v33, v33, v32
        v_min_u32 v33, -2, v33
        v_lshlrev_b32 v30, 16, v30
        ''')
        a.label('L_A2_h1')
        a('''
        v_and_b32 v25, 7, v0
        v_lshrrev_b32 v26, 3, v0
        v_min_u32 v27, 5, v25
        v_mul_u32_u24 v35, 6144, v26
        v_lshl_add_u32 v35, v27, 4, v35          ; H1 gather offset: pslot*8*768 + piece*16
        v_mul_u32_u24 v36, 10240, v26
        v_lshl_add_u32 v36, v25, 4, v36          ; reduce32 gather: pslot*4*2560 + c*16
        v_lshlrev_b32 v37, 12, v26
        v_lshl_add_u32 v37, v25, 4, v37          ; gather8: pslot*32*128 + c*16
        v_and_b32 v27, 8, v0
        v_cmp_eq_u32 vcc, 0, v27
        v_mov_b32 v27, %s
        v_lshlrev_b32 v38, 2, v24
        v_cndmask_b32 v38, v27, v38, vcc         ; line store offset (dword)
        v_lshlrev_b32 v39, 3, v24
        v_cndmask_b32 v39, v27, v39, vcc         ; B_h store offset (8B)
        v_lshlrev_b32 v29, 1, v24
        v_cndmask_b32 v29, v27, v29, vcc         ; out store offset (2B)
        v_lshlrev_b32 v160, 5, v0                ; B_a store offsets
        v_lshlrev_b32 v161, 3, v0
        s_mul_i32 s21, s7, 49152
        s_mul_i32 s22, s46, 96
        s_add_u32 s21, s21, s22
        s_add_u32 s21, s21, %d
        s_add_u32 s22, s21, 3072
        ''' % (OOB, OFF_O))
        self.lds_spin(L_CNTPV, 8, 4, 5, sleep=1)
        loads = ['buffer_load_dwordx4 v[%d:%d], v35, s[16:19], s%d offen offset:%d' % (4 + 4 * n, 7 + 4 * n, 21, n * 768) for n in range(4)]
        self.poll(loads, list(range(4, 20)), 28)
        a('''
        v_pk_add_f32 v[4:5], v[4:5], v[8:9]
        v_pk_add_f32 v[6:7], v[6:7], v[10:11]
        v_pk_add_f32 v[12:13], v[12:13], v[16:17]
        v_pk_add_f32 v[14:15], v[14:15], v[18:19]
        v_pk_add_f32 v[20:21], v[4:5], v[12:13]
        v_pk_add_f32 v[22:23], v[6:7], v[14:15]
        ''')
        loads = ['buffer_load_dwordx4 v[%d:%d], v35, s[16:19], s%d offen offset:%d' % (4 + 4 * n, 7 + 4 * n, 22, n * 768) for n in range(4)]
        self.poll(loads, list(range(4, 20)), 28)
        self.stamp(5, None, 162, 164)
        a('''
        v_pk_add_f32 v[4:5], v[4:5], v[8:9]
        v_pk_add_f32 v[6:7], v[6:7], v[10:11]
        v_pk_add_f32 v[12:13], v[12:13], v[16:17]
        v_pk_add_f32 v[14:15], v[14:15], v[18:19]
        v_pk_add_f32 v[4:5], v[4:5], v[12:13]
        v_pk_add_f32 v[6:7], v[6:7], v[14:15]
        v_pk_add_f32 v[4:5], v[4:5], v[20:21]
        v_pk_add_f32 v[6:7], v[6:7], v[22:23]
        ''')
        self.red8([4, 5, 6, 7])
        a('''
        s_nop 1
        v_mov_b32_dpp v5, v4 quad_perm:[1,0,3,2] row_mask:0xf bank_mask:0xf
        v_cvt_pk_bf16_f32 v4, v4, v5
        s_nop 0
        ''')
        PI = [0, 2, 1, 3]
        sp = {}
        n = 0
        for p in (0, 2, 4):
            for q in range(4):
                a('v_readlane_b32 s%d, v4, %d' % (76 + n, p + 16 * q))
                sp[4 * p + PI[q]] = 76 + n; n += 1
        acc = 4
        for k in range(10): a('v_mov_b32 v%d, 0' % (acc + k))
        for (ra, rb) in pairs:
            xa, da = wreg(ra); xb, db = wreg(rb)
            s = sp[ra]
            for k in range(4):
                a('v_dot2c_f32_bf16 v%d, s%d, v%d' % (acc + 2 * k, s, xa + k))
                a('v_dot2c_f32_bf16 v%d, s%d, v%d' % (acc + 2 * k + 1, s, xb + k))
            a('v_dot2c_f32_bf16 v%d, s%d, v%d' % (acc + 8, s, da))
            a('v_dot2c_f32_bf16 v%d, s%d, v%d' % (acc + 9, s, db))
        a('s_nop 2')
        for k in range(10): a('v_min_u32 v%d, -2, v%d' % (acc + k, acc + k))
        a('s_mul_i32 s21, s6, 2560\ns_add_u32 s21, s21, %d' % OFF_A)
        self.store_intra(['buffer_store_dwordx4 v[4:7], v160, s[16:19], s21 offen',
                          'buffer_store_dwordx4 v[8:11], v160, s[16:19], s21 offen offset:16',
                          'buffer_store_dwordx2 v[12:13], v161, s[16:19], s21 offen offset:2048'])
        self.lds_set(L_FLAGA, '1', 14, 15)
        self.stamp(6)
        a('s_cmp_ge_u32 s5, 20\ns_cbranch_scc1 L_A2_end')
        a('v_mov_b32 v1, v36\nv_mov_b32 v2, v38\nv_mov_b32 v3, v37')
        self.reduce32(OFF_A, OFF_X)
        self.stamp(7, None, 162, 164)
        self.gather8(OFF_X)
        self.rnd(4, 4)
        a('v_mul_f32 v4, v31, v4')
        self.rnd(4, 4)
        a('v_add_f32 v4, v30, v4')
        self.rnd(32, 4)
        a('s_lshl_b32 s21, s6, 8\ns_add_u32 s21, s21, %d' % OFF_H)
        self.store_intra(['buffer_store_dwordx2 v[32:33], v39, s[16:19], s21 offen'])
        self.stamp(8, None, 162, 164)
        a('s_and_b32 s21, s5, 7\ns_cmp_lg_u32 s21, s4\ns_cbranch_scc1 L_A2_end')
        a('''
        v_lshrrev_b32 v1, 3, v0
        v_mul_u32_u24 v1, 7680, v1
        v_and_b32 v2, 7, v0
        v_lshl_add_u32 v1, v2, 4, v1
        s_lshl_b32 s21, s5, 7
        s_add_u32 s21, s21, %d
        s_add_u32 s22, s21, 5120
        ''' % OFF_F)
        self.poll(['buffer_load_dwordx4 v[4:7], v1, s[16:19], s21 offen',
                   'buffer_load_dwordx4 v[8:11], v1, s[16:19], s21 offen offset:2560',
                   'buffer_load_dwordx4 v[12:15], v1, s[16:19], s22 offen'], list(range(4, 16)), 20)
        a('''
        v_pk_add_f32 v[4:5], v[4:5], v[8:9]
        v_pk_add_f32 v[6:7], v[6:7], v[10:11]
        v_pk_add_f32 v[4:5], v[4:5], v[12:13]
        v_pk_add_f32 v[6:7], v[6:7], v[14:15]
        ''')
        self.red8([4, 5, 6, 7])
        self.rnd(4, 4)
        a('v_mul_f32 v4, v34, v4')
        self.rnd(4, 4)
        a('''
        v_add_f32 v4, v32, v4
        v_cvt_pk_bf16_f32 v4, v4, v4
        s_lshl_b32 s21, s5, 6
        buffer_store_short v4, v29, s[28:31], s21 offen
        ''')
        self.stamp(12)
        a.label('L_A2_end')
        self.stamp_flush()
        a('s_endpgm')

    def a3_wave(self):
        a = self.a; vm = VM(a)
        a.label('L_A3')
        self.stamp_begin()
        a('''
        s_setprio 3
        s_barrier
        s_cmp_ge_u32 s5, 30
        s_cbranch_scc1 L_end
        s_mul_i32 s20, s5, 52
        s_lshr_b32 s20, s20, 8              ; q5 = i/5
        s_mul_i32 s21, s20, 5
        s_sub_u32 s21, s5, s21              ; rs
        s_and_b32 s22, s20, 1               ; m
        s_lshr_b32 s23, s20, 1              ; cb
        s_mul_i32 s32, s5, 26
        s_lshr_b32 s32, s32, 8              ; fb = i/10
        s_mul_i32 s33, s32, 10
        s_sub_u32 s33, s5, s33              ; cbo
        s_cmp_eq_u32 s22, 0
        s_cselect_b32 s8, s60, s62
        s_cselect_b32 s9, s61, s63
        s_mov_b32 s10, %d
        s_mov_b32 s11, 0x20000
        ''' % (640 * 3072))
        self.srd(24, 64, 1536 * 1280)
        self.t3_lane_off(1, 4, 3072)
        self.t3_lane_off(2, 4, 1280)
        self.lds_spin(L_MODE, None, 4, 5, sleep=8)
        a('''
        s_mov_b32 s45, s93
        s_mul_i32 s34, s21, %d
        s_mul_i32 s35, s4, 384
        s_add_u32 s34, s34, s35
        s_lshl_b32 s35, s23, 7
        s_add_u32 s34, s34, s35             ; gate/up tile base
        s_mul_i32 s35, s4, %d
        s_mul_i32 s36, s32, %d
        s_add_u32 s35, s35, s36
        s_lshl_b32 s36, s33, 7
        s_add_u32 s35, s35, s36             ; down tile base
        ''' % (128 * 3072, 192 * 1280, 64 * 1280))
        GW = 40; DW = 104
        for t in range(16):
            vm.throttle(self.adepth)
            a('s_add_u32 s36, s34, %d\nbuffer_load_dwordx4 v[%d:%d], v1, s[8:11], s36 offen nt' % (t * 8 * 3072, GW + 4 * t, GW + 4 * t + 3)); vm.issue()
        for t in range(8):
            vm.throttle(self.adepth)
            a('s_add_u32 s36, s35, %d\nbuffer_load_dwordx4 v[%d:%d], v2, s[24:27], s36 offen nt' % (t * 8 * 1280, DW + 4 * t, DW + 4 * t + 3)); vm.issue()
        self.sel_masks(136, 4, 5)
        self.pv_addr(140, 4, str(L_H2))
        self.pv_addr(141, 4, str(L_GU))
        self.t3_off(142, 4, 5)
        a('''
        v_lshlrev_b32 v2, 4, v0
        v_lshlrev_b32 v143, 3, v0
        v_lshlrev_b32 v144, 2, v0
        s_lshl_b32 s76, s4, 13
        s_add_u32 s76, s76, %d
        s_add_u32 s77, s76, 4096
        s_lshl_b32 s78, s21, 10
        s_add_u32 s78, s78, s76             ; own 128 rows
        s_mul_i32 s79, s4, 7680
        s_add_u32 s79, s79, %d              ; B_g group base
        s_mul_i32 s80, s22, 5
        s_add_u32 s80, s80, s21
        s_mul_i32 s80, s80, 768
        s_lshl_b32 s81, s23, 8
        s_add_u32 s80, s80, s81
        s_add_u32 s80, s80, s79             ; B_g publish address
        s_lshl_b32 s81, s32, 8
        s_add_u32 s81, s81, s79             ; B_g gather base (g)
        s_add_u32 s82, s81, 3840            ; (u)
        s_mul_i32 s83, s4, 3
        s_add_u32 s83, s83, s32
        s_mul_i32 s83, s83, 2560
        s_lshl_b32 s84, s33, 8
        s_add_u32 s83, s83, s84
        s_add_u32 s83, s83, %d              ; B_f publish address
        ''' % (OFF_H, OFF_G, OFF_F))
        vm.all()
        self.lds_spin(L_FLAGA, None, 4, 5, sleep=2)
        loads = ['buffer_load_dwordx4 v[%d:%d], v2, s[16:19], s%d offen offset:%d' % (4 + 4 * k, 7 + 4 * k, 76 + k // 4, (k % 4) * 1024) for k in range(5)]
        loads.append('buffer_load_dwordx4 v[24:27], v2, s[16:19], s78 offen')
        self.poll(loads, list(range(4, 28)), 28)
        self.stamp(9)
        xs = [4 + 2 * n for n in range(10)]
        self.ln_stats(xs, 28, 29, [30, 31, 32, 33])
        a('v_rcp_f32 v30, v29')
        for n in range(2):
            x = 24 + 2 * n; p = x + 1
            a('v_lshlrev_b32 v31, 16, v%d\nv_and_b32 v32, 0xffff0000, v%d' % (p, p))
            self.modulate(x, 31, 32, 28, 29, 30, 33, 34)
        a('''
        v_cvt_pk_bf16_f32 v24, v24, v24
        v_cvt_pk_bf16_f32 v25, v26, v26
        ds_write_b64 v143, v[24:25] offset:%d
        s_waitcnt lgkmcnt(0)
        ''' % L_H2)
        self.t3_gemv(16, GW, 4, 140, 136, 12, 20)
        self.t3_combine(4, 8)
        self.store_intra(['buffer_store_dwordx4 v[4:7], v142, s[16:19], s80 offen'])
        self.stamp(10)
        loads = []
        for rs in range(5):
            loads.append('buffer_load_dword v%d, v144, s[16:19], s81 offen offset:%d' % (8 + rs, rs * 768))
            loads.append('buffer_load_dword v%d, v144, s[16:19], s82 offen offset:%d' % (13 + rs, rs * 768))
        self.poll(loads, list(range(8, 18)), 28)
        a('''
        v_add_f32 v8, v8, v9
        v_add_f32 v13, v13, v14
        v_add_f32 v10, v10, v11
        v_add_f32 v15, v15, v16
        v_add_f32 v8, v8, v12
        v_add_f32 v13, v13, v17
        v_add_f32 v8, v8, v10
        v_add_f32 v13, v13, v15
        ''')
        self.rnd(8, 8); self.rnd(13, 13)
        a('''
        v_mul_f32 v8, v8, v13
        v_cvt_pk_bf16_f32 v8, v8, v8
        ds_write_b32 v144, v8 offset:%d
        s_waitcnt lgkmcnt(0)
        ''' % L_GU)
        self.t3_gemv(8, DW, 4, 141, 136, 12, 20)
        self.t3_combine(4, 8)
        a('buffer_store_dwordx4 v[4:7], v142, s[16:19], s83 offen sc1')
        self.stamp(11)
        self.stamp_flush()
        a.label('L_end')
        a('s_endpgm')

    def build(self):
        self.prologue()
        self.s_wave()
        self.a0_wave()
        self.a1_wave()
        self.a2_wave()
        self.a3_wave()
        s = wrap(self.a.text(), 256, 768, LDS_BYTES, 168)
        s = s.replace('  .amdhsa_system_sgpr_workgroup_id_x 1\n', '  .amdhsa_system_sgpr_workgroup_id_x 1\n  .amdhsa_float_denorm_mode_32 3\n')
        return s

if __name__ == '__main__':
    import argparse
    ap = argparse.ArgumentParser()
    ap.add_argument('-o', default='k.s')
    ap.add_argument('--stamps', action='store_true')
    ap.add_argument('--opt', default='')
    x = ap.parse_args()
    kw = {}
    for kv in filter(None, x.opt.split(',')):
        k, v = kv.split('=')
        try: v = int(v)
        except ValueError: pass
        kw[k] = v
    open(x.o, 'w').write(Gen(stamps=x.stamps, **kw).build())
```

```python
import sys, struct
from asmgen import *

OFF_MOD = 0x0
OFF_Q   = 0x10000
OFF_ST  = 0x40000
OFF_O   = 0x50000
OFF_H   = 0x90000
OFF_C   = 0x98000
OFF_G   = 0xA0000
OFF_MB  = 0xC0000
OFF_X   = 0x100000
OFF_F   = 0x120000
OFF_STAMP = 128 << 20
WS_BYTES = 268435456
OOB = 0x7ffffff0
L_FLAGQ, L_CNTST, L_FLAGP, L_MODE, L_INIT, L_CNTPV, L_CNTO, L_CNTSL, L_ST1, L_ST2, L_CNTIS = [4 * k for k in range(11)]
L_Q = 256; L_STAT = 1024; L_GSTAT = 1152; L_P = 2048; L_S = 4096; L_H = 5120
L_OSL = 6144; L_OB = 14336; L_H2 = 14848; L_GU = 15872
L_WO = 16384; L_WG = L_WO + 32768; L_WD = L_WO + 49152
LDS_BYTES = L_WO + 57344

def f32(x): return '0x%08x' % struct.unpack('<I', struct.pack('<f', x))[0]
LOG2E = 1.4426950408889634
L2E_HI = struct.unpack('<f', struct.pack('<f', LOG2E))[0]
L2E_LO = LOG2E - L2E_HI
LN2 = 0.6931471805599453

class VM:
    def __init__(self, a): self.a = a; self.n = 0; self.done = 0
    def issue(self): self.n += 1; return self.n - 1
    def wait(self, idx):
        if idx < self.done: return
        cnt = self.n - 1 - idx
        assert cnt <= 63
        self.a('s_waitcnt vmcnt(%d)' % cnt); self.done = idx + 1
    def throttle(self, depth):
        if self.n - self.done >= depth: self.wait(self.n - depth)
    def all(self):
        if self.done < self.n: self.a('s_waitcnt vmcnt(0)'); self.done = self.n

class Gen:
    STPOOL = [37, 38, 39, 40, 41, 42, 43, 44, 47, 98, 99, 100, 101]
    def __init__(self, stamps=False, **kw):
        self.a = Asm(); self.stamps = stamps
        self.o = dict(depth=3, qk_min=3, sig=21, adepth=8, ne=16, pw=4, minst=0, force_slow=0, tp=1)
        self.o.update(kw)

    def srd(self, d, p, size):
        self.a('s_mov_b32 s%d, s%d\ns_mov_b32 s%d, s%d\ns_mov_b32 s%d, %d\ns_mov_b32 s%d, 0x20000' % (d, p, d + 1, p + 1, d + 2, size, d + 3))
    def stamp_begin(self):
        self.stlist = []
        if self.stamps:
            for r in self.STPOOL: self.a('s_mov_b32 s%d, 0' % r)
    def stamp(self, idx):
        if not self.stamps: return
        r = self.STPOOL[len(self.stlist)]; self.stlist.append((idx, r))
        self.a('s_memrealtime s[90:91]\ns_waitcnt lgkmcnt(0)\ns_mov_b32 s%d, s90' % r)
    def tstamp(self, idx):
        if not self.stamps or (self.o['minst'] and idx != 12): return
        r = self.STPOOL[5 + len(self.tl)]; self.tl.append((idx, r))
        self.a('s_memrealtime s[90:91]\ns_waitcnt lgkmcnt(0)\ns_mov_b32 s%d, s90' % r)
    def stamp_flush(self, lst):
        if not self.stamps: return
        a = self.a
        a('s_lshl_b32 s92, s2, 8\ns_add_u32 s92, s92, %d\nv_mov_b32 v1, 0\nv_mov_b32 v3, 0\ns_mov_b64 exec, 1' % OFF_STAMP)
        for idx, r in lst:
            a('v_mov_b32 v2, s%d\nbuffer_store_dwordx2 v[2:3], v1, s[16:19], s92 offen offset:%d\ns_nop 1' % (r, idx * 8))
    def rnd(self, dst, src):
        self.a('v_cvt_pk_bf16_f32 v%d, v%d, v%d\nv_and_b32 v%d, 0xffff0000, v%d' % (dst, src, src, dst, dst))
    def wave_reduce(self, v, t, op):
        a = self.a
        for r in (8, 4, 2, 1):
            a('s_nop 1\nv_%s_f32_dpp v%d, v%d, v%d row_ror:%d row_mask:0xf bank_mask:0xf' % (op, v, v, v, r))
        for sw in ('16', '32'):
            a('v_mov_b32 v%d, v%d\ns_nop 1\nv_permlane%s_swap_b32 v%d, v%d\nv_%s_f32 v%d, v%d, v%d' % (t, v, sw, v, t, op, v, v, t))
    def red8(self, r):
        self.a('''
        s_nop 1
        v_permlane32_swap_b32 v%d, v%d
        v_permlane32_swap_b32 v%d, v%d
        v_add_f32 v%d, v%d, v%d
        v_add_f32 v%d, v%d, v%d
        s_nop 1
        v_permlane16_swap_b32 v%d, v%d
        v_add_f32 v%d, v%d, v%d
        s_nop 1
        v_add_f32_dpp v%d, v%d, v%d row_ror:8 row_mask:0xf bank_mask:0xf
        ''' % (r[0], r[1], r[2], r[3], r[0], r[0], r[1], r[2], r[2], r[3], r[0], r[2], r[0], r[0], r[2], r[0], r[0], r[0]))
    def exp(self, dst, x, t1, t2):
        self.a('''
        v_mul_f32 v%d, %s, v%d
        v_fma_f32 v%d, v%d, s94, -v%d
        v_fmac_f32 v%d, %s, v%d
        v_exp_f32 v%d, v%d
        v_mul_f32 v%d, %s, v%d
        v_fma_f32 v%d, v%d, v%d, v%d
        ''' % (t1, f32(L2E_HI), x, t2, x, t1, t2, f32(L2E_LO), x, t1, t1, t2, f32(LN2), t2, dst, t1, t2, t1))
    def div(self, dst, n, d, t1, t2):
        self.a('''
        v_rcp_f32 v%d, v%d
        s_nop 0
        v_mul_f32 v%d, v%d, v%d
        v_fma_f32 v%d, -v%d, v%d, v%d
        v_fma_f32 v%d, v%d, v%d, v%d
        ''' % (t1, d, t2, n, t1, dst, t2, d, n, dst, dst, t1, t2))
    def lds_spin(self, addr, val, vt, va, sleep=1):
        a = self.a; l = a.newlabel('SP'); l2 = a.newlabel('SPD')
        a('v_mov_b32 v%d, %d\ns_mov_b32 s95, 0' % (va, addr))
        a.label(l)
        a('ds_read_b32 v%d, v%d\ns_waitcnt lgkmcnt(0)\nv_readfirstlane_b32 s93, v%d' % (vt, va, vt))
        a('s_cmp_lg_u32 s93, 0' if val is None else 's_cmp_eq_u32 s93, %d' % val)
        a('s_cbranch_scc1 %s' % l2)
        if sleep: a('s_sleep %d' % sleep)
        a('s_add_u32 s95, s95, 1\ns_cmp_lt_u32 s95, 0x40000\ns_cbranch_scc1 %s' % l)
        a.label(l2)
    def lds_set(self, addr, val, vt, va):
        self.a('v_mov_b32 v%d, %d\nv_mov_b32 v%d, %s\nds_write_b32 v%d, v%d' % (va, addr, vt, val, va, vt))
    def lds_inc(self, addr, vt, va):
        self.a('v_mov_b32 v%d, %d\nv_mov_b32 v%d, 1\ns_mov_b64 exec, 1\nds_add_u32 v%d, v%d\ns_mov_b64 exec, -1' % (va, addr, vt, va, vt))
    def store_intra(self, instrs):
        a = self.a; lf = a.newlabel('SF'); lj = a.newlabel('SJ')
        a('s_cmp_eq_u32 s45, 1\ns_cbranch_scc0 %s' % lf)
        for i in instrs: a(i)
        a.label(lj)
        self.cold.append((lf, [i + ' sc1' for i in instrs], lj))
    def chk(self, regs, vt):
        a = self.a; rs = list(regs)
        if len(rs) == 1:
            a('v_cmp_eq_u32 vcc, -1, v%d' % rs[0]); return
        if len(rs) == 2:
            a('v_max_u32 v%d, v%d, v%d' % (vt, rs[0], rs[1])); rest = []
        else:
            a('v_max3_u32 v%d, v%d, v%d, v%d' % (vt, rs[0], rs[1], rs[2])); rest = rs[3:]
        while rest:
            if len(rest) == 1:
                a('v_max_u32 v%d, v%d, v%d' % (vt, vt, rest[0])); rest = []
            else:
                a('v_max3_u32 v%d, v%d, v%d, v%d' % (vt, vt, rest[0], rest[1])); rest = rest[2:]
        a('v_cmp_eq_u32 vcc, -1, v%d' % vt)
    def poll(self, loads, regs, vt, sleep=0):
        a = self.a; l = a.newlabel('PL'); l2 = a.newlabel('PD')
        a('s_mov_b32 s95, 0')
        a.label(l)
        for i in loads: a(i + ' sc1')
        a('s_waitcnt vmcnt(0)')
        self.chk(regs, vt)
        a('s_cbranch_vccz %s' % l2)
        if sleep: a('s_sleep %d' % sleep)
        a('s_add_u32 s95, s95, 1\ns_cmp_lt_u32 s95, 0x10000\ns_cbranch_scc1 %s' % l)
        a.label(l2)
    def sel_masks(self, m, t1, t2):
        a = self.a
        a('''
        v_and_b32 v%d, 1, v0
        v_lshlrev_b32 v%d, 4, v%d
        v_mov_b32 v%d, 0xffff
        v_lshlrev_b32 v%d, v%d, v%d
        v_bfe_u32 v%d, v0, 1, 2
        ''' % (t1, t1, t1, t2, t1, t1, t2, t2))
        for k in range(4):
            a('v_cmp_eq_u32 vcc, %d, v%d\ns_nop 1\nv_cndmask_b32 v%d, 0, v%d, vcc' % (k, t2, m + k, t1))
    def pv_addr(self, dst, t1, base):
        self.a('''
        v_lshrrev_b32 v%d, 4, v0
        v_bfe_u32 v%d, v0, 3, 1
        v_lshl_add_u32 v%d, v%d, 2, v%d
        v_lshlrev_b32 v%d, 2, v%d
        v_add_u32 v%d, %s, v%d
        ''' % (dst, t1, dst, t1, dst, dst, dst, dst, base, dst))
    def vshape_offsets(self, v1, v3, t1, t2, rs):
        self.a('''
        v_lshrrev_b32 v%d, 4, v0
        v_and_b32 v%d, 15, v0
        v_mul_u32_u24 v%d, %d, v%d
        v_lshl_add_u32 v%d, v%d, 4, v%d
        v_bfe_u32 v%d, v0, 3, 1
        v_lshl_add_u32 v%d, v%d, 2, v%d
        v_mul_u32_u24 v%d, %d, v%d
        v_and_b32 v%d, 7, v0
        v_lshl_add_u32 v%d, v%d, 4, v%d
        v_add_u32 v%d, 256, v%d
        ''' % (t1, t2, v1, rs, t1, v1, t2, v1, t2, v3, t2, t1, v3, rs, v3, t2, v3, t2, v3, v3, v3))
    def vshape_off(self, voff, t1, t2):
        self.a('''
        v_and_b32 v%d, 15, v0
        v_lshrrev_b32 v%d, 4, v0
        v_lshlrev_b32 v%d, 5, v%d
        v_lshl_add_u32 v%d, v%d, 4, v%d
        v_add_u32 v%d, %d, v%d
        v_cmp_gt_u32 vcc, 32, v0
        v_mov_b32 v%d, %s
        s_nop 0
        v_cndmask_b32 v%d, v%d, v%d, vcc
        v_and_b32 v%d, 40, v0
        v_cmp_eq_u32 vcc, 32, v%d
        s_nop 1
        v_cndmask_b32 v%d, v%d, v%d, vcc
        ''' % (t1, t2, voff, t1, voff, t2, voff, t1, 224, voff, t2, OOB, voff, t1, voff, t1, t1, voff, voff, t2))
    def vshape_combine(self, d1, d2, d3, clampit=True):
        a = self.a
        for r in range(4): a('v_permlane32_swap_b32 v%d, v%d' % (d2 + r, d3 + r))
        for r in range(4): a('v_add_f32 v%d, v%d, v%d' % (d1 + r, d1 + r, d3 + r))
        for r in range(4): a('v_add_f32_dpp v%d, v%d, v%d row_ror:8 row_mask:0xc bank_mask:0xf' % (d1 + r, d2 + r, d3 + r))
        if clampit:
            for r in range(4): a('v_min_u32 v%d, -2, v%d' % (d1 + r, d1 + r))
    def roles(self):
        self.a('''
        s_mul_i32 s77, s5, 26
        s_lshr_b32 s77, s77, 8
        s_mul_i32 s76, s77, 10
        s_sub_u32 s76, s5, s76
        s_mul_i32 s80, s5, 52
        s_lshr_b32 s80, s80, 8
        s_mul_i32 s78, s80, 5
        s_sub_u32 s78, s5, s78
        s_and_b32 s79, s80, 1
        s_lshr_b32 s80, s80, 1
        ''')
    def tile_bases(self):
        self.a('''
        s_mul_i32 s33, s4, %d
        s_mul_i32 s36, s77, %d
        s_add_u32 s33, s33, s36
        s_lshl_b32 s36, s76, 7
        s_add_u32 s33, s33, s36
        s_mul_i32 s34, s78, %d
        s_mul_i32 s35, s4, 384
        s_add_u32 s34, s34, s35
        s_lshl_b32 s35, s80, 7
        s_add_u32 s34, s34, s35
        s_mul_i32 s35, s4, %d
        s_mul_i32 s36, s77, %d
        s_add_u32 s35, s35, s36
        s_lshl_b32 s36, s76, 7
        s_add_u32 s35, s35, s36
        s_cmp_ge_u32 s5, 30
        s_cselect_b32 s33, 0x40000000, s33
        s_cselect_b32 s34, 0x40000000, s34
        s_cselect_b32 s35, 0x40000000, s35
        ''' % (768 * 1280, 256 * 1280, 128 * 3072, 192 * 1280, 64 * 1280))
    def red_addrs(self):
        self.a('''
        v_and_b32 v24, 7, v0
        v_lshlrev_b32 v24, 2, v24
        v_bfe_u32 v25, v0, 4, 1
        v_lshl_add_u32 v24, v25, 1, v24
        v_lshrrev_b32 v25, 5, v0
        v_add_u32 v24, v24, v25                  ; col in block = 4c + PI[q]
        v_and_b32 v27, 8, v0
        v_cmp_eq_u32 vcc, 0, v27
        v_mov_b32 v27, %s
        v_lshlrev_b32 v38, 2, v24
        v_cndmask_b32 v38, v27, v38, vcc         ; line store offset (dword)
        v_lshlrev_b32 v39, 1, v24
        v_cndmask_b32 v39, v27, v39, vcc         ; out store offset (2B)
        v_lshrrev_b32 v37, 3, v0
        v_mul_u32_u24 v37, 15360, v37
        v_and_b32 v25, 3, v0
        v_lshl_add_u32 v37, v25, 4, v37
        v_bfe_u32 v25, v0, 2, 1
        v_lshl_add_u32 v37, v25, 7, v37          ; gather24 lane offset
        ''' % OOB)
    def mbpoll(self, word, sleep=0):
        a = self.a; l = a.newlabel('MB'); l2 = a.newlabel('MBD')
        a('s_lshl_b32 s20, s6, 7\ns_add_u32 s20, s20, %d\ns_mov_b32 s95, 0' % (OFF_MB + 4 * word))
        a.label(l)
        a('s_load_dword s33, s[74:75], s20 glc\ns_waitcnt lgkmcnt(0)\ns_cmp_lg_u32 s33, -1\ns_cbranch_scc1 %s' % l2)
        if sleep: a('s_sleep %d' % sleep)
        a('s_add_u32 s95, s95, 1\ns_cmp_lt_u32 s95, 0x10000\ns_cbranch_scc1 %s' % l)
        a.label(l2)

    def prologue(self):
        a = self.a
        a('''
        s_cmp_ge_u32 s2, 256
        s_cbranch_scc1 L_end
        s_load_dwordx16 s[48:63], s[0:1], 0
        s_load_dwordx8 s[64:71], s[0:1], 64
        s_load_dwordx4 s[72:75], s[0:1], 96
        v_lshrrev_b32 v1, 6, v0
        v_and_b32 v0, 63, v0
        v_readfirstlane_b32 s3, v1
        s_and_b32 s4, s2, 7
        s_lshr_b32 s5, s2, 3
        s_lshl_b32 s6, s4, 5
        s_add_u32 s6, s6, s5
        s_lshr_b32 s7, s6, 3
        s_and_b32 s46, s6, 7
        s_mov_b32 s94, %s
        s_mov_b32 s45, 0
        s_waitcnt lgkmcnt(0)
        ''' % f32(L2E_HI))
        self.srd(16, 74, WS_BYTES)
        a('''
        s_cmp_eq_u32 s3, 8
        s_cbranch_scc1 L_A0
        s_cmp_eq_u32 s3, 9
        s_cbranch_scc1 L_A1
        s_cmp_eq_u32 s3, 10
        s_cbranch_scc1 L_A2
        s_cmp_eq_u32 s3, 11
        s_cbranch_scc1 L_A3
        ''')

    def s_wave(self):
        a = self.a; vm = VM(a); D = self.o['depth']; NE = self.o['ne']
        self.stamp_begin(); self.stamp(0)
        self.srd(8, 50, 50331648); self.srd(12, 52, 50331648)
        a('''
        s_lshl_b32 s20, s6, 3
        s_add_u32 s20, s20, s3
        s_mul_i32 s20, s20, 24576
        v_and_b32 v4, 7, v0
        v_mul_u32_u24 v1, 384, v4
        v_bfe_u32 v4, v0, 3, 1
        v_lshl_add_u32 v1, v4, 6, v1
        v_lshrrev_b32 v4, 4, v0
        v_lshl_add_u32 v1, v4, 4, v1
        ''')
        KB = 28; VF = 124; NF = 11
        kreg = lambda t, s: KB + (t * 3 + s) * 4
        kidx = {}
        for t in range(8):
            a('s_add_u32 s21, s20, %d' % (t * 3072))
            for s in range(3):
                vm.throttle(D)
                a('buffer_load_dwordx4 v[%d:%d], v1, s[8:11], s21 offen offset:%d nt' % (kreg(t, s), kreg(t, s) + 3, s * 128))
                kidx[(t, s)] = vm.issue()
                if vm.n == min(D, 4):
                    self.vshape_offsets(2, 3, 4, 5, 384)
                    a('s_barrier')
        vtiles = [(t, ty) for t in range(8) for ty in range(3)]
        vreg = {tt: (VF + 4 * n if n < NF else KB + 4 * (n - NF)) for n, tt in enumerate(vtiles)}
        vidx = {}
        def issue_v(n):
            t, ty = vtiles[n]
            vm.throttle(D)
            a('s_add_u32 s21, s20, %d' % (t * 3072))
            r = vreg[(t, ty)]
            if ty == 0: a('buffer_load_dwordx4 v[%d:%d], v2, s[12:15], s21 offen nt' % (r, r + 3))
            elif ty == 1: a('buffer_load_dwordx4 v[%d:%d], v2, s[12:15], s21 offen offset:1536 nt' % (r, r + 3))
            else: a('buffer_load_dwordx4 v[%d:%d], v3, s[12:15], s21 offen nt' % (r, r + 3))
            vidx[(t, ty)] = vm.issue()
        P = 11
        QMIN = max(self.o['qk_min'], D)
        a('s_lshr_b32 s97, s3, 8\nv_mov_b32 v25, %d' % L_FLAGQ)
        for n in range(P):
            issue_v(n)
            if n + 1 >= QMIN and n + 1 < P:
                assert vm.done >= 24
                l = a.newlabel('QS')
                a('''
                s_cmp_lg_u32 s97, 0
                s_cbranch_scc1 %s
                ds_read_b32 v24, v25
                s_waitcnt lgkmcnt(0)
                v_readfirstlane_b32 s93, v24
                s_cmp_eq_u32 s93, 0
                s_cbranch_scc1 %s
                s_call_b64 s[30:31], L_QK
                ''' % (l, l))
                a.label(l)
        self.stamp(17)
        a('s_cmp_lg_u32 s97, 0\ns_cbranch_scc1 L_QK_done')
        self.lds_spin(L_FLAGQ, None, 24, 25, sleep=2)
        a('s_call_b64 s[30:31], L_QK\ns_branch L_QK_done')
        a.label('L_QK')
        a('''
        v_and_b32 v24, 1, v0
        v_lshrrev_b32 v25, 4, v0
        v_lshl_add_u32 v24, v24, 2, v25
        v_lshlrev_b32 v24, 4, v24
        ds_read_b128 v[4:7], v24 offset:%d
        ds_read_b128 v[8:11], v24 offset:%d
        ds_read_b128 v[12:15], v24 offset:%d
        s_waitcnt lgkmcnt(0)
        ''' % (L_Q, L_Q + 128, L_Q + 256))
        vS = 24
        def pack(t):
            acc = 16 + 4 * (t & 1)
            if t % 2 == 0: a('v_add_f32_dpp v%d, v%d, v%d row_ror:8 row_mask:0x%x bank_mask:0x3' % (vS, acc + 1, acc, 1 << (t // 2)))
            else: a('v_add_f32_dpp v%d, v%d, v%d row_ror:8 row_mask:0x%x bank_mask:0xc' % (vS, acc, acc + 1, 1 << (t // 2)))
        for t in range(8):
            acc = 16 + 4 * (t & 1)
            vm.wait(kidx[(t, 2)])
            for s in range(3):
                c = '0' if s == 0 else 'v[%d:%d]' % (acc, acc + 3)
                a('v_mfma_f32_16x16x32_bf16 v[%d:%d], v[%d:%d], v[%d:%d], %s' % (acc, acc + 3, 4 + 4 * s, 7 + 4 * s, kreg(t, s), kreg(t, s) + 3, c))
            if t >= 1:
                a('s_nop 4'); pack(t - 1); a('s_nop 2')
        a('s_nop 7'); pack(7); a('s_nop 0')
        if not self.o.get('skip_sc1'): self.rnd(vS, vS)
        a('v_mul_f32 v%d, %s, v%d' % (vS, f32(192 ** -0.5), vS))
        if not self.o.get('skip_sc2'): self.rnd(vS, vS)
        a('v_mov_b32 v16, v%d' % vS)
        self.wave_reduce(16, 17, 'max')
        a('v_sub_f32 v18, v%d, v16\nv_max_f32 v18, %s, v18' % (vS, f32(-200.0)))
        self.exp(17, 18, 19, 20)
        self.wave_reduce(17, 18, 'add')
        a('''
        s_lshl_b32 s21, s3, 3
        s_add_u32 s21, s21, %d
        v_mov_b32 v18, s21
        ds_write_b64 v18, v[16:17]
        s_waitcnt lgkmcnt(0)
        ''' % L_STAT)
        self.lds_inc(L_CNTST, 19, 18)
        self.stamp(15)
        a('s_or_b32 s97, s3, 256\ns_setpc_b64 s[30:31]')
        a.label('L_QK_done')
        for n in range(P, 24):
            issue_v(n)
            if n == self.o['sig']: self.lds_inc(L_CNTIS, 5, 4)
        self.sel_masks(16, 25, 26)
        a('s_lshl_b32 s22, s3, 8\ns_add_u32 s22, s22, %d' % L_P)
        self.pv_addr(1, 25, 's22')
        self.stamp(18)
        self.lds_spin(L_FLAGP, None, 25, 26, sleep=2)
        a('''
        v_mov_b32 v25, %d
        ds_read_b64 v[26:27], v25
        v_mov_b32 v25, %d
        ds_read_b32 v25, v25
        v_lshlrev_b32 v2, 2, v0
        v_add_u32 v2, s22, v2
        s_waitcnt lgkmcnt(0)
        v_readfirstlane_b32 s45, v25
        v_sub_f32 v24, v24, v26
        v_max_f32 v24, %s, v24
        ''' % (L_GSTAT, L_MODE, f32(-200.0)))
        self.exp(24, 24, 20, 21)
        self.div(24, 24, 27, 20, 21)
        a('''
        v_cvt_pk_bf16_f32 v24, v24, v24
        ds_write_b32 v2, v24
        s_waitcnt lgkmcnt(0)
        ds_read_b32 v2, v1 offset:0
        ds_read_b32 v3, v1 offset:32
        s_setprio 3
        ''')
        for t in range(8):
            sel = 20 + 4 * (t & 1); pv = 2 + (t & 1)
            a('s_waitcnt lgkmcnt(%d)' % (1 if t < 7 else 0))
            for k in range(4): a('v_and_b32 v%d, v%d, v%d' % (sel + k, pv, 16 + k))
            if t + 2 < 8: a('ds_read_b32 v%d, v1 offset:%d\ns_nop 0' % (pv, 32 * (t + 2)))
            elif t == 6: a('s_nop 1')
            else:
                self.lds_inc(L_CNTPV, 2, 1)
                self.vshape_off(1, 2, 3)
                a('''
                v_min_u32 v2, 1008, v1
                s_lshl_b32 s21, s3, 10
                v_add_u32 v3, s21, v2
                v_mov_b32 v16, %d
                v_mov_b32 v17, 1
                s_mul_i32 s21, s6, 768
                s_add_u32 s21, s21, %d
                ''' % (L_CNTSL, OFF_O))
            for ty in range(3):
                vm.wait(vidx[(t, ty)])
                acc = 4 + 4 * ty
                c = '0' if t == 0 else 'v[%d:%d]' % (acc, acc + 3)
                r = vreg[(t, ty)]
                a('v_mfma_f32_16x16x32_bf16 v[%d:%d], v[%d:%d], v[%d:%d], %s' % (acc, acc + 3, sel, sel + 3, r, r + 3, c))
        a('s_nop 7')
        self.vshape_combine(4, 8, 12, clampit=False)
        a('''
        ds_write_b128 v3, v[4:7] offset:%d
        s_waitcnt lgkmcnt(0)
        s_mov_b64 exec, 1
        ds_add_rtn_u32 v17, v16, v17
        s_mov_b64 exec, -1
        s_waitcnt lgkmcnt(0)
        v_readfirstlane_b32 s22, v17
        s_cmp_lg_u32 s22, 7
        s_cbranch_scc1 L_S_end
        ''' % L_OSL)
        for k in range(8):
            a('ds_read_b128 v[%d:%d], v2 offset:%d' % (28 + 4 * k, 31 + 4 * k, L_OSL + 1024 * k))
        for k in range(0, 8, 2):
            a('s_waitcnt lgkmcnt(%d)' % (6 - k))
            a('v_pk_add_f32 v[%d:%d], v[%d:%d], v[%d:%d]' % (28 + 4 * k, 29 + 4 * k, 28 + 4 * k, 29 + 4 * k, 32 + 4 * k, 33 + 4 * k))
            a('v_pk_add_f32 v[%d:%d], v[%d:%d], v[%d:%d]' % (30 + 4 * k, 31 + 4 * k, 30 + 4 * k, 31 + 4 * k, 34 + 4 * k, 35 + 4 * k))
        a('''
        v_pk_add_f32 v[28:29], v[28:29], v[36:37]
        v_pk_add_f32 v[30:31], v[30:31], v[38:39]
        v_pk_add_f32 v[44:45], v[44:45], v[52:53]
        v_pk_add_f32 v[46:47], v[46:47], v[54:55]
        v_pk_add_f32 v[28:29], v[28:29], v[44:45]
        v_pk_add_f32 v[30:31], v[30:31], v[46:47]
        v_min_u32 v28, -2, v28
        v_min_u32 v29, -2, v29
        v_min_u32 v30, -2, v30
        v_min_u32 v31, -2, v31
        ''')
        self.store_intra(['buffer_store_dwordx4 v[28:31], v1, s[16:19], s21 offen'])
        self.stamp(4)
        a('s_branch L_S_end2')
        a.label('L_S_end')
        if self.stamps:
            r4 = self.stlist[-1][1]
            a('s_memrealtime s[90:91]\ns_waitcnt lgkmcnt(0)\ns_mov_b32 s%d, s90' % r4)
        a('s_cmp_lg_u32 s22, 0\ns_cbranch_scc1 L_S_end2\ns_cmp_ge_u32 s5, 30\ns_cbranch_scc1 L_S_end2\ns_setprio 0')
        self.roles(); self.tile_bases()
        a('''
        s_cmp_eq_u32 s79, 0
        s_cselect_b32 s24, s60, s62
        s_cselect_b32 s25, s61, s63
        s_mov_b32 s26, %d
        s_mov_b32 s27, 0x20000
        ''' % (640 * 3072))
        self.srd(28, 56, 6144 * 1280)
        self.srd(8, 64, 1536 * 1280)
        a('''
        v_lshrrev_b32 v6, 3, v0
        v_and_b32 v7, 7, v0
        v_mul_u32_u24 v4, 3072, v6
        v_lshl_add_u32 v4, v7, 4, v4
        v_mul_u32_u24 v5, 1280, v6
        v_lshl_add_u32 v5, v7, 4, v5
        ''')
        self.lds_spin(L_CNTIS, 8, 8, 9, sleep=1)
        for t in range(NE, 32):
            a('s_mov_b32 m0, %d\ns_add_u32 s36, s33, %d\nbuffer_load_dwordx4 v5, s[28:31], s36 offen nt lds' % (L_WO + 1024 * t, t * 8 * 1280))
        for t in range(16):
            a('s_mov_b32 m0, %d\ns_add_u32 s36, s34, %d\nbuffer_load_dwordx4 v4, s[24:27], s36 offen nt lds' % (L_WG + 1024 * t, t * 8 * 3072))
        for t in range(8):
            a('s_mov_b32 m0, %d\ns_add_u32 s36, s35, %d\nbuffer_load_dwordx4 v5, s[8:11], s36 offen nt lds' % (L_WD + 1024 * t, t * 8 * 1280))
        a('s_setprio 3')
        if NE < 32:
            a('s_waitcnt vmcnt(24)')
            self.lds_inc(L_ST1, 17, 16)
        a('s_waitcnt vmcnt(0)')
        self.lds_inc(L_ST2, 17, 16)
        a.label('L_S_end2')
        if self.stamps:
            r15 = [r for (i, r) in self.stlist if i == self.o['pw']][0]
            a('s_lshl_b32 s92, s2, 8\ns_add_u32 s92, s92, %d\ns_lshl_b32 s93, s3, 3\ns_add_u32 s92, s92, s93\nv_mov_b32 v1, 0\nv_mov_b32 v3, 0\nv_mov_b32 v2, s%d\ns_mov_b64 exec, 1\nbuffer_store_dwordx2 v[2:3], v1, s[16:19], s92 offen\ns_nop 1' % (OFF_STAMP + 160, r15))
            a('s_cmp_lg_u32 s3, 0\ns_cbranch_scc1 L_end')
            self.stamp_flush(self.stlist)
        a('s_endpgm')

    def a0_wave(self):
        a = self.a; vm = VM(a)
        a.label('L_A0')
        self.stamp_begin()
        a('s_setprio 2')
        self.srd(8, 68, 640 * 7680); self.srd(12, 66, 1280)
        a('''
        v_lshlrev_b32 v1, 2, v0
        v_mov_b32 v2, 0
        ds_write_b32 v1, v2
        s_cmp_ge_u32 s2, 240
        s_cbranch_scc1 L_A0_bar
        s_and_b32 s20, s2, 3
        s_lshr_b32 s21, s2, 2
        s_mul_i32 s22, s20, %d
        s_lshl_b32 s23, s21, 7
        s_add_u32 s22, s22, s23
        v_lshrrev_b32 v4, 4, v0
        v_bfe_u32 v5, v0, 3, 1
        v_lshl_add_u32 v4, v5, 2, v4
        v_mul_u32_u24 v4, 7680, v4
        v_and_b32 v5, 7, v0
        v_lshl_add_u32 v4, v5, 4, v4
        s_mul_i32 s24, s20, 320
        v_lshlrev_b32 v5, 1, v0
        buffer_load_ushort v6, v5, s[12:15], s24 offen
        buffer_load_ushort v7, v5, s[12:15], s24 offen offset:128
        buffer_load_ushort v8, v5, s[12:15], s24 offen offset:256
        ''' % (160 * 7680))
        for _ in range(3): vm.issue()
        W = 40; widx = []
        for t in range(20):
            a('s_add_u32 s23, s22, %d\nbuffer_load_dwordx4 v[%d:%d], v4, s[8:11], s23 offen nt' % (t * 8 * 7680, W + 4 * t, W + 4 * t + 3))
            widx.append(vm.issue())
        a.label('L_A0_bar')
        a('s_waitcnt lgkmcnt(0)\ns_barrier\ns_cmp_ge_u32 s2, 240\ns_cbranch_scc1 L_A0_stats')
        self.sel_masks(16, 9, 10)
        self.pv_addr(1, 9, str(L_S))
        vm.wait(2)
        for k in range(3):
            r = 6 + k
            a('v_lshlrev_b32 v%d, 16, v%d\nv_sub_f32 v9, 0, v%d\nv_min_f32 v9, %s, v9\nv_max_f32 v9, %s, v9' % (r, r, r, f32(88.0), f32(-200.0)))
            self.exp(10, 9, 11, 12)
            a('v_add_f32 v10, 1.0, v10')
            self.div(r, r, 10, 11, 12)
            a('v_cvt_pk_bf16_f32 v%d, v%d, v%d' % (r, r, r))
        a('''
        v_lshlrev_b32 v9, 2, v0
        ds_write_b32 v9, v6 offset:%d
        ds_write_b32 v9, v7 offset:%d
        ds_write_b32 v9, v8 offset:%d
        s_waitcnt lgkmcnt(0)
        ds_read_b32 v2, v1 offset:0
        ds_read_b32 v3, v1 offset:32
        ''' % (L_S, L_S + 256, L_S + 512))
        for t in range(20):
            sel = 20 + 4 * (t & 1); pv = 2 + (t & 1)
            a('s_waitcnt lgkmcnt(%d)' % (1 if t < 19 else 0))
            for k in range(4): a('v_and_b32 v%d, v%d, v%d' % (sel + k, pv, 16 + k))
            a('ds_read_b32 v%d, v1 offset:%d' % (pv, 32 * (t + 2)) if t + 2 < 20 else 's_nop 0')
            a('s_nop 0')
            vm.wait(widx[t])
            a('v_mfma_f32_16x16x32_bf16 v[4:7], v[%d:%d], v[%d:%d], %s' % (sel, sel + 3, W + 4 * t, W + 4 * t + 3, '0' if t == 0 else 'v[4:7]'))
        a('''
        v_and_b32 v9, 15, v0
        v_lshrrev_b32 v10, 4, v0
        v_lshlrev_b32 v1, 5, v9
        v_lshl_add_u32 v1, v10, 4, v1
        v_and_b32 v9, 40, v0
        v_cmp_eq_u32 vcc, 0, v9
        v_mov_b32 v10, %s
        s_nop 0
        v_cndmask_b32 v1, v10, v1, vcc
        s_nop 2
        ''' % OOB)
        for r in range(4): a('v_permlane32_swap_b32 v%d, v%d' % (4 + r, 8 + r))
        a('s_nop 1')
        for r in range(4): a('v_add_f32_dpp v%d, v%d, v%d row_ror:8 row_mask:0xf bank_mask:0xf' % (4 + r, 8 + r, 4 + r))
        for r in range(4): a('v_min_u32 v%d, -2, v%d' % (4 + r, 4 + r))
        self.lds_spin(L_INIT, None, 9, 10, sleep=1)
        a('''
        s_mul_i32 s22, s20, 15360
        s_lshl_b32 s23, s21, 8
        s_add_u32 s22, s22, s23
        s_add_u32 s22, s22, %d
        buffer_store_dwordx4 v[4:7], v1, s[16:19], s22 offen sc1
        ''' % OFF_MOD)
        self.stamp(1)
        a.label('L_A0_stats')
        self.lds_spin(L_MODE, None, 9, 10, sleep=4)
        a('s_mov_b32 s45, s93')
        self.lds_spin(L_CNTST, 8, 9, 10, sleep=2)
        a('v_and_b32 v1, 7, v0\nv_lshlrev_b32 v2, 3, v1\nds_read_b64 v[4:5], v2 offset:%d\ns_waitcnt lgkmcnt(0)' % L_STAT)
        def combine_stats():
            a('v_mov_b32 v6, v4')
            for r in (4, 2, 1): a('s_nop 1\nv_max_f32_dpp v6, v6, v6 row_ror:%d row_mask:0xf bank_mask:0xf' % r)
            a('v_sub_f32 v8, v4, v6\nv_max_f32 v8, %s, v8' % f32(-200.0))
            self.exp(7, 8, 9, 10)
            a('v_mul_f32 v7, v7, v5')
            for r in (4, 2, 1): a('s_nop 1\nv_add_f32_dpp v7, v7, v7 row_ror:%d row_mask:0xf bank_mask:0xf' % r)
        combine_stats()
        a('''
        v_min_u32 v6, -2, v6
        v_min_u32 v7, -2, v7
        s_lshl_b32 s22, s6, 7
        s_add_u32 s22, s22, %d
        v_readfirstlane_b32 s24, v6
        v_readfirstlane_b32 s25, v7
        s_lshl_b32 s23, s7, 10
        s_add_u32 s23, s23, %d
        s_nop 2
        s_atomic_swap_x2 s[24:25], s[74:75], s22
        s_mov_b32 s95, 0
        L_A0_sp:
        ''' % (OFF_ST, OFF_ST))
        for k in range(8): a('s_load_dwordx2 s[%d:%d], s[74:75], s23 offset:%d glc' % (76 + 2 * k, 77 + 2 * k, 128 * k))
        a('s_waitcnt lgkmcnt(0)\ns_max_u32 s26, s76, s77')
        for k in range(2, 16): a('s_max_u32 s26, s26, s%d' % (76 + k))
        a('''
        s_cmp_lg_u32 s26, -1
        s_cbranch_scc1 L_A0_spd
        s_add_u32 s95, s95, 1
        s_cmp_lt_u32 s95, 0x10000
        s_cbranch_scc1 L_A0_sp
        L_A0_spd:
        ''')
        for k in range(8):
            a('v_writelane_b32 v4, s%d, %d\nv_writelane_b32 v4, s%d, %d\nv_writelane_b32 v5, s%d, %d\nv_writelane_b32 v5, s%d, %d' % (76 + 2 * k, k, 76 + 2 * k, k + 8, 77 + 2 * k, k, 77 + 2 * k, k + 8))
        combine_stats()
        a('v_mov_b32 v2, %d\ns_mov_b64 exec, 1\nds_write_b64 v2, v[6:7]\ns_mov_b64 exec, -1\ns_waitcnt lgkmcnt(0)' % L_GSTAT)
        self.lds_set(L_FLAGP, '1', 9, 10)
        self.stamp(3)
        self.stl_a0 = list(self.stlist)
        a('s_branch L_TAIL')

    def a1_wave(self):
        a = self.a; vm = VM(a)
        a.label('L_A1')
        self.stamp_begin()
        a('s_setprio 2')
        self.srd(8, 54, 640 * 12288); self.srd(12, 48, 1280)
        a('''
        v_lshlrev_b32 v4, 2, v0
        buffer_load_dword v20, v4, s[12:15], 0 offen
        buffer_load_dword v21, v4, s[12:15], 0 offen offset:256
        buffer_load_dword v22, v4, s[12:15], 0 offen offset:512
        buffer_load_dword v23, v4, s[12:15], 0 offen offset:768
        buffer_load_dword v24, v4, s[12:15], 0 offen offset:1024
        v_min_u32 v1, 19, v0
        v_lshlrev_b32 v4, 3, v1
        s_mul_i32 s20, s46, 160
        buffer_load_dwordx2 v[26:27], v4, s[12:15], s20 offen
        ''')
        for _ in range(6): vm.issue()
        self.vshape_offsets(2, 3, 4, 5, 12288)
        a('s_barrier\ns_mul_i32 s20, s46, %d\ns_mul_i32 s21, s7, 384\ns_add_u32 s20, s20, s21' % (80 * 12288))
        W = 40
        for t in range(10):
            a('s_add_u32 s21, s20, %d\ns_add_u32 s22, s20, %d' % (t * 8 * 12288, (t * 8 + 4) * 12288))
            for ty in range(3):
                r = W + (t * 3 + ty) * 4
                a('buffer_load_dwordx4 v[%d:%d], v%d, s[8:11], s%d offen nt' % (r, r + 3, 3 if ty == 2 else 2, 22 if ty == 1 else 21))
                vm.issue()
        vm.wait(5)
        for k in range(5):
            a('v_lshlrev_b32 v%d, 16, v%d\nv_and_b32 v%d, 0xffff0000, v%d' % (28 + 2 * k, 20 + k, 29 + 2 * k, 20 + k))
        vals = list(range(28, 38)); vmu, vden = 38, 39
        a('v_add_f32 v%d, v%d, v%d' % (vmu, vals[0], vals[1]))
        for v in vals[2:]: a('v_add_f32 v%d, v%d, v%d' % (vmu, vmu, v))
        self.wave_reduce(vmu, 4, 'add')
        a('v_mul_f32 v%d, %s, v%d' % (vmu, f32(1.0 / 640), vmu))
        a('v_sub_f32 v4, v%d, v%d\nv_mul_f32 v%d, v4, v4' % (vals[0], vmu, vden))
        for v in vals[1:]: a('v_sub_f32 v4, v%d, v%d\nv_fmac_f32 v%d, v4, v4' % (v, vmu, vden))
        self.wave_reduce(vden, 4, 'add')
        a('v_mul_f32 v%d, %s, v%d' % (vden, f32(1.0 / 640), vden))
        self.rnd(vden, vden)
        a('v_add_f32 v%d, %s, v%d' % (vden, f32(1e-5), vden))
        self.rnd(vden, vden)
        a('v_sqrt_f32 v%d, v%d\ns_nop 0' % (vden, vden))
        self.rnd(vden, vden); self.rnd(vmu, vmu)
        a('''
        v_lshlrev_b32 v28, 16, v26
        v_and_b32 v29, 0xffff0000, v26
        v_lshlrev_b32 v30, 16, v27
        v_and_b32 v31, 0xffff0000, v27
        v_rcp_f32 v32, v39
        ''')
        for k in range(4):
            x = 28 + k
            a('v_sub_f32 v%d, v%d, v38' % (x, x)); self.rnd(x, x)
            a('v_mul_f32 v33, v%d, v32\nv_fma_f32 v34, -v33, v39, v%d\nv_fma_f32 v%d, v34, v32, v33' % (x, x, x)); self.rnd(x, x)
        self.pv_addr(35, 33, str(L_H))
        self.vshape_off(36, 33, 34)
        self.lds_spin(L_MODE, None, 4, 5, sleep=4)
        a('''
        s_mov_b32 s45, s93
        s_mul_i32 s20, s46, 320
        s_add_u32 s20, s20, %d
        s_add_u32 s21, s20, 15360
        s_add_u32 s22, s20, 30720
        s_add_u32 s23, s20, 46080
        v_lshlrev_b32 v2, 4, v1
        ''' % OFF_MOD)
        g = [4, 8, 12, 16, 20, 24, 160, 164]
        loads = []
        for rs in range(4):
            loads.append('buffer_load_dwordx4 v[%d:%d], v2, s[16:19], s%d offen' % (g[rs], g[rs] + 3, 20 + rs))
            loads.append('buffer_load_dwordx4 v[%d:%d], v2, s[16:19], s%d offen offset:2560' % (g[4 + rs], g[4 + rs] + 3, 20 + rs))
        self.poll(loads, [b + k for b in g for k in range(4)], 33, sleep=2)
        self.stamp(14)
        for h in range(2):
            k = 2 * h
            a('''
            v_pk_add_f32 v[%d:%d], v[%d:%d], v[%d:%d]
            v_pk_add_f32 v[%d:%d], v[%d:%d], v[%d:%d]
            v_pk_add_f32 v[%d:%d], v[%d:%d], v[%d:%d]
            v_pk_add_f32 v[%d:%d], v[%d:%d], v[%d:%d]
            v_pk_add_f32 v[%d:%d], v[%d:%d], v[%d:%d]
            v_pk_add_f32 v[%d:%d], v[%d:%d], v[%d:%d]
            ''' % (4 + k, 5 + k, 4 + k, 5 + k, 8 + k, 9 + k, 12 + k, 13 + k, 12 + k, 13 + k, 16 + k, 17 + k,
                   20 + k, 21 + k, 20 + k, 21 + k, 24 + k, 25 + k, 160 + k, 161 + k, 160 + k, 161 + k, 164 + k, 165 + k,
                   4 + k, 5 + k, 4 + k, 5 + k, 12 + k, 13 + k, 20 + k, 21 + k, 20 + k, 21 + k, 160 + k, 161 + k))
        for k in range(4):
            self.rnd(4 + k, 4 + k); self.rnd(20 + k, 20 + k)
            a('v_add_f32 v%d, 1.0, v%d' % (20 + k, 20 + k)); self.rnd(20 + k, 20 + k)
            a('v_mul_f32 v%d, v%d, v%d' % (28 + k, 28 + k, 20 + k)); self.rnd(28 + k, 28 + k)
            a('v_add_f32 v%d, v%d, v%d\nv_cvt_pk_bf16_f32 v%d, v%d, v%d' % (28 + k, 28 + k, 4 + k, 28 + k, 28 + k, 28 + k))
        a('ds_write_b128 v2, v[28:31] offset:%d' % L_H)
        self.sel_masks(16, 33, 34)
        a('s_waitcnt lgkmcnt(0)\nds_read_b32 v2, v35 offset:0\nds_read_b32 v3, v35 offset:32')
        for t in range(10):
            sel = 20 + 4 * (t & 1); pv = 2 + (t & 1)
            a('s_waitcnt lgkmcnt(%d)' % (1 if t < 9 else 0))
            for k in range(4): a('v_and_b32 v%d, v%d, v%d' % (sel + k, pv, 16 + k))
            a('ds_read_b32 v%d, v35 offset:%d' % (pv, 32 * (t + 2)) if t + 2 < 10 else 's_nop 0')
            a('s_nop 0')
            for ty in range(3):
                acc = 4 + 4 * ty; r = W + (t * 3 + ty) * 4
                a('v_mfma_f32_16x16x32_bf16 v[%d:%d], v[%d:%d], v[%d:%d], %s' % (acc, acc + 3, sel, sel + 3, r, r + 3, '0' if t == 0 else 'v[%d:%d]' % (acc, acc + 3)))
        a('s_mul_i32 s21, s6, 768\ns_add_u32 s21, s21, %d\ns_nop 7' % OFF_Q)
        self.vshape_combine(4, 8, 12)
        self.store_intra(['buffer_store_dwordx4 v[4:7], v36, s[16:19], s21 offen'])
        a('''
        s_mul_i32 s21, s7, 6144
        s_add_u32 s21, s21, %d
        s_add_u32 s22, s21, 3072
        v_min_u32 v1, 47, v0
        v_lshlrev_b32 v2, 4, v1
        ''' % OFF_Q)
        loads = ['buffer_load_dwordx4 v[%d:%d], v2, s[16:19], s%d offen offset:%d' % (40 + 4 * p, 43 + 4 * p, 21 + p // 4, (p % 4) * 768) for p in range(8)]
        self.poll(loads, list(range(40, 72)), 33, sleep=1)
        for k in (0, 2):
            for st in (1, 2, 4):
                for p in range(0, 8, 2 * st):
                    a('v_pk_add_f32 v[%d:%d], v[%d:%d], v[%d:%d]' % (40 + 4 * p + k, 41 + 4 * p + k, 40 + 4 * p + k, 41 + 4 * p + k, 40 + 4 * (p + st) + k, 41 + 4 * (p + st) + k))
        a('''
        v_cvt_pk_bf16_f32 v4, v40, v41
        v_cvt_pk_bf16_f32 v5, v42, v43
        v_lshlrev_b32 v2, 3, v1
        ds_write_b64 v2, v[4:5] offset:%d
        s_waitcnt lgkmcnt(0)
        ''' % L_Q)
        self.lds_set(L_FLAGQ, '1', 9, 10)
        self.stamp(2)
        self.stl_a1 = list(self.stlist)
        a('s_branch L_TAIL')

    def a2_wave(self):
        a = self.a
        a.label('L_A2')
        self.stamp_begin()
        a('s_setprio 3')
        self.srd(12, 48, 1280)
        a('v_mov_b32 v4, -1\nv_mov_b32 v5, -1\nv_mov_b32 v6, -1\nv_mov_b32 v7, -1\nv_lshlrev_b32 v1, 4, v0')
        def init(base_expr, nbytes, pol):
            a(base_expr)
            m = (1 << (nbytes // 16)) - 1
            a('s_mov_b32 exec_lo, 0x%x\ns_mov_b32 exec_hi, 0x%x' % (m & 0xffffffff, m >> 32))
            a('buffer_store_dwordx4 v[4:7], v1, s[16:19], s20 offen %s\ns_mov_b64 exec, -1' % pol)
        def slot(off, gstride, n, sz):
            return 's_min_u32 s21, s5, %d\ns_mul_i32 s21, s21, %d\ns_mul_i32 s20, s4, %d\ns_add_u32 s20, s20, s21\ns_add_u32 s20, s20, %d' % (n - 1, sz, gstride, off)
        def init_intra(pol):
            init('s_mul_i32 s20, s6, 768\ns_add_u32 s20, s20, %d' % OFF_Q, 768, pol)
            init('s_mul_i32 s20, s6, 768\ns_add_u32 s20, s20, %d' % OFF_O, 768, pol)
            init(slot(OFF_H, 2560, 20, 128), 128, pol)
            init(slot(OFF_C, 2560, 20, 128), 128, pol)
            init(slot(OFF_G, 7680, 30, 256), 256, pol)
        def fanout(word):
            a('''
            v_mov_b32 v10, s35
            v_lshlrev_b32 v8, 7, v0
            s_lshl_b32 s20, s4, 12
            s_add_u32 s20, s20, %d
            s_mov_b32 exec_hi, 0
            buffer_store_dword v10, v8, s[16:19], s20 offen sc1
            s_mov_b64 exec, -1
            ''' % (OFF_MB + 4 * word))
        def toppoll(off):
            l = a.newlabel('TP'); l2 = a.newlabel('TPD')
            a('s_mov_b32 s95, 0'); a.label(l)
            a('''
            s_and_b32 s36, s35, 0xffff
            s_cmp_eq_u32 s36, 8
            s_cbranch_scc1 %s
            s_load_dword s35, s[72:73], 0x%x glc
            s_waitcnt lgkmcnt(0)
            s_add_u32 s95, s95, 1
            s_cmp_lt_u32 s95, 0x10000
            s_cbranch_scc1 %s
            ''' % (l2, off, l))
            a.label(l2)
        init('s_lshl_b32 s20, s6, 7\ns_add_u32 s20, s20, %d' % OFF_MB, 16, 'sc1')
        init('s_lshl_b32 s20, s6, 7\ns_add_u32 s20, s20, %d' % OFF_ST, 16, 'sc1')
        init('s_min_u32 s22, s2, 239\ns_and_b32 s20, s22, 3\ns_mul_i32 s20, s20, 15360\ns_lshr_b32 s21, s22, 2\ns_lshl_b32 s21, s21, 8\ns_add_u32 s20, s20, s21\ns_add_u32 s20, s20, %d\ns_cmp_ge_u32 s2, 240\ns_cselect_b32 s20, %d, s20' % (OFF_MOD, OOB), 256, 'sc1')
        init(slot(OFF_X, 15360, 30, 512), 512, 'sc1')
        init(slot(OFF_F, 15360, 30, 512), 512, 'sc1')
        init_intra('')
        a('''
        s_barrier
        s_getreg_b32 s20, hwreg(HW_REG_XCC_ID)
        s_and_b32 s20, s20, 7
        s_lshl_b32 s22, s20, 3
        s_lshl_b64 s[32:33], 1, s22
        s_lshl_b32 s21, s4, 5
        s_mov_b64 s[34:35], s[32:33]
        s_waitcnt vmcnt(0)
        s_atomic_add_x2 s[34:35], s[72:73], s21 glc
        ''')
        self.lds_set(L_INIT, '1', 9, 12)
        a('''
        s_waitcnt lgkmcnt(0)
        s_add_u32 s34, s34, s32
        s_addc_u32 s35, s35, s33
        v_mov_b32 v10, s34
        v_mov_b32 v11, s35
        v_sad_u8 v12, v10, 0, 0
        v_sad_u8 v12, v11, 0, v12
        s_nop 0
        v_readfirstlane_b32 s36, v12
        ''')
        self.stamp(16)
        a('''
        s_nop 3
        s_cmp_lg_u32 s36, 32
        s_cbranch_scc1 L_A2_mb
        s_or_b32 s34, s34, s35
        s_and_b32 s34, s34, 0xdfdfdfdf
        s_cmp_lg_u32 s34, 0
        s_cselect_b32 s34, 0x10001, 1
        s_mov_b32 s35, s34
        s_atomic_add s35, s[72:73], 0x8 glc
        s_waitcnt lgkmcnt(0)
        s_add_u32 s35, s35, s34
        ''')
        toppoll(0x8)
        a('s_lshr_b32 s35, s35, 16\ns_cmp_lg_u32 s35, 0\ns_cselect_b32 s35, 2, 1')
        fanout(0)
        a.label('L_A2_mb')
        self.mbpoll(0)
        a('s_cmp_eq_u32 s33, 1\ns_cselect_b32 s45, 1, 2')
        if self.o['force_slow']: a('s_mov_b32 s45, 2')
        a('s_cmp_eq_u32 s45, 1\ns_cbranch_scc1 L_A2_fast')
        init_intra('sc1')
        a('''
        s_mov_b32 s34, 1
        s_lshl_b32 s21, s4, 5
        s_add_u32 s21, s21, 16
        s_waitcnt vmcnt(0)
        s_atomic_add s34, s[72:73], s21 glc
        s_waitcnt lgkmcnt(0)
        s_cmp_lg_u32 s34, 31
        s_cbranch_scc1 L_A2_mb2
        s_mov_b32 s35, 1
        s_atomic_add s35, s[72:73], 0x18 glc
        s_waitcnt lgkmcnt(0)
        s_add_u32 s35, s35, 1
        ''')
        toppoll(0x18)
        a('s_mov_b32 s35, 1')
        fanout(1)
        a.label('L_A2_mb2')
        self.mbpoll(1, sleep=2)
        a.label('L_A2_fast')
        self.lds_set(L_MODE, 's45', 9, 10)
        self.stamp(13)
        self.red_addrs()
        a('''
        s_cmp_ge_u32 s5, 20
        s_cbranch_scc1 L_TAIL
        s_lshl_b32 s20, s5, 7
        s_add_u32 s20, s20, %d
        s_add_u32 s21, s20, 15360
        s_add_u32 s22, s20, 30720
        s_add_u32 s23, s20, 46080
        v_lshlrev_b32 v25, 2, v24
        v_add_u32 v26, 5120, v25
        v_add_u32 v27, 10240, v25
        s_lshl_b32 s32, s5, 6
        v_lshlrev_b32 v28, 1, v24
        buffer_load_ushort v30, v28, s[12:15], s32 offen
        ''' % OFF_MOD)
        loads = []
        for rs in range(4):
            loads.append('buffer_load_dword v%d, v26, s[16:19], s%d offen' % (4 + rs, 20 + rs))
            loads.append('buffer_load_dword v%d, v26, s[16:19], s%d offen offset:2560' % (8 + rs, 20 + rs))
            loads.append('buffer_load_dword v%d, v27, s[16:19], s%d offen' % (12 + rs, 20 + rs))
            loads.append('buffer_load_dword v%d, v27, s[16:19], s%d offen offset:2560' % (16 + rs, 20 + rs))
        self.poll(loads, list(range(4, 20)), 20, sleep=8)
        for n, dst in enumerate((31, 32, 33, 34)):
            b = 4 + 4 * n
            a('v_add_f32 v%d, v%d, v%d\nv_add_f32 v%d, v%d, v%d\nv_add_f32 v%d, v%d, v%d' % (b, b, b + 1, b + 2, b + 2, b + 3, dst, b, b + 2))
            self.rnd(dst, dst)
        a('''
        v_add_f32 v33, 1.0, v33
        v_cvt_pk_bf16_f32 v33, v33, v32
        v_min_u32 v33, -2, v33
        v_lshlrev_b32 v30, 16, v30
        s_mul_i32 s21, s4, 2560
        s_lshl_b32 s22, s5, 7
        s_add_u32 s21, s21, s22
        s_add_u32 s21, s21, %d
        ''' % OFF_C)
        self.store_intra(['buffer_store_dword v33, v38, s[16:19], s21 offen'])
        self.stl_a2 = list(self.stlist)
        a('s_branch L_TAIL')

    def a3_wave(self):
        a = self.a; vm = VM(a); NE = self.o['ne']
        a.label('L_A3')
        self.stamp_begin()
        a('s_setprio 2\ns_barrier\ns_cmp_ge_u32 s5, 30\ns_cbranch_scc1 L_end')
        self.lds_spin(L_MODE, None, 4, 5, sleep=8)
        a('s_mov_b32 s45, s93')
        if NE:
            self.roles(); self.tile_bases()
            self.srd(12, 56, 6144 * 1280)
            a('v_lshrrev_b32 v3, 3, v0\nv_and_b32 v4, 7, v0\nv_mul_u32_u24 v2, 1280, v3\nv_lshl_add_u32 v2, v4, 4, v2')
            for t in range(NE):
                vm.throttle(self.o['adepth'])
                a('s_mov_b32 m0, %d\ns_add_u32 s36, s33, %d\nbuffer_load_dwordx4 v2, s[12:15], s36 offen nt lds' % (L_WO + 1024 * t, t * 8 * 1280))
                vm.issue()
            vm.all()
            self.lds_inc(L_ST1, 4, 5)
        self.stamp(19)
        self.stl_a3 = list(self.stlist)

    def nat_gemv(self, n, W, actaddr, lbase, acc, areg):
        a = self.a
        for m in range(n):
            a('ds_read_b128 v[%d:%d], v%d offset:%d' % (areg + 4 * m, areg + 4 * m + 3, actaddr, lbase + 64 * m))
        for m in range(n):
            a('s_waitcnt lgkmcnt(%d)' % (n - 1 - m))
            a('v_mfma_f32_16x16x32_bf16 v[%d:%d], v[%d:%d], v[%d:%d], %s' % (acc, acc + 3, areg + 4 * m, areg + 4 * m + 3, W + 4 * m, W + 4 * m + 3, '0' if m == 0 else 'v[%d:%d]' % (acc, acc + 3)))
        a('s_nop 7\nv_min_u32 v%d, -2, v%d' % (acc, acc))

    def gather24(self, sb):
        a = self.a
        self.poll(['buffer_load_dwordx4 v[%d:%d], v37, s[16:19], s%d offen' % (4 + 4 * k, 7 + 4 * k, sb + k) for k in range(3)], list(range(4, 16)), 20)
        a('''
        v_pk_add_f32 v[4:5], v[4:5], v[8:9]
        v_pk_add_f32 v[6:7], v[6:7], v[10:11]
        v_pk_add_f32 v[4:5], v[4:5], v[12:13]
        v_pk_add_f32 v[6:7], v[6:7], v[14:15]
        ''')
        self.red8([4, 5, 6, 7])

    def tail(self):
        a = self.a; NE = self.o['ne']
        ST1_T = (1 if NE < 32 else 0) + (1 if NE else 0)
        self.tl = []
        a.label('L_TAIL')
        a('s_setprio %d\ns_cmp_ge_u32 s5, 30\ns_cbranch_scc1 L_T_end\ns_sub_u32 s81, s3, 8' % self.o['tp'])
        self.roles()
        self.srd(28, 70, 1280)
        self.red_addrs()
        WO, WG, WD = 40, 72, 88
        a('''
        s_lshl_b32 s20, s77, 8
        s_lshl_b32 s21, s81, 6
        s_add_u32 s20, s20, s21
        v_add_u32 v4, s20, v0                    ; R' = 256 rb + 64 a + l
        v_mul_u32_u24 v5, 1366, v4
        v_lshrrev_b32 v5, 18, v5
        v_mul_u32_u24 v5, 5376, v5
        v_lshl_add_u32 v96, v4, 2, v5            ; H1 gather lane offset
        s_mul_i32 s82, s4, 24576
        s_add_u32 s82, s82, %d
        s_add_u32 s83, s82, 4608
        s_lshl_b32 s20, s81, 7
        v_lshl_add_u32 v97, v0, 1, s20           ; L_OB write addr
        v_lshrrev_b32 v98, 4, v0
        v_lshlrev_b32 v98, 4, v98                ; act read addr: 16 g
        s_lshl_b32 s20, s81, 8
        v_add_u32 v99, s20, v98
        s_lshl_b32 s21, s81, 7
        v_add_u32 v100, s21, v98
        v_lshl_add_u32 v101, v0, 2, s20          ; L_H2 write addr
        v_lshl_add_u32 v102, v0, 1, s21          ; L_GU write addr
        v_cmp_gt_u32 vcc, 16, v0
        v_mov_b32 v5, %s
        v_lshlrev_b32 v103, 2, v0
        v_cndmask_b32 v104, v5, v103, vcc        ; result store offset (lanes<16)
        v_lshlrev_b32 v105, 4, v0
        v_lshlrev_b32 v106, 3, v0
        s_mul_i32 s84, s4, 3
        s_add_u32 s84, s84, s77
        s_mul_i32 s84, s84, 5120
        s_lshl_b32 s20, s76, 9
        s_add_u32 s84, s84, s20
        s_lshl_b32 s20, s81, 7
        s_add_u32 s84, s84, s20
        s_lshl_b32 s20, s81, 6
        s_add_u32 s85, s84, %d                   ; B_f publish
        s_add_u32 s84, s84, %d                   ; B_x publish
        s_mul_i32 s86, s4, 2560
        s_lshl_b32 s21, s78, 9
        s_add_u32 s87, s86, s21
        s_add_u32 s88, s87, %d                   ; B_c own rows
        s_add_u32 s87, s87, %d                   ; B_h own rows
        s_add_u32 s86, s86, %d                   ; B_h group base
        s_mul_i32 s89, s4, 7680
        s_add_u32 s89, s89, %d
        s_mul_i32 s48, s79, 5
        s_add_u32 s48, s48, s78
        s_mul_i32 s48, s48, 768
        s_lshl_b32 s21, s80, 8
        s_add_u32 s48, s48, s21
        s_add_u32 s48, s48, s20
        s_add_u32 s48, s48, s89                  ; B_g publish
        s_lshl_b32 s49, s77, 8
        s_add_u32 s49, s49, s89                  ; B_g gather (g)
        s_add_u32 s50, s49, 3840                 ; (u)
        s_lshl_b32 s52, s5, 8
        s_add_u32 s55, s52, %d                   ; gather24 F bases s55..57
        s_add_u32 s56, s55, 5120
        s_add_u32 s57, s55, 10240
        s_add_u32 s52, s52, %d                   ; gather24 X bases s52..54
        s_add_u32 s53, s52, 5120
        s_add_u32 s54, s52, 10240
        s_lshl_b32 s51, s5, 7
        s_add_u32 s51, s51, s86                  ; B_h publish
        s_lshl_b32 s60, s5, 6                    ; out offset
        s_cmp_eq_u32 s81, 2
        s_cselect_b32 s20, 1, 0
        s_cmp_lt_u32 s5, 20
        s_cselect_b32 s21, 1, 0
        s_and_b32 s58, s20, s21                  ; reducer?
        s_and_b32 s21, s5, 7
        s_cmp_eq_u32 s21, s4
        s_cselect_b32 s21, 1, 0
        s_and_b32 s59, s58, s21                  ; final?
        v_lshrrev_b32 v4, 4, v0
        v_bfe_u32 v5, v0, 2, 2
        v_lshl_add_u32 v4, v4, 3, v5
        v_lshlrev_b32 v4, 7, v4
        v_and_b32 v5, 3, v0
        v_lshl_add_u32 v4, v5, 3, v4
        s_lshl_b32 s20, s81, 5
        v_add_u32 v4, s20, v4
        v_add_u32 v107, %d, v4                   ; tr addr (gate/up, down)
        v_add_u32 v114, %d, v4                   ; tr addr (wo)
        v_mov_b32 v115, %d
        v_mov_b32 v21, %d
        v_mov_b32 v22, 1
        ''' % (OFF_O, OOB, OFF_F, OFF_X, OFF_C, OFF_H, OFF_H, OFF_G, OFF_F, OFF_X, L_WG, L_WO, L_ST1, L_CNTO))
        def tr1():
            for m in range(8):
                a('ds_read_b64_tr_b16 v[%d:%d], v114 offset:%d' % (WO + 4 * m, WO + 4 * m + 1, 4096 * m))
                a('ds_read_b64_tr_b16 v[%d:%d], v114 offset:%d' % (WO + 4 * m + 2, WO + 4 * m + 3, 4096 * m + 512))
                if m == 3: a('s_waitcnt lgkmcnt(0)')
        def tr2():
            for m in range(4):
                a('ds_read_b64_tr_b16 v[%d:%d], v107 offset:%d' % (WG + 4 * m, WG + 4 * m + 1, 4096 * m))
                a('ds_read_b64_tr_b16 v[%d:%d], v107 offset:%d' % (WG + 4 * m + 2, WG + 4 * m + 3, 4096 * m + 512))
            for m in range(2):
                a('ds_read_b64_tr_b16 v[%d:%d], v107 offset:%d' % (WD + 4 * m, WD + 4 * m + 1, 16384 + 4096 * m))
                a('ds_read_b64_tr_b16 v[%d:%d], v107 offset:%d' % (WD + 4 * m + 2, WD + 4 * m + 3, 16384 + 4096 * m + 512))
        self.poll(['buffer_load_dwordx2 v[108:109], v106, s[16:19], s88 offen'], [108, 109], 20, sleep=8)
        a('''
        v_lshlrev_b32 v110, 16, v108
        v_and_b32 v111, 0xffff0000, v108
        v_lshlrev_b32 v112, 16, v109
        v_and_b32 v113, 0xffff0000, v109
        ''')
        self.lds_spin(L_CNTPV, 8, 4, 5, sleep=1)
        h1loads = ['buffer_load_dword v%d, v96, s[16:19], s%d offen offset:%d' % (4 + jj, 82 if jj < 6 else 83, (jj if jj < 6 else jj - 6) * 768) for jj in range(8)]
        def h1post():
            a('''
            v_pk_add_f32 v[4:5], v[4:5], v[6:7]
            v_pk_add_f32 v[8:9], v[8:9], v[10:11]
            v_pk_add_f32 v[4:5], v[4:5], v[8:9]
            v_add_f32 v4, v4, v5
            v_cvt_pk_bf16_f32 v4, v4, v4
            ds_write_b16 v97, v4 offset:%d
            s_waitcnt lgkmcnt(0)
            s_mov_b64 exec, 1
            ds_add_u32 v21, v22
            s_mov_b64 exec, -1
            ''' % L_OB)
        a('s_mov_b32 s95, 0')
        a.label('L_T_pa')
        for i in h1loads: a(i + ' sc1')
        a('ds_read_b32 v12, v115\ns_waitcnt vmcnt(0) lgkmcnt(0)\nv_readfirstlane_b32 s93, v12')
        self.chk(list(range(4, 12)), 20)
        a('''
        s_cbranch_vccz L_T_px
        s_cmp_eq_u32 s93, %d
        s_cbranch_scc1 L_T_py
        s_add_u32 s95, s95, 1
        s_cmp_lt_u32 s95, 0x10000
        s_cbranch_scc1 L_T_pa
        L_T_px:
        ''' % ST1_T)
        h1post()
        self.lds_spin(L_ST1, ST1_T, 6, 5, sleep=0)
        tr1()
        a('s_branch L_T_pz')
        a.label('L_T_py')
        tr1()
        self.poll(h1loads, list(range(4, 12)), 20)
        h1post()
        a.label('L_T_pz')
        self.tstamp(5)
        self.lds_spin(L_CNTO, 4, 6, 5, sleep=0)
        self.nat_gemv(8, WO, 98, L_OB, 4, 116)
        a('buffer_store_dword v4, v104, s[16:19], s84 offen sc1')
        self.tstamp(6)
        self.lds_spin(L_ST2, 1, 6, 5, sleep=0)
        tr2()
        a('s_cmp_eq_u32 s58, 0\ns_cbranch_scc1 L_T_h2c')
        self.gather24(52)
        self.rnd(4, 4)
        a('v_mul_f32 v4, v31, v4')
        self.rnd(4, 4)
        a('v_add_f32 v4, v30, v4')
        self.rnd(32, 4)
        self.store_intra(['buffer_store_dword v32, v38, s[16:19], s51 offen'])
        self.tstamp(8)
        a.label('L_T_h2c')
        self.poll(['buffer_load_dwordx4 v[4:7], v105, s[16:19], s86 offen',
                   'buffer_load_dwordx4 v[8:11], v105, s[16:19], s86 offen offset:1024',
                   'buffer_load_dwordx2 v[12:13], v106, s[16:19], s86 offen offset:2048',
                   'buffer_load_dwordx2 v[14:15], v106, s[16:19], s87 offen'], list(range(4, 16)), 20)
        self.tstamp(9)
        a('v_readfirstlane_b32 s20, v4\ns_nop 1')
        for k in range(10): a('v_subrev_f32 v%d, s20, v%d' % (4 + k, 4 + k))
        a('''
        v_pk_mul_f32 v[16:17], v[4:5], v[4:5]
        v_pk_add_f32 v[18:19], v[4:5], v[6:7]
        v_pk_fma_f32 v[16:17], v[6:7], v[6:7], v[16:17]
        v_pk_add_f32 v[18:19], v[18:19], v[8:9]
        v_pk_fma_f32 v[16:17], v[8:9], v[8:9], v[16:17]
        v_pk_add_f32 v[18:19], v[18:19], v[10:11]
        v_pk_fma_f32 v[16:17], v[10:11], v[10:11], v[16:17]
        v_pk_add_f32 v[18:19], v[18:19], v[12:13]
        v_pk_fma_f32 v[16:17], v[12:13], v[12:13], v[16:17]
        v_add_f32 v18, v18, v19
        v_add_f32 v16, v16, v17
        s_nop 1
        v_permlane32_swap_b32 v18, v16
        v_add_f32 v18, v18, v16
        ''')
        for r in (8, 4, 2, 1): a('s_nop 1\nv_add_f32_dpp v18, v18, v18 row_ror:%d row_mask:0xf bank_mask:0xf' % r)
        a('''
        v_mov_b32 v16, v18
        s_nop 1
        v_permlane16_swap_b32 v18, v16
        v_add_f32 v18, v18, v16
        v_mul_f32 v18, %s, v18
        s_nop 0
        v_readlane_b32 s21, v18, 0
        v_readlane_b32 s22, v18, 32
        s_nop 1
        v_mov_b32 v16, s21
        v_mov_b32 v17, s22
        v_fma_f32 v17, -v16, v16, v17
        v_max_f32 v17, 0, v17
        v_add_f32 v16, s20, v16
        ''' % f32(1.0 / 640))
        self.rnd(17, 17)
        a('v_add_f32 v17, %s, v17' % f32(1e-5))
        self.rnd(17, 17)
        a('v_sqrt_f32 v17, v17')
        self.rnd(16, 16)
        self.rnd(17, 17)
        a('''
        v_rcp_f32 v18, v17
        v_sub_f32 v14, v14, v16
        v_sub_f32 v15, v15, v16
        v_cvt_pk_bf16_f32 v19, v14, v15
        v_lshlrev_b32 v14, 16, v19
        v_and_b32 v15, 0xffff0000, v19
        v_mul_f32 v4, v14, v18
        v_mul_f32 v5, v15, v18
        v_fma_f32 v6, -v4, v17, v14
        v_fma_f32 v7, -v5, v17, v15
        v_fma_f32 v14, v6, v18, v4
        v_fma_f32 v15, v7, v18, v5
        v_cvt_pk_bf16_f32 v19, v14, v15
        v_lshlrev_b32 v14, 16, v19
        v_and_b32 v15, 0xffff0000, v19
        v_mul_f32 v14, v14, v110
        v_mul_f32 v15, v15, v112
        v_cvt_pk_bf16_f32 v19, v14, v15
        v_lshlrev_b32 v14, 16, v19
        v_and_b32 v15, 0xffff0000, v19
        v_add_f32 v14, v14, v111
        v_add_f32 v15, v15, v113
        v_cvt_pk_bf16_f32 v19, v14, v15
        ds_write_b32 v101, v19 offset:%d
        s_waitcnt lgkmcnt(0)
        ''' % L_H2)
        self.nat_gemv(4, WG, 99, L_H2, 4, 116)
        self.store_intra(['buffer_store_dword v4, v104, s[16:19], s48 offen'])
        self.tstamp(10)
        loads = []
        for rs in range(5):
            loads.append('buffer_load_dword v%d, v103, s[16:19], s49 offen offset:%d' % (8 + 2 * rs, rs * 768))
            loads.append('buffer_load_dword v%d, v103, s[16:19], s50 offen offset:%d' % (9 + 2 * rs, rs * 768))
        self.poll(loads, list(range(8, 18)), 20)
        a('''
        v_pk_add_f32 v[8:9], v[8:9], v[10:11]
        v_pk_add_f32 v[12:13], v[12:13], v[14:15]
        v_pk_add_f32 v[8:9], v[8:9], v[16:17]
        v_pk_add_f32 v[8:9], v[8:9], v[12:13]
        v_cvt_pk_bf16_f32 v10, v8, v9
        v_lshlrev_b32 v8, 16, v10
        v_and_b32 v9, 0xffff0000, v10
        v_mul_f32 v8, v8, v9
        v_cvt_pk_bf16_f32 v8, v8, v8
        ds_write_b16 v102, v8 offset:%d
        s_waitcnt lgkmcnt(0)
        ''' % L_GU)
        self.nat_gemv(2, WD, 100, L_GU, 4, 116)
        a('buffer_store_dword v4, v104, s[16:19], s85 offen sc1')
        self.tstamp(11)
        a('s_cmp_eq_u32 s59, 0\ns_cbranch_scc1 L_T_end')
        self.gather24(55)
        self.rnd(4, 4)
        a('v_mul_f32 v4, v34, v4')
        self.rnd(4, 4)
        a('v_add_f32 v4, v32, v4\nv_cvt_pk_bf16_f32 v4, v4, v4\nbuffer_store_short v4, v39, s[28:31], s60 offen')
        self.tstamp(12)
        a.label('L_T_end')
        if self.stamps:
            for w, lst in ((8, self.stl_a0), (9, self.stl_a1), (10, self.stl_a2 + self.tl), (11, self.stl_a3)):
                l = a.newlabel('SFL')
                a('s_cmp_lg_u32 s3, %d\ns_cbranch_scc1 %s' % (w, l))
                self.stamp_flush(lst)
                a('s_endpgm')
                a.label(l)
        a.label('L_end')
        a('s_endpgm')

    def build(self):
        self.cold = []
        self.prologue(); self.s_wave(); self.a0_wave(); self.a1_wave(); self.a2_wave(); self.a3_wave(); self.tail()
        for lf, ins, lj in self.cold:
            self.a.label(lf)
            for i in ins: self.a(i)
            self.a('s_branch %s' % lj)
        s = wrap(self.a.text(), 256, 768, LDS_BYTES, 168)
        return s.replace('  .amdhsa_system_sgpr_workgroup_id_x 1\n', '  .amdhsa_system_sgpr_workgroup_id_x 1\n  .amdhsa_float_denorm_mode_32 3\n')

if __name__ == '__main__':
    import argparse
    ap = argparse.ArgumentParser()
    ap.add_argument('-o', default='k.s'); ap.add_argument('--stamps', action='store_true'); ap.add_argument('--opt', default='')
    x = ap.parse_args()
    kw = {}
    for kv in filter(None, x.opt.split(',')):
        k, v = kv.split('=')
        try: v = int(v)
        except ValueError: pass
        kw[k] = v
    open(x.o, 'w').write(Gen(stamps=x.stamps, **kw).build())
```

```python
import sys, struct
from asmgen import *

OFF_MOD = 0x0
OFF_Q   = 0x10000
OFF_ST  = 0x40000
OFF_O   = 0x50000
OFF_H   = 0x90000
OFF_C   = 0x98000
OFF_G   = 0xA0000
OFF_MB  = 0xC0000
OFF_X   = 0x100000
OFF_F   = 0x120000
OFF_STAMP = 128 << 20
WS_BYTES = 268435456
OOB = 0x7ffffff0
L_FLAGQ, L_CNTST, L_FLAGP, L_MODE, L_INIT, L_CNTPV, L_CNTO, L_CNTSL, L_ST1, L_ST2, L_CNTIS = [4 * k for k in range(11)]
L_Q = 256; L_STAT = 1024; L_GSTAT = 1152; L_P = 2048; L_S = 4096; L_H = 5120
L_S2 = 1280; L_OSL = 6144; L_OB = 14336; L_H2 = 14848; L_GU = 15872
L_WO = 16384; L_WG = L_WO + 32768; L_WD = L_WO + 49152
LDS_BYTES = L_WO + 57344

def f32(x): return '0x%08x' % struct.unpack('<I', struct.pack('<f', x))[0]
LOG2E = 1.4426950408889634
L2E_HI = struct.unpack('<f', struct.pack('<f', LOG2E))[0]
L2E_LO = LOG2E - L2E_HI
LN2 = 0.6931471805599453

class VM:
    def __init__(self, a): self.a = a; self.n = 0; self.done = 0
    def issue(self): self.n += 1; return self.n - 1
    def wait(self, idx):
        if idx < self.done: return
        cnt = self.n - 1 - idx
        assert cnt <= 63
        self.a('s_waitcnt vmcnt(%d)' % cnt); self.done = idx + 1
    def throttle(self, depth):
        if self.n - self.done >= depth: self.wait(self.n - depth)
    def all(self):
        if self.done < self.n: self.a('s_waitcnt vmcnt(0)'); self.done = self.n

class Gen:
    STPOOL = [37, 38, 39, 40, 41, 42, 43, 44, 47, 98, 99, 100, 101]
    def __init__(self, stamps=False, **kw):
        self.a = Asm(); self.stamps = stamps
        self.o = dict(depth=3, qk_min=3, sig=22, rank=0, sprio=1, a1p=0, a1d=60, stg=1, adepth=8, ne=32, pw=4, minst=0, force_slow=0, tp=1)
        self.o.update(kw)

    def srd(self, d, p, size):
        self.a('s_mov_b32 s%d, s%d\ns_mov_b32 s%d, s%d\ns_mov_b32 s%d, %d\ns_mov_b32 s%d, 0x20000' % (d, p, d + 1, p + 1, d + 2, size, d + 3))
    def stamp_begin(self):
        self.stlist = []
        if self.stamps:
            for r in self.STPOOL: self.a('s_mov_b32 s%d, 0' % r)
    def stamp(self, idx):
        if not self.stamps: return
        r = self.STPOOL[len(self.stlist)]; self.stlist.append((idx, r))
        self.a('s_memrealtime s[90:91]\ns_waitcnt lgkmcnt(0)\ns_mov_b32 s%d, s90' % r)
    def tstamp(self, idx):
        if not self.stamps or (self.o['minst'] and idx != 12): return
        r = self.STPOOL[5 + len(self.tl)]; self.tl.append((idx, r))
        self.a('s_memrealtime s[90:91]\ns_waitcnt lgkmcnt(0)\ns_mov_b32 s%d, s90' % r)
    def stamp_flush(self, lst):
        if not self.stamps: return
        a = self.a
        a('s_lshl_b32 s92, s2, 8\ns_add_u32 s92, s92, %d\nv_mov_b32 v1, 0\nv_mov_b32 v3, 0\ns_mov_b64 exec, 1' % OFF_STAMP)
        for idx, r in lst:
            a('v_mov_b32 v2, s%d\nbuffer_store_dwordx2 v[2:3], v1, s[16:19], s92 offen offset:%d\ns_nop 1' % (r, idx * 8))
    def rnd(self, dst, src):
        self.a('v_cvt_pk_bf16_f32 v%d, v%d, v%d\nv_and_b32 v%d, 0xffff0000, v%d' % (dst, src, src, dst, dst))
    def wave_reduce(self, v, t, op):
        a = self.a
        for r in (8, 4, 2, 1):
            a('s_nop 1\nv_%s_f32_dpp v%d, v%d, v%d row_ror:%d row_mask:0xf bank_mask:0xf' % (op, v, v, v, r))
        for sw in ('16', '32'):
            a('v_mov_b32 v%d, v%d\ns_nop 1\nv_permlane%s_swap_b32 v%d, v%d\nv_%s_f32 v%d, v%d, v%d' % (t, v, sw, v, t, op, v, v, t))
    def red8(self, r):
        self.a('''
        s_nop 1
        v_permlane32_swap_b32 v%d, v%d
        v_permlane32_swap_b32 v%d, v%d
        v_add_f32 v%d, v%d, v%d
        v_add_f32 v%d, v%d, v%d
        s_nop 1
        v_permlane16_swap_b32 v%d, v%d
        v_add_f32 v%d, v%d, v%d
        s_nop 1
        v_add_f32_dpp v%d, v%d, v%d row_ror:8 row_mask:0xf bank_mask:0xf
        ''' % (r[0], r[1], r[2], r[3], r[0], r[0], r[1], r[2], r[2], r[3], r[0], r[2], r[0], r[0], r[2], r[0], r[0], r[0]))
    def exp(self, dst, x, t1, t2):
        self.a('''
        v_mul_f32 v%d, %s, v%d
        v_fma_f32 v%d, v%d, s94, -v%d
        v_fmac_f32 v%d, %s, v%d
        v_exp_f32 v%d, v%d
        v_mul_f32 v%d, %s, v%d
        v_fma_f32 v%d, v%d, v%d, v%d
        ''' % (t1, f32(L2E_HI), x, t2, x, t1, t2, f32(L2E_LO), x, t1, t1, t2, f32(LN2), t2, dst, t1, t2, t1))
    def div(self, dst, n, d, t1, t2):
        self.a('''
        v_rcp_f32 v%d, v%d
        s_nop 0
        v_mul_f32 v%d, v%d, v%d
        v_fma_f32 v%d, -v%d, v%d, v%d
        v_fma_f32 v%d, v%d, v%d, v%d
        ''' % (t1, d, t2, n, t1, dst, t2, d, n, dst, dst, t1, t2))
    def lds_spin(self, addr, val, vt, va, sleep=1):
        a = self.a; l = a.newlabel('SP'); l2 = a.newlabel('SPD')
        a('v_mov_b32 v%d, %d\ns_mov_b32 s95, 0' % (va, addr))
        a.label(l)
        a('ds_read_b32 v%d, v%d\ns_waitcnt lgkmcnt(0)\nv_readfirstlane_b32 s93, v%d' % (vt, va, vt))
        a('s_cmp_lg_u32 s93, 0' if val is None else 's_cmp_eq_u32 s93, %d' % val)
        a('s_cbranch_scc1 %s' % l2)
        if sleep: a('s_sleep %d' % sleep)
        a('s_add_u32 s95, s95, 1\ns_cmp_lt_u32 s95, 0x40000\ns_cbranch_scc1 %s' % l)
        a.label(l2)
    def lds_set(self, addr, val, vt, va):
        self.a('v_mov_b32 v%d, %d\nv_mov_b32 v%d, %s\nds_write_b32 v%d, v%d' % (va, addr, vt, val, va, vt))
    def lds_inc(self, addr, vt, va):
        self.a('v_mov_b32 v%d, %d\nv_mov_b32 v%d, 1\ns_mov_b64 exec, 1\nds_add_u32 v%d, v%d\ns_mov_b64 exec, -1' % (va, addr, vt, va, vt))
    def store_intra(self, instrs):
        a = self.a; lf = a.newlabel('SF'); lj = a.newlabel('SJ')
        a('s_cmp_eq_u32 s45, 1\ns_cbranch_scc0 %s' % lf)
        for i in instrs: a(i)
        a.label(lj)
        self.cold.append((lf, [i + ' sc1' for i in instrs], lj))
    def chk(self, regs, vt):
        a = self.a; rs = list(regs)
        if len(rs) == 1:
            a('v_cmp_eq_u32 vcc, -1, v%d' % rs[0]); return
        if len(rs) == 2:
            a('v_max_u32 v%d, v%d, v%d' % (vt, rs[0], rs[1])); rest = []
        else:
            a('v_max3_u32 v%d, v%d, v%d, v%d' % (vt, rs[0], rs[1], rs[2])); rest = rs[3:]
        while rest:
            if len(rest) == 1:
                a('v_max_u32 v%d, v%d, v%d' % (vt, vt, rest[0])); rest = []
            else:
                a('v_max3_u32 v%d, v%d, v%d, v%d' % (vt, vt, rest[0], rest[1])); rest = rest[2:]
        a('v_cmp_eq_u32 vcc, -1, v%d' % vt)
    def poll(self, loads, regs, vt, sleep=0):
        a = self.a; l = a.newlabel('PL'); l2 = a.newlabel('PD')
        a('s_mov_b32 s95, 0')
        a.label(l)
        for i in loads: a(i + ' sc1')
        a('s_waitcnt vmcnt(0)')
        self.chk(regs, vt)
        a('s_cbranch_vccz %s' % l2)
        if sleep: a('s_sleep %d' % sleep)
        a('s_add_u32 s95, s95, 1\ns_cmp_lt_u32 s95, 0x10000\ns_cbranch_scc1 %s' % l)
        a.label(l2)
    def sel_masks(self, m, t1, t2):
        a = self.a
        a('''
        v_and_b32 v%d, 1, v0
        v_lshlrev_b32 v%d, 4, v%d
        v_mov_b32 v%d, 0xffff
        v_lshlrev_b32 v%d, v%d, v%d
        v_bfe_u32 v%d, v0, 1, 2
        ''' % (t1, t1, t1, t2, t1, t1, t2, t2))
        for k in range(4):
            a('v_cmp_eq_u32 vcc, %d, v%d\ns_nop 1\nv_cndmask_b32 v%d, 0, v%d, vcc' % (k, t2, m + k, t1))
    def pv_addr(self, dst, t1, base):
        self.a('''
        v_lshrrev_b32 v%d, 4, v0
        v_bfe_u32 v%d, v0, 3, 1
        v_lshl_add_u32 v%d, v%d, 2, v%d
        v_lshlrev_b32 v%d, 2, v%d
        v_add_u32 v%d, %s, v%d
        ''' % (dst, t1, dst, t1, dst, dst, dst, dst, base, dst))
    def vshape_offsets(self, v1, v3, t1, t2, rs):
        self.a('''
        v_lshrrev_b32 v%d, 4, v0
        v_and_b32 v%d, 15, v0
        v_mul_u32_u24 v%d, %d, v%d
        v_lshl_add_u32 v%d, v%d, 4, v%d
        v_bfe_u32 v%d, v0, 3, 1
        v_lshl_add_u32 v%d, v%d, 2, v%d
        v_mul_u32_u24 v%d, %d, v%d
        v_and_b32 v%d, 7, v0
        v_lshl_add_u32 v%d, v%d, 4, v%d
        v_add_u32 v%d, 256, v%d
        ''' % (t1, t2, v1, rs, t1, v1, t2, v1, t2, v3, t2, t1, v3, rs, v3, t2, v3, t2, v3, v3, v3))
    def vshape_off(self, voff, t1, t2):
        self.a('''
        v_and_b32 v%d, 15, v0
        v_lshrrev_b32 v%d, 4, v0
        v_lshlrev_b32 v%d, 5, v%d
        v_lshl_add_u32 v%d, v%d, 4, v%d
        v_add_u32 v%d, %d, v%d
        v_cmp_gt_u32 vcc, 32, v0
        v_mov_b32 v%d, %s
        s_nop 0
        v_cndmask_b32 v%d, v%d, v%d, vcc
        v_and_b32 v%d, 40, v0
        v_cmp_eq_u32 vcc, 32, v%d
        s_nop 1
        v_cndmask_b32 v%d, v%d, v%d, vcc
        ''' % (t1, t2, voff, t1, voff, t2, voff, t1, 224, voff, t2, OOB, voff, t1, voff, t1, t1, voff, voff, t2))
    def vshape_combine(self, d1, d2, d3, clampit=True):
        a = self.a
        for r in range(4): a('v_permlane32_swap_b32 v%d, v%d' % (d2 + r, d3 + r))
        for r in range(4): a('v_add_f32 v%d, v%d, v%d' % (d1 + r, d1 + r, d3 + r))
        for r in range(4): a('v_add_f32_dpp v%d, v%d, v%d row_ror:8 row_mask:0xc bank_mask:0xf' % (d1 + r, d2 + r, d3 + r))
        if clampit:
            for r in range(4): a('v_min_u32 v%d, -2, v%d' % (d1 + r, d1 + r))
    def roles(self):
        self.a('''
        s_mul_i32 s77, s5, 26
        s_lshr_b32 s77, s77, 8
        s_mul_i32 s76, s77, 10
        s_sub_u32 s76, s5, s76
        s_mul_i32 s80, s5, 52
        s_lshr_b32 s80, s80, 8
        s_mul_i32 s78, s80, 5
        s_sub_u32 s78, s5, s78
        s_and_b32 s79, s80, 1
        s_lshr_b32 s80, s80, 1
        ''')
    def tile_bases(self):
        self.a('''
        s_mul_i32 s33, s4, %d
        s_mul_i32 s36, s77, %d
        s_add_u32 s33, s33, s36
        s_lshl_b32 s36, s76, 7
        s_add_u32 s33, s33, s36
        s_mul_i32 s34, s78, %d
        s_mul_i32 s35, s4, 384
        s_add_u32 s34, s34, s35
        s_lshl_b32 s35, s80, 7
        s_add_u32 s34, s34, s35
        s_mul_i32 s35, s4, %d
        s_mul_i32 s36, s77, %d
        s_add_u32 s35, s35, s36
        s_lshl_b32 s36, s76, 7
        s_add_u32 s35, s35, s36
        s_cmp_ge_u32 s5, 30
        s_cselect_b32 s33, 0x40000000, s33
        s_cselect_b32 s34, 0x40000000, s34
        s_cselect_b32 s35, 0x40000000, s35
        ''' % (768 * 1280, 256 * 1280, 128 * 3072, 192 * 1280, 64 * 1280))
    def red_addrs(self):
        self.a('''
        v_and_b32 v24, 7, v0
        v_lshlrev_b32 v24, 2, v24
        v_bfe_u32 v25, v0, 4, 1
        v_lshl_add_u32 v24, v25, 1, v24
        v_lshrrev_b32 v25, 5, v0
        v_add_u32 v24, v24, v25                  ; col in block = 4c + PI[q]
        v_and_b32 v27, 8, v0
        v_cmp_eq_u32 vcc, 0, v27
        v_mov_b32 v27, %s
        v_lshlrev_b32 v38, 2, v24
        v_cndmask_b32 v38, v27, v38, vcc         ; line store offset (dword)
        v_lshlrev_b32 v39, 1, v24
        v_cndmask_b32 v39, v27, v39, vcc         ; out store offset (2B)
        v_lshrrev_b32 v37, 3, v0
        v_mul_u32_u24 v37, 15360, v37
        v_and_b32 v25, 3, v0
        v_lshl_add_u32 v37, v25, 4, v37
        v_bfe_u32 v25, v0, 2, 1
        v_lshl_add_u32 v37, v25, 7, v37          ; gather24 lane offset
        ''' % OOB)
    def mbpoll(self, word, sleep=0):
        a = self.a; l = a.newlabel('MB'); l2 = a.newlabel('MBD')
        a('s_lshl_b32 s20, s6, 7\ns_add_u32 s20, s20, %d\ns_mov_b32 s95, 0' % (OFF_MB + 4 * word))
        a.label(l)
        a('s_load_dword s33, s[74:75], s20 glc\ns_waitcnt lgkmcnt(0)\ns_cmp_lg_u32 s33, -1\ns_cbranch_scc1 %s' % l2)
        if sleep: a('s_sleep %d' % sleep)
        a('s_add_u32 s95, s95, 1\ns_cmp_lt_u32 s95, 0x10000\ns_cbranch_scc1 %s' % l)
        a.label(l2)

    def prologue(self):
        a = self.a
        a('''
        s_cmp_ge_u32 s2, 256
        s_cbranch_scc1 L_end
        s_load_dwordx16 s[48:63], s[0:1], 0
        s_load_dwordx8 s[64:71], s[0:1], 64
        s_load_dwordx4 s[72:75], s[0:1], 96
        v_lshrrev_b32 v1, 6, v0
        v_and_b32 v0, 63, v0
        v_readfirstlane_b32 s3, v1
        s_and_b32 s4, s2, 7
        s_lshr_b32 s5, s2, 3
        s_lshl_b32 s6, s4, 5
        s_add_u32 s6, s6, s5
        s_lshr_b32 s7, s6, 3
        s_and_b32 s46, s6, 7
        s_mov_b32 s94, %s
        s_mov_b32 s45, 0
        s_waitcnt lgkmcnt(0)
        ''' % f32(L2E_HI))
        self.srd(16, 74, WS_BYTES)
        a('''
        s_cmp_eq_u32 s3, 8
        s_cbranch_scc1 L_A0
        s_cmp_eq_u32 s3, 9
        s_cbranch_scc1 L_A1
        s_cmp_eq_u32 s3, 10
        s_cbranch_scc1 L_A2
        s_cmp_eq_u32 s3, 11
        s_cbranch_scc1 L_A3
        ''')

    def s_wave(self):
        a = self.a; vm = VM(a); D = self.o['depth']; NE = self.o['ne']
        self.stamp_begin(); self.stamp(0)
        self.srd(8, 50, 50331648); self.srd(12, 52, 50331648)
        if self.o['sprio']:
            a('s_cmp_lt_u32 s3, 4\ns_cbranch_scc1 L_S_np\ns_setprio 1')
            a.label('L_S_np')
        a('''
        s_lshl_b32 s20, s6, 3
        s_add_u32 s20, s20, s3
        s_mul_i32 s20, s20, 24576
        v_and_b32 v4, 7, v0
        v_mul_u32_u24 v1, 384, v4
        v_bfe_u32 v4, v0, 3, 1
        v_lshl_add_u32 v1, v4, 6, v1
        v_lshrrev_b32 v4, 4, v0
        v_lshl_add_u32 v1, v4, 4, v1
        ''')
        KB = 28; VF = 124; NF = 11
        kreg = lambda t, s: KB + (t * 3 + s) * 4
        kidx = {}
        for t in range(8):
            a('s_add_u32 s21, s20, %d' % (t * 3072))
            for s in range(3):
                vm.throttle(D)
                a('buffer_load_dwordx4 v[%d:%d], v1, s[8:11], s21 offen offset:%d nt' % (kreg(t, s), kreg(t, s) + 3, s * 128))
                kidx[(t, s)] = vm.issue()
                if vm.n == min(D, 4):
                    self.vshape_offsets(2, 3, 4, 5, 384)
                    a('s_barrier')
        vtiles = [(t, ty) for t in range(8) for ty in range(3)]
        vreg = {tt: (VF + 4 * n if n < NF else KB + 4 * (n - NF)) for n, tt in enumerate(vtiles)}
        vidx = {}
        def issue_v(n):
            t, ty = vtiles[n]
            vm.throttle(D)
            a('s_add_u32 s21, s20, %d' % (t * 3072))
            r = vreg[(t, ty)]
            if ty == 0: a('buffer_load_dwordx4 v[%d:%d], v2, s[12:15], s21 offen nt' % (r, r + 3))
            elif ty == 1: a('buffer_load_dwordx4 v[%d:%d], v2, s[12:15], s21 offen offset:1536 nt' % (r, r + 3))
            else: a('buffer_load_dwordx4 v[%d:%d], v3, s[12:15], s21 offen nt' % (r, r + 3))
            vidx[(t, ty)] = vm.issue()
        P = 11
        QMIN = max(self.o['qk_min'], D)
        a('s_lshr_b32 s97, s3, 8\nv_mov_b32 v25, %d' % L_FLAGQ)
        for n in range(P):
            issue_v(n)
            if n + 1 >= QMIN and n + 1 < P:
                assert vm.done >= 24
                l = a.newlabel('QS')
                a('''
                s_cmp_lg_u32 s97, 0
                s_cbranch_scc1 %s
                ds_read_b32 v24, v25
                s_waitcnt lgkmcnt(0)
                v_readfirstlane_b32 s93, v24
                s_cmp_eq_u32 s93, 0
                s_cbranch_scc1 %s
                s_call_b64 s[30:31], L_QK
                ''' % (l, l))
                a.label(l)
        self.stamp(17)
        a('s_cmp_lg_u32 s97, 0\ns_cbranch_scc1 L_QK_done')
        self.lds_spin(L_FLAGQ, None, 24, 25, sleep=2)
        a('s_call_b64 s[30:31], L_QK\ns_branch L_QK_done')
        a.label('L_QK')
        a('''
        v_and_b32 v24, 1, v0
        v_lshrrev_b32 v25, 4, v0
        v_lshl_add_u32 v24, v24, 2, v25
        v_lshlrev_b32 v24, 4, v24
        ds_read_b128 v[4:7], v24 offset:%d
        ds_read_b128 v[8:11], v24 offset:%d
        ds_read_b128 v[12:15], v24 offset:%d
        s_waitcnt lgkmcnt(0)
        ''' % (L_Q, L_Q + 128, L_Q + 256))
        vS = 24
        def pack(t):
            acc = 16 + 4 * (t & 1)
            if t % 2 == 0: a('v_add_f32_dpp v%d, v%d, v%d row_ror:8 row_mask:0x%x bank_mask:0x3' % (vS, acc + 1, acc, 1 << (t // 2)))
            else: a('v_add_f32_dpp v%d, v%d, v%d row_ror:8 row_mask:0x%x bank_mask:0xc' % (vS, acc, acc + 1, 1 << (t // 2)))
        for t in range(8):
            acc = 16 + 4 * (t & 1)
            vm.wait(kidx[(t, 2)])
            for s in range(3):
                c = '0' if s == 0 else 'v[%d:%d]' % (acc, acc + 3)
                a('v_mfma_f32_16x16x32_bf16 v[%d:%d], v[%d:%d], v[%d:%d], %s' % (acc, acc + 3, 4 + 4 * s, 7 + 4 * s, kreg(t, s), kreg(t, s) + 3, c))
            if t >= 1:
                a('s_nop 4'); pack(t - 1); a('s_nop 2')
        a('s_nop 7'); pack(7); a('s_nop 0')
        if not self.o.get('skip_sc1'): self.rnd(vS, vS)
        a('v_mul_f32 v%d, %s, v%d' % (vS, f32(192 ** -0.5), vS))
        if not self.o.get('skip_sc2'): self.rnd(vS, vS)
        a('v_mov_b32 v16, v%d' % vS)
        self.wave_reduce(16, 17, 'max')
        a('v_sub_f32 v18, v%d, v16\nv_max_f32 v18, %s, v18' % (vS, f32(-200.0)))
        self.exp(17, 18, 19, 20)
        self.wave_reduce(17, 18, 'add')
        a('''
        s_lshl_b32 s21, s3, 3
        s_add_u32 s21, s21, %d
        v_mov_b32 v18, s21
        ds_write_b64 v18, v[16:17]
        s_waitcnt lgkmcnt(0)
        ''' % L_STAT)
        self.lds_inc(L_CNTST, 19, 18)
        self.stamp(15)
        a('s_or_b32 s97, s3, 256\ns_setpc_b64 s[30:31]')
        a.label('L_QK_done')
        for n in range(P, 24):
            issue_v(n)
            if n == self.o['sig']: self.lds_inc(L_CNTIS, 5, 4)
        self.sel_masks(16, 25, 26)
        a('s_lshl_b32 s22, s3, 8\ns_add_u32 s22, s22, %d' % L_P)
        self.pv_addr(1, 25, 's22')
        self.stamp(18)
        self.lds_spin(L_FLAGP, None, 25, 26, sleep=2)
        a('''
        v_mov_b32 v25, %d
        ds_read_b64 v[26:27], v25
        v_mov_b32 v25, %d
        ds_read_b32 v25, v25
        v_lshlrev_b32 v2, 2, v0
        v_add_u32 v2, s22, v2
        s_waitcnt lgkmcnt(0)
        v_readfirstlane_b32 s45, v25
        v_sub_f32 v24, v24, v26
        s_and_b32 s45, s45, 3
        v_max_f32 v24, %s, v24
        ''' % (L_GSTAT, L_MODE, f32(-200.0)))
        self.exp(24, 24, 20, 21)
        self.div(24, 24, 27, 20, 21)
        a('''
        v_cvt_pk_bf16_f32 v24, v24, v24
        ds_write_b32 v2, v24
        s_waitcnt lgkmcnt(0)
        ds_read_b32 v2, v1 offset:0
        ds_read_b32 v3, v1 offset:32
        s_setprio 3
        ''')
        for t in range(8):
            sel = 20 + 4 * (t & 1); pv = 2 + (t & 1)
            a('s_waitcnt lgkmcnt(%d)' % (1 if t < 7 else 0))
            for k in range(4): a('v_and_b32 v%d, v%d, v%d' % (sel + k, pv, 16 + k))
            if t + 2 < 8: a('ds_read_b32 v%d, v1 offset:%d\ns_nop 0' % (pv, 32 * (t + 2)))
            elif t == 6: a('s_nop 1')
            else:
                self.lds_inc(L_CNTPV, 2, 1)
                self.vshape_off(1, 2, 3)
                a('''
                v_min_u32 v2, 1008, v1
                s_lshl_b32 s21, s3, 10
                v_add_u32 v3, s21, v2
                v_mov_b32 v16, %d
                v_mov_b32 v17, 1
                s_mul_i32 s21, s6, 768
                s_add_u32 s21, s21, %d
                ''' % (L_CNTSL, OFF_O))
            for ty in range(3):
                vm.wait(vidx[(t, ty)])
                acc = 4 + 4 * ty
                c = '0' if t == 0 else 'v[%d:%d]' % (acc, acc + 3)
                r = vreg[(t, ty)]
                a('v_mfma_f32_16x16x32_bf16 v[%d:%d], v[%d:%d], v[%d:%d], %s' % (acc, acc + 3, sel, sel + 3, r, r + 3, c))
        a('s_nop 7')
        self.vshape_combine(4, 8, 12, clampit=False)
        a('''
        ds_write_b128 v3, v[4:7] offset:%d
        s_waitcnt lgkmcnt(0)
        s_mov_b64 exec, 1
        ds_add_rtn_u32 v17, v16, v17
        s_mov_b64 exec, -1
        s_waitcnt lgkmcnt(0)
        v_readfirstlane_b32 s22, v17
        s_cmp_lg_u32 s22, 7
        s_cbranch_scc1 L_S_end
        ''' % L_OSL)
        for k in range(8):
            a('ds_read_b128 v[%d:%d], v2 offset:%d' % (28 + 4 * k, 31 + 4 * k, L_OSL + 1024 * k))
        for k in range(0, 8, 2):
            a('s_waitcnt lgkmcnt(%d)' % (6 - k))
            a('v_pk_add_f32 v[%d:%d], v[%d:%d], v[%d:%d]' % (28 + 4 * k, 29 + 4 * k, 28 + 4 * k, 29 + 4 * k, 32 + 4 * k, 33 + 4 * k))
            a('v_pk_add_f32 v[%d:%d], v[%d:%d], v[%d:%d]' % (30 + 4 * k, 31 + 4 * k, 30 + 4 * k, 31 + 4 * k, 34 + 4 * k, 35 + 4 * k))
        a('''
        v_pk_add_f32 v[28:29], v[28:29], v[36:37]
        v_pk_add_f32 v[30:31], v[30:31], v[38:39]
        v_pk_add_f32 v[44:45], v[44:45], v[52:53]
        v_pk_add_f32 v[46:47], v[46:47], v[54:55]
        v_pk_add_f32 v[28:29], v[28:29], v[44:45]
        v_pk_add_f32 v[30:31], v[30:31], v[46:47]
        v_min_u32 v28, -2, v28
        v_min_u32 v29, -2, v29
        v_min_u32 v30, -2, v30
        v_min_u32 v31, -2, v31
        ''')
        self.store_intra(['buffer_store_dwordx4 v[28:31], v1, s[16:19], s21 offen'])
        self.stamp(4)
        a('s_branch L_S_end2')
        a.label('L_S_end')
        if self.stamps:
            r4 = self.stlist[-1][1]
            a('s_memrealtime s[90:91]\ns_waitcnt lgkmcnt(0)\ns_mov_b32 s%d, s90' % r4)
        if not self.o['stg']:
            a('s_cmp_lg_u32 s22, 0\ns_cbranch_scc1 L_S_end2\ns_cmp_ge_u32 s5, 30\ns_cbranch_scc1 L_S_end2\ns_setprio 0')
            self.roles(); self.tile_bases()
            a('''
            s_cmp_eq_u32 s79, 0
            s_cselect_b32 s24, s60, s62
            s_cselect_b32 s25, s61, s63
            s_mov_b32 s26, %d
            s_mov_b32 s27, 0x20000
            ''' % (640 * 3072))
            self.srd(28, 56, 6144 * 1280)
            self.srd(8, 64, 1536 * 1280)
            a('''
            v_lshrrev_b32 v6, 3, v0
            v_and_b32 v7, 7, v0
            v_mul_u32_u24 v4, 3072, v6
            v_lshl_add_u32 v4, v7, 4, v4
            v_mul_u32_u24 v5, 1280, v6
            v_lshl_add_u32 v5, v7, 4, v5
            ''')
            self.lds_spin(L_CNTIS, 8, 8, 9, sleep=1)
            for t in range(NE, 32):
                a('s_mov_b32 m0, %d\ns_add_u32 s36, s33, %d\nbuffer_load_dwordx4 v5, s[28:31], s36 offen nt lds' % (L_WO + 1024 * t, t * 8 * 1280))
            for t in range(16):
                a('s_mov_b32 m0, %d\ns_add_u32 s36, s34, %d\nbuffer_load_dwordx4 v4, s[24:27], s36 offen nt lds' % (L_WG + 1024 * t, t * 8 * 3072))
            for t in range(8):
                a('s_mov_b32 m0, %d\ns_add_u32 s36, s35, %d\nbuffer_load_dwordx4 v5, s[8:11], s36 offen nt lds' % (L_WD + 1024 * t, t * 8 * 1280))
            a('s_setprio 3')
            if NE < 32:
                a('s_waitcnt vmcnt(24)')
                self.lds_inc(L_ST1, 17, 16)
            a('s_waitcnt vmcnt(0)')
            self.lds_inc(L_ST2, 17, 16)
        a.label('L_S_end2')
        if self.stamps:
            r15 = [r for (i, r) in self.stlist if i == self.o['pw']][0]
            a('s_lshl_b32 s92, s2, 8\ns_add_u32 s92, s92, %d\ns_lshl_b32 s93, s3, 3\ns_add_u32 s92, s92, s93\nv_mov_b32 v1, 0\nv_mov_b32 v3, 0\nv_mov_b32 v2, s%d\ns_mov_b64 exec, 1\nbuffer_store_dwordx2 v[2:3], v1, s[16:19], s92 offen\ns_nop 1' % (OFF_STAMP + 160, r15))
            a('s_cmp_lg_u32 s3, 0\ns_cbranch_scc1 L_end')
            self.stamp_flush(self.stlist)
        a('s_endpgm')

    def m_tile_loads(self, vm):
        a = self.a
        a('''
        s_mul_i32 s22, s20, %d
        s_lshl_b32 s23, s21, 7
        s_add_u32 s22, s22, s23
        v_lshrrev_b32 v4, 4, v0
        v_bfe_u32 v5, v0, 3, 1
        v_lshl_add_u32 v4, v5, 2, v4
        v_mul_u32_u24 v4, 7680, v4
        v_and_b32 v5, 7, v0
        v_lshl_add_u32 v4, v5, 4, v4
        s_mul_i32 s24, s20, 320
        v_lshlrev_b32 v5, 1, v0
        buffer_load_ushort v6, v5, s[12:15], s24 offen
        buffer_load_ushort v7, v5, s[12:15], s24 offen offset:128
        buffer_load_ushort v8, v5, s[12:15], s24 offen offset:256
        ''' % (160 * 7680))
        for _ in range(3): vm.issue()
        W = 40; widx = []
        for t in range(20):
            a('s_add_u32 s23, s22, %d\nbuffer_load_dwordx4 v[%d:%d], v4, s[8:11], s23 offen nt' % (t * 8 * 7680, W + 4 * t, W + 4 * t + 3))
            widx.append(vm.issue())
        return widx

    def m_tile_compute(self, vm, widx, LS, wait_init):
        a = self.a; W = 40
        self.sel_masks(16, 9, 10)
        self.pv_addr(1, 9, str(LS))
        vm.wait(2)
        for k in range(3):
            r = 6 + k
            a('v_lshlrev_b32 v%d, 16, v%d\nv_sub_f32 v9, 0, v%d\nv_min_f32 v9, %s, v9\nv_max_f32 v9, %s, v9' % (r, r, r, f32(88.0), f32(-200.0)))
            self.exp(10, 9, 11, 12)
            a('v_add_f32 v10, 1.0, v10')
            self.div(r, r, 10, 11, 12)
            a('v_cvt_pk_bf16_f32 v%d, v%d, v%d' % (r, r, r))
        a('''
        v_lshlrev_b32 v9, 2, v0
        ds_write_b32 v9, v6 offset:%d
        ds_write_b32 v9, v7 offset:%d
        ds_write_b32 v9, v8 offset:%d
        s_waitcnt lgkmcnt(0)
        ds_read_b32 v2, v1 offset:0
        ds_read_b32 v3, v1 offset:32
        ''' % (LS, LS + 256, LS + 512))
        for t in range(20):
            sel = 20 + 4 * (t & 1); pv = 2 + (t & 1)
            a('s_waitcnt lgkmcnt(%d)' % (1 if t < 19 else 0))
            for k in range(4): a('v_and_b32 v%d, v%d, v%d' % (sel + k, pv, 16 + k))
            a('ds_read_b32 v%d, v1 offset:%d' % (pv, 32 * (t + 2)) if t + 2 < 20 else 's_nop 0')
            a('s_nop 0')
            vm.wait(widx[t])
            a('v_mfma_f32_16x16x32_bf16 v[4:7], v[%d:%d], v[%d:%d], %s' % (sel, sel + 3, W + 4 * t, W + 4 * t + 3, '0' if t == 0 else 'v[4:7]'))
        a('''
        v_and_b32 v9, 15, v0
        v_lshrrev_b32 v10, 4, v0
        v_lshlrev_b32 v1, 5, v9
        v_lshl_add_u32 v1, v10, 4, v1
        v_and_b32 v9, 40, v0
        v_cmp_eq_u32 vcc, 0, v9
        v_mov_b32 v10, %s
        s_nop 0
        v_cndmask_b32 v1, v10, v1, vcc
        s_nop 2
        ''' % OOB)
        for r in range(4): a('v_permlane32_swap_b32 v%d, v%d' % (4 + r, 8 + r))
        a('s_nop 1')
        for r in range(4): a('v_add_f32_dpp v%d, v%d, v%d row_ror:8 row_mask:0xf bank_mask:0xf' % (4 + r, 8 + r, 4 + r))
        for r in range(4): a('v_min_u32 v%d, -2, v%d' % (4 + r, 4 + r))
        if wait_init: self.lds_spin(L_INIT, None, 9, 10, sleep=1)
        a('''
        s_mul_i32 s22, s20, 15360
        s_lshl_b32 s23, s21, 8
        s_add_u32 s22, s22, s23
        s_add_u32 s22, s22, %d
        buffer_store_dwordx4 v[4:7], v1, s[16:19], s22 offen sc1
        ''' % OFF_MOD)

    def a0_wave(self):
        a = self.a; vm = VM(a)
        NT = 80 if self.o['rank'] else 240
        a.label('L_A0')
        self.stamp_begin()
        a('s_setprio 2')
        self.srd(8, 68, 640 * 7680); self.srd(12, 66, 1280)
        a('''
        v_lshlrev_b32 v1, 2, v0
        v_mov_b32 v2, 0
        ds_write_b32 v1, v2
        s_cmp_ge_u32 s2, %d
        s_cbranch_scc1 L_A0_bar
        s_and_b32 s20, s2, 3
        s_lshr_b32 s21, s2, 2
        ''' % NT)
        widx = self.m_tile_loads(vm)
        a.label('L_A0_bar')
        a('s_waitcnt lgkmcnt(0)\ns_barrier\ns_cmp_ge_u32 s2, %d\ns_cbranch_scc1 L_A0_stats' % NT)
        self.m_tile_compute(vm, widx, L_S, True)
        self.stamp(1)
        a.label('L_A0_stats')
        self.lds_spin(L_MODE, None, 9, 10, sleep=4)
        a('s_and_b32 s45, s93, 3')
        self.lds_spin(L_CNTST, 8, 9, 10, sleep=2)
        a('v_and_b32 v1, 7, v0\nv_lshlrev_b32 v2, 3, v1\nds_read_b64 v[4:5], v2 offset:%d\ns_waitcnt lgkmcnt(0)' % L_STAT)
        def combine_stats():
            a('v_mov_b32 v6, v4')
            for r in (4, 2, 1): a('s_nop 1\nv_max_f32_dpp v6, v6, v6 row_ror:%d row_mask:0xf bank_mask:0xf' % r)
            a('v_sub_f32 v8, v4, v6\nv_max_f32 v8, %s, v8' % f32(-200.0))
            self.exp(7, 8, 9, 10)
            a('v_mul_f32 v7, v7, v5')
            for r in (4, 2, 1): a('s_nop 1\nv_add_f32_dpp v7, v7, v7 row_ror:%d row_mask:0xf bank_mask:0xf' % r)
        combine_stats()
        a('''
        v_min_u32 v6, -2, v6
        v_min_u32 v7, -2, v7
        s_lshl_b32 s22, s6, 7
        s_add_u32 s22, s22, %d
        v_readfirstlane_b32 s24, v6
        v_readfirstlane_b32 s25, v7
        s_lshl_b32 s23, s7, 10
        s_add_u32 s23, s23, %d
        s_nop 2
        s_atomic_swap_x2 s[24:25], s[74:75], s22
        s_mov_b32 s95, 0
        L_A0_sp:
        ''' % (OFF_ST, OFF_ST))
        for k in range(8): a('s_load_dwordx2 s[%d:%d], s[74:75], s23 offset:%d glc' % (76 + 2 * k, 77 + 2 * k, 128 * k))
        a('s_waitcnt lgkmcnt(0)\ns_max_u32 s26, s76, s77')
        for k in range(2, 16): a('s_max_u32 s26, s26, s%d' % (76 + k))
        a('''
        s_cmp_lg_u32 s26, -1
        s_cbranch_scc1 L_A0_spd
        s_add_u32 s95, s95, 1
        s_cmp_lt_u32 s95, 0x10000
        s_cbranch_scc1 L_A0_sp
        L_A0_spd:
        ''')
        for k in range(8):
            a('v_writelane_b32 v4, s%d, %d\nv_writelane_b32 v4, s%d, %d\nv_writelane_b32 v5, s%d, %d\nv_writelane_b32 v5, s%d, %d' % (76 + 2 * k, k, 76 + 2 * k, k + 8, 77 + 2 * k, k, 77 + 2 * k, k + 8))
        combine_stats()
        a('v_mov_b32 v2, %d\ns_mov_b64 exec, 1\nds_write_b64 v2, v[6:7]\ns_mov_b64 exec, -1\ns_waitcnt lgkmcnt(0)' % L_GSTAT)
        self.lds_set(L_FLAGP, '1', 9, 10)
        self.stamp(3)
        self.stl_a0 = list(self.stlist)
        a('s_branch L_TAIL')

    def a1_wave(self):
        a = self.a; vm = VM(a)
        a.label('L_A1')
        self.stamp_begin()
        a('s_setprio %d' % self.o['a1p'])
        self.srd(8, 54, 640 * 12288); self.srd(12, 48, 1280)
        a('''
        v_lshlrev_b32 v4, 2, v0
        buffer_load_dword v20, v4, s[12:15], 0 offen
        buffer_load_dword v21, v4, s[12:15], 0 offen offset:256
        buffer_load_dword v22, v4, s[12:15], 0 offen offset:512
        buffer_load_dword v23, v4, s[12:15], 0 offen offset:768
        buffer_load_dword v24, v4, s[12:15], 0 offen offset:1024
        v_min_u32 v1, 19, v0
        v_lshlrev_b32 v4, 3, v1
        s_mul_i32 s20, s46, 160
        buffer_load_dwordx2 v[26:27], v4, s[12:15], s20 offen
        ''')
        for _ in range(6): vm.issue()
        self.vshape_offsets(2, 3, 4, 5, 12288)
        a('s_barrier\ns_mul_i32 s20, s46, %d\ns_mul_i32 s21, s7, 384\ns_add_u32 s20, s20, s21' % (80 * 12288))
        W = 40
        for t in range(10):
            a('s_add_u32 s21, s20, %d\ns_add_u32 s22, s20, %d' % (t * 8 * 12288, (t * 8 + 4) * 12288))
            for ty in range(3):
                r = W + (t * 3 + ty) * 4
                vm.throttle(self.o['a1d'])
                a('buffer_load_dwordx4 v[%d:%d], v%d, s[8:11], s%d offen nt' % (r, r + 3, 3 if ty == 2 else 2, 22 if ty == 1 else 21))
                vm.issue()
        a('s_setprio 2')
        vm.wait(5)
        for k in range(5):
            a('v_lshlrev_b32 v%d, 16, v%d\nv_and_b32 v%d, 0xffff0000, v%d' % (28 + 2 * k, 20 + k, 29 + 2 * k, 20 + k))
        vals = list(range(28, 38)); vmu, vden = 38, 39
        a('v_add_f32 v%d, v%d, v%d' % (vmu, vals[0], vals[1]))
        for v in vals[2:]: a('v_add_f32 v%d, v%d, v%d' % (vmu, vmu, v))
        self.wave_reduce(vmu, 4, 'add')
        a('v_mul_f32 v%d, %s, v%d' % (vmu, f32(1.0 / 640), vmu))
        a('v_sub_f32 v4, v%d, v%d\nv_mul_f32 v%d, v4, v4' % (vals[0], vmu, vden))
        for v in vals[1:]: a('v_sub_f32 v4, v%d, v%d\nv_fmac_f32 v%d, v4, v4' % (v, vmu, vden))
        self.wave_reduce(vden, 4, 'add')
        a('v_mul_f32 v%d, %s, v%d' % (vden, f32(1.0 / 640), vden))
        self.rnd(vden, vden)
        a('v_add_f32 v%d, %s, v%d' % (vden, f32(1e-5), vden))
        self.rnd(vden, vden)
        a('v_sqrt_f32 v%d, v%d\ns_nop 0' % (vden, vden))
        self.rnd(vden, vden); self.rnd(vmu, vmu)
        a('''
        v_lshlrev_b32 v28, 16, v26
        v_and_b32 v29, 0xffff0000, v26
        v_lshlrev_b32 v30, 16, v27
        v_and_b32 v31, 0xffff0000, v27
        v_rcp_f32 v32, v39
        ''')
        for k in range(4):
            x = 28 + k
            a('v_sub_f32 v%d, v%d, v38' % (x, x)); self.rnd(x, x)
            a('v_mul_f32 v33, v%d, v32\nv_fma_f32 v34, -v33, v39, v%d\nv_fma_f32 v%d, v34, v32, v33' % (x, x, x)); self.rnd(x, x)
        self.pv_addr(35, 33, str(L_H))
        self.vshape_off(36, 33, 34)
        self.lds_spin(L_MODE, None, 4, 5, sleep=4)
        a('''
        s_and_b32 s45, s93, 3
        s_mul_i32 s20, s46, 320
        s_add_u32 s20, s20, %d
        s_add_u32 s21, s20, 15360
        s_add_u32 s22, s20, 30720
        s_add_u32 s23, s20, 46080
        v_lshlrev_b32 v2, 4, v1
        ''' % OFF_MOD)
        g = [4, 8, 12, 16, 20, 24, 160, 164]
        loads = []
        for rs in range(4):
            loads.append('buffer_load_dwordx4 v[%d:%d], v2, s[16:19], s%d offen' % (g[rs], g[rs] + 3, 20 + rs))
            loads.append('buffer_load_dwordx4 v[%d:%d], v2, s[16:19], s%d offen offset:2560' % (g[4 + rs], g[4 + rs] + 3, 20 + rs))
        self.poll(loads, [b + k for b in g for k in range(4)], 33, sleep=2)
        self.stamp(14)
        for h in range(2):
            k = 2 * h
            a('''
            v_pk_add_f32 v[%d:%d], v[%d:%d], v[%d:%d]
            v_pk_add_f32 v[%d:%d], v[%d:%d], v[%d:%d]
            v_pk_add_f32 v[%d:%d], v[%d:%d], v[%d:%d]
            v_pk_add_f32 v[%d:%d], v[%d:%d], v[%d:%d]
            v_pk_add_f32 v[%d:%d], v[%d:%d], v[%d:%d]
            v_pk_add_f32 v[%d:%d], v[%d:%d], v[%d:%d]
            ''' % (4 + k, 5 + k, 4 + k, 5 + k, 8 + k, 9 + k, 12 + k, 13 + k, 12 + k, 13 + k, 16 + k, 17 + k,
                   20 + k, 21 + k, 20 + k, 21 + k, 24 + k, 25 + k, 160 + k, 161 + k, 160 + k, 161 + k, 164 + k, 165 + k,
                   4 + k, 5 + k, 4 + k, 5 + k, 12 + k, 13 + k, 20 + k, 21 + k, 20 + k, 21 + k, 160 + k, 161 + k))
        for k in range(4):
            self.rnd(4 + k, 4 + k); self.rnd(20 + k, 20 + k)
            a('v_add_f32 v%d, 1.0, v%d' % (20 + k, 20 + k)); self.rnd(20 + k, 20 + k)
            a('v_mul_f32 v%d, v%d, v%d' % (28 + k, 28 + k, 20 + k)); self.rnd(28 + k, 28 + k)
            a('v_add_f32 v%d, v%d, v%d\nv_cvt_pk_bf16_f32 v%d, v%d, v%d' % (28 + k, 28 + k, 4 + k, 28 + k, 28 + k, 28 + k))
        a('ds_write_b128 v2, v[28:31] offset:%d' % L_H)
        self.sel_masks(16, 33, 34)
        a('s_waitcnt lgkmcnt(0)\nds_read_b32 v2, v35 offset:0\nds_read_b32 v3, v35 offset:32')
        for t in range(10):
            sel = 20 + 4 * (t & 1); pv = 2 + (t & 1)
            a('s_waitcnt lgkmcnt(%d)' % (1 if t < 9 else 0))
            for k in range(4): a('v_and_b32 v%d, v%d, v%d' % (sel + k, pv, 16 + k))
            a('ds_read_b32 v%d, v35 offset:%d' % (pv, 32 * (t + 2)) if t + 2 < 10 else 's_nop 0')
            a('s_nop 0')
            for ty in range(3):
                acc = 4 + 4 * ty; r = W + (t * 3 + ty) * 4
                a('v_mfma_f32_16x16x32_bf16 v[%d:%d], v[%d:%d], v[%d:%d], %s' % (acc, acc + 3, sel, sel + 3, r, r + 3, '0' if t == 0 else 'v[%d:%d]' % (acc, acc + 3)))
        a('s_mul_i32 s21, s6, 768\ns_add_u32 s21, s21, %d\ns_nop 7' % OFF_Q)
        self.vshape_combine(4, 8, 12)
        self.store_intra(['buffer_store_dwordx4 v[4:7], v36, s[16:19], s21 offen'])
        a('''
        s_mul_i32 s21, s7, 6144
        s_add_u32 s21, s21, %d
        s_add_u32 s22, s21, 3072
        v_min_u32 v1, 47, v0
        v_lshlrev_b32 v2, 4, v1
        ''' % OFF_Q)
        loads = ['buffer_load_dwordx4 v[%d:%d], v2, s[16:19], s%d offen offset:%d' % (40 + 4 * p, 43 + 4 * p, 21 + p // 4, (p % 4) * 768) for p in range(8)]
        self.poll(loads, list(range(40, 72)), 33, sleep=1)
        for k in (0, 2):
            for st in (1, 2, 4):
                for p in range(0, 8, 2 * st):
                    a('v_pk_add_f32 v[%d:%d], v[%d:%d], v[%d:%d]' % (40 + 4 * p + k, 41 + 4 * p + k, 40 + 4 * p + k, 41 + 4 * p + k, 40 + 4 * (p + st) + k, 41 + 4 * (p + st) + k))
        a('''
        v_cvt_pk_bf16_f32 v4, v40, v41
        v_cvt_pk_bf16_f32 v5, v42, v43
        v_lshlrev_b32 v2, 3, v1
        ds_write_b64 v2, v[4:5] offset:%d
        s_waitcnt lgkmcnt(0)
        ''' % L_Q)
        self.lds_set(L_FLAGQ, '1', 9, 10)
        self.stamp(2)
        self.stl_a1 = list(self.stlist)
        a('s_branch L_TAIL')

    def a2_wave(self):
        a = self.a
        a.label('L_A2')
        self.stamp_begin()
        a('s_setprio 3')
        self.srd(12, 48, 1280)
        a('v_mov_b32 v4, -1\nv_mov_b32 v5, -1\nv_mov_b32 v6, -1\nv_mov_b32 v7, -1\nv_lshlrev_b32 v1, 4, v0')
        def init(base_expr, nbytes, pol):
            a(base_expr)
            m = (1 << (nbytes // 16)) - 1
            a('s_mov_b32 exec_lo, 0x%x\ns_mov_b32 exec_hi, 0x%x' % (m & 0xffffffff, m >> 32))
            a('buffer_store_dwordx4 v[4:7], v1, s[16:19], s20 offen %s\ns_mov_b64 exec, -1' % pol)
        def slot(off, gstride, n, sz):
            return 's_min_u32 s21, s5, %d\ns_mul_i32 s21, s21, %d\ns_mul_i32 s20, s4, %d\ns_add_u32 s20, s20, s21\ns_add_u32 s20, s20, %d' % (n - 1, sz, gstride, off)
        def init_intra(pol):
            init('s_mul_i32 s20, s6, 768\ns_add_u32 s20, s20, %d' % OFF_Q, 768, pol)
            init('s_mul_i32 s20, s6, 768\ns_add_u32 s20, s20, %d' % OFF_O, 768, pol)
            init(slot(OFF_H, 2560, 20, 128), 128, pol)
            init(slot(OFF_C, 2560, 20, 128), 128, pol)
            init(slot(OFF_G, 7680, 30, 256), 256, pol)
        def fanout(word):
            a('''
            v_mov_b32 v10, s35
            v_lshlrev_b32 v8, 7, v0
            s_lshl_b32 s20, s4, 12
            s_add_u32 s20, s20, %d
            s_mov_b32 exec_hi, 0
            buffer_store_dword v10, v8, s[16:19], s20 offen sc1
            s_mov_b64 exec, -1
            ''' % (OFF_MB + 4 * word))
        def toppoll(off):
            l = a.newlabel('TP'); l2 = a.newlabel('TPD')
            a('s_mov_b32 s95, 0'); a.label(l)
            a('''
            s_and_b32 s36, s35, 0xffff
            s_cmp_eq_u32 s36, 8
            s_cbranch_scc1 %s
            s_load_dword s35, s[72:73], 0x%x glc
            s_waitcnt lgkmcnt(0)
            s_add_u32 s95, s95, 1
            s_cmp_lt_u32 s95, 0x10000
            s_cbranch_scc1 %s
            ''' % (l2, off, l))
            a.label(l2)
        init('s_lshl_b32 s20, s6, 7\ns_add_u32 s20, s20, %d' % OFF_MB, 16, 'sc1')
        init('s_lshl_b32 s20, s6, 7\ns_add_u32 s20, s20, %d' % OFF_ST, 16, 'sc1')
        init('s_min_u32 s22, s2, 239\ns_and_b32 s20, s22, 3\ns_mul_i32 s20, s20, 15360\ns_lshr_b32 s21, s22, 2\ns_lshl_b32 s21, s21, 8\ns_add_u32 s20, s20, s21\ns_add_u32 s20, s20, %d\ns_cmp_ge_u32 s2, 240\ns_cselect_b32 s20, %d, s20' % (OFF_MOD, OOB), 256, 'sc1')
        init(slot(OFF_X, 15360, 30, 512), 512, 'sc1')
        init(slot(OFF_F, 15360, 30, 512), 512, 'sc1')
        init_intra('')
        a('''
        s_barrier
        s_getreg_b32 s20, hwreg(HW_REG_XCC_ID)
        s_and_b32 s20, s20, 7
        s_lshl_b32 s22, s20, 3
        s_lshl_b64 s[32:33], 1, s22
        s_lshl_b32 s21, s4, 5
        s_mov_b64 s[34:35], s[32:33]
        s_waitcnt vmcnt(0)
        s_atomic_add_x2 s[34:35], s[72:73], s21 glc
        ''')
        self.lds_set(L_INIT, '1', 9, 12)
        a('''
        s_waitcnt lgkmcnt(0)
        s_add_u32 s34, s34, s32
        s_addc_u32 s35, s35, s33
        v_mov_b32 v10, s34
        v_mov_b32 v11, s35
        v_sad_u8 v12, v10, 0, 0
        v_sad_u8 v12, v11, 0, v12
        s_nop 0
        v_readfirstlane_b32 s36, v12
        ''')
        self.stamp(16)
        a('''
        s_nop 3
        s_cmp_lg_u32 s36, 32
        s_cbranch_scc1 L_A2_mb
        s_or_b32 s34, s34, s35
        s_and_b32 s34, s34, 0xdfdfdfdf
        s_cmp_lg_u32 s34, 0
        s_cselect_b32 s34, 0x10001, 1
        s_mov_b32 s35, s34
        s_atomic_add s35, s[72:73], 0x8 glc
        s_waitcnt lgkmcnt(0)
        s_and_b32 s23, s35, 7
        s_lshl_b32 s23, s23, 8
        s_add_u32 s35, s35, s34
        ''')
        toppoll(0x8)
        a('s_lshr_b32 s35, s35, 16\ns_cmp_lg_u32 s35, 0\ns_cselect_b32 s35, 2, 1\ns_or_b32 s35, s35, s23')
        fanout(0)
        a.label('L_A2_mb')
        self.mbpoll(0)
        a('s_and_b32 s97, s33, 0x700\ns_and_b32 s33, s33, 3\ns_cmp_eq_u32 s33, 1\ns_cselect_b32 s45, 1, 2')
        if self.o['force_slow']: a('s_mov_b32 s45, 2')
        a('s_cmp_eq_u32 s45, 1\ns_cbranch_scc1 L_A2_fast')
        init_intra('sc1')
        a('''
        s_mov_b32 s34, 1
        s_lshl_b32 s21, s4, 5
        s_add_u32 s21, s21, 16
        s_waitcnt vmcnt(0)
        s_atomic_add s34, s[72:73], s21 glc
        s_waitcnt lgkmcnt(0)
        s_cmp_lg_u32 s34, 31
        s_cbranch_scc1 L_A2_mb2
        s_mov_b32 s35, 1
        s_atomic_add s35, s[72:73], 0x18 glc
        s_waitcnt lgkmcnt(0)
        s_add_u32 s35, s35, 1
        ''')
        toppoll(0x18)
        a('s_mov_b32 s35, 1')
        fanout(1)
        a.label('L_A2_mb2')
        self.mbpoll(1, sleep=2)
        a.label('L_A2_fast')
        a('s_or_b32 s97, s97, s45')
        self.lds_set(L_MODE, 's97', 9, 10)
        self.stamp(13)
        self.red_addrs()
        a('''
        s_cmp_ge_u32 s5, 20
        s_cbranch_scc1 L_TAIL
        s_lshl_b32 s20, s5, 7
        s_add_u32 s20, s20, %d
        s_add_u32 s21, s20, 15360
        s_add_u32 s22, s20, 30720
        s_add_u32 s23, s20, 46080
        v_lshlrev_b32 v25, 2, v24
        v_add_u32 v26, 5120, v25
        v_add_u32 v27, 10240, v25
        s_lshl_b32 s32, s5, 6
        v_lshlrev_b32 v28, 1, v24
        buffer_load_ushort v30, v28, s[12:15], s32 offen
        ''' % OFF_MOD)
        loads = []
        for rs in range(4):
            loads.append('buffer_load_dword v%d, v26, s[16:19], s%d offen' % (4 + rs, 20 + rs))
            loads.append('buffer_load_dword v%d, v26, s[16:19], s%d offen offset:2560' % (8 + rs, 20 + rs))
            loads.append('buffer_load_dword v%d, v27, s[16:19], s%d offen' % (12 + rs, 20 + rs))
            loads.append('buffer_load_dword v%d, v27, s[16:19], s%d offen offset:2560' % (16 + rs, 20 + rs))
        self.poll(loads, list(range(4, 20)), 20, sleep=8)
        for n, dst in enumerate((31, 32, 33, 34)):
            b = 4 + 4 * n
            a('v_add_f32 v%d, v%d, v%d\nv_add_f32 v%d, v%d, v%d\nv_add_f32 v%d, v%d, v%d' % (b, b, b + 1, b + 2, b + 2, b + 3, dst, b, b + 2))
            self.rnd(dst, dst)
        a('''
        v_add_f32 v33, 1.0, v33
        v_cvt_pk_bf16_f32 v33, v33, v32
        v_min_u32 v33, -2, v33
        v_lshlrev_b32 v30, 16, v30
        s_mul_i32 s21, s4, 2560
        s_lshl_b32 s22, s5, 7
        s_add_u32 s21, s21, s22
        s_add_u32 s21, s21, %d
        ''' % OFF_C)
        self.store_intra(['buffer_store_dword v33, v38, s[16:19], s21 offen'])
        self.stl_a2 = list(self.stlist)
        a('s_branch L_TAIL')

    def a3_wave(self):
        a = self.a; vm = VM(a); NE = self.o['ne']
        a.label('L_A3')
        self.stamp_begin()
        a('s_setprio 2\ns_barrier')
        self.lds_spin(L_MODE, None, 4, 5, sleep=4)
        a('s_and_b32 s45, s93, 3')
        if self.o['rank']:
            R = self.o['rank']
            per = 160 // R
            self.srd(8, 68, 640 * 7680); self.srd(12, 66, 1280)
            a('''
            s_lshr_b32 s20, s93, 8
            s_cmp_ge_u32 s20, %d
            s_cbranch_scc1 L_A3_nomt
            s_cmp_ge_u32 s5, %d
            s_cbranch_scc1 L_A3_nomt
            s_mul_i32 s20, s20, %d
            s_add_u32 s20, s20, s5
            s_lshr_b32 s21, s20, 2
            s_add_u32 s21, s21, 20
            s_and_b32 s20, s20, 3
            ''' % (R, per, per))
            vm2 = VM(a)
            widx = self.m_tile_loads(vm2)
            self.m_tile_compute(vm2, widx, L_S2, False)
            a.label('L_A3_nomt')
        a('s_cmp_ge_u32 s5, 30\ns_cbranch_scc1 L_end')
        if NE:
            self.roles(); self.tile_bases()
            self.srd(12, 56, 6144 * 1280)
            a('v_lshrrev_b32 v3, 3, v0\nv_and_b32 v4, 7, v0\nv_mul_u32_u24 v2, 1280, v3\nv_lshl_add_u32 v2, v4, 4, v2')
            for t in range(NE):
                vm.throttle(self.o['adepth'])
                a('s_mov_b32 m0, %d\ns_add_u32 s36, s33, %d\nbuffer_load_dwordx4 v2, s[12:15], s36 offen nt lds' % (L_WO + 1024 * t, t * 8 * 1280))
                vm.issue()
            vm.all()
            self.lds_inc(L_ST1, 4, 5)
        self.stamp(19)
        self.stl_a3 = list(self.stlist)

    def nat_gemv(self, n, W, actaddr, lbase, acc, areg):
        a = self.a
        for m in range(n):
            a('ds_read_b128 v[%d:%d], v%d offset:%d' % (areg + 4 * m, areg + 4 * m + 3, actaddr, lbase + 64 * m))
        for m in range(n):
            a('s_waitcnt lgkmcnt(%d)' % (n - 1 - m))
            a('v_mfma_f32_16x16x32_bf16 v[%d:%d], v[%d:%d], v[%d:%d], %s' % (acc, acc + 3, areg + 4 * m, areg + 4 * m + 3, W + 4 * m, W + 4 * m + 3, '0' if m == 0 else 'v[%d:%d]' % (acc, acc + 3)))
        a('s_nop 7\nv_min_u32 v%d, -2, v%d' % (acc, acc))

    def gather24(self, sb):
        a = self.a
        self.poll(['buffer_load_dwordx4 v[%d:%d], v37, s[16:19], s%d offen' % (4 + 4 * k, 7 + 4 * k, sb + k) for k in range(3)], list(range(4, 16)), 20)
        a('''
        v_pk_add_f32 v[4:5], v[4:5], v[8:9]
        v_pk_add_f32 v[6:7], v[6:7], v[10:11]
        v_pk_add_f32 v[4:5], v[4:5], v[12:13]
        v_pk_add_f32 v[6:7], v[6:7], v[14:15]
        ''')
        self.red8([4, 5, 6, 7])

    def tail(self):
        a = self.a; NE = self.o['ne']
        ST1_T = (1 if NE < 32 else 0) + (1 if NE else 0)
        self.tl = []
        a.label('L_TAIL')
        a('s_setprio %d\ns_cmp_ge_u32 s5, 30\ns_cbranch_scc1 L_T_end\ns_sub_u32 s81, s3, 8' % self.o['tp'])
        self.roles()
        self.srd(28, 70, 1280)
        self.red_addrs()
        WO, WG, WD = 40, 72, 88
        a('''
        s_lshl_b32 s20, s77, 8
        s_lshl_b32 s21, s81, 6
        s_add_u32 s20, s20, s21
        v_add_u32 v4, s20, v0                    ; R' = 256 rb + 64 a + l
        v_mul_u32_u24 v5, 1366, v4
        v_lshrrev_b32 v5, 18, v5
        v_mul_u32_u24 v5, 5376, v5
        v_lshl_add_u32 v96, v4, 2, v5            ; H1 gather lane offset
        s_mul_i32 s82, s4, 24576
        s_add_u32 s82, s82, %d
        s_add_u32 s83, s82, 4608
        s_lshl_b32 s20, s81, 7
        v_lshl_add_u32 v97, v0, 1, s20           ; L_OB write addr
        v_lshrrev_b32 v98, 4, v0
        v_lshlrev_b32 v98, 4, v98                ; act read addr: 16 g
        s_lshl_b32 s20, s81, 8
        v_add_u32 v99, s20, v98
        s_lshl_b32 s21, s81, 7
        v_add_u32 v100, s21, v98
        v_lshl_add_u32 v101, v0, 2, s20          ; L_H2 write addr
        v_lshl_add_u32 v102, v0, 1, s21          ; L_GU write addr
        v_cmp_gt_u32 vcc, 16, v0
        v_mov_b32 v5, %s
        v_lshlrev_b32 v103, 2, v0
        v_cndmask_b32 v104, v5, v103, vcc        ; result store offset (lanes<16)
        v_lshlrev_b32 v105, 4, v0
        v_lshlrev_b32 v106, 3, v0
        s_mul_i32 s84, s4, 3
        s_add_u32 s84, s84, s77
        s_mul_i32 s84, s84, 5120
        s_lshl_b32 s20, s76, 9
        s_add_u32 s84, s84, s20
        s_lshl_b32 s20, s81, 7
        s_add_u32 s84, s84, s20
        s_lshl_b32 s20, s81, 6
        s_add_u32 s85, s84, %d                   ; B_f publish
        s_add_u32 s84, s84, %d                   ; B_x publish
        s_mul_i32 s86, s4, 2560
        s_lshl_b32 s21, s78, 9
        s_add_u32 s87, s86, s21
        s_add_u32 s88, s87, %d                   ; B_c own rows
        s_add_u32 s87, s87, %d                   ; B_h own rows
        s_add_u32 s86, s86, %d                   ; B_h group base
        s_mul_i32 s89, s4, 7680
        s_add_u32 s89, s89, %d
        s_mul_i32 s48, s79, 5
        s_add_u32 s48, s48, s78
        s_mul_i32 s48, s48, 768
        s_lshl_b32 s21, s80, 8
        s_add_u32 s48, s48, s21
        s_add_u32 s48, s48, s20
        s_add_u32 s48, s48, s89                  ; B_g publish
        s_lshl_b32 s49, s77, 8
        s_add_u32 s49, s49, s89                  ; B_g gather (g)
        s_add_u32 s50, s49, 3840                 ; (u)
        s_lshl_b32 s52, s5, 8
        s_add_u32 s55, s52, %d                   ; gather24 F bases s55..57
        s_add_u32 s56, s55, 5120
        s_add_u32 s57, s55, 10240
        s_add_u32 s52, s52, %d                   ; gather24 X bases s52..54
        s_add_u32 s53, s52, 5120
        s_add_u32 s54, s52, 10240
        s_lshl_b32 s51, s5, 7
        s_add_u32 s51, s51, s86                  ; B_h publish
        s_mov_b32 s66, s60
        s_lshl_b32 s60, s5, 6                    ; out offset
        s_cmp_eq_u32 s81, 2
        s_cselect_b32 s20, 1, 0
        s_cmp_lt_u32 s5, 20
        s_cselect_b32 s21, 1, 0
        s_and_b32 s58, s20, s21                  ; reducer?
        s_and_b32 s21, s5, 7
        s_cmp_eq_u32 s21, s4
        s_cselect_b32 s21, 1, 0
        s_and_b32 s59, s58, s21                  ; final?
        v_lshrrev_b32 v4, 4, v0
        v_bfe_u32 v5, v0, 2, 2
        v_lshl_add_u32 v4, v4, 3, v5
        v_lshlrev_b32 v4, 7, v4
        v_and_b32 v5, 3, v0
        v_lshl_add_u32 v4, v5, 3, v4
        s_lshl_b32 s20, s81, 5
        v_add_u32 v4, s20, v4
        v_add_u32 v107, %d, v4                   ; tr addr (gate/up, down)
        v_add_u32 v114, %d, v4                   ; tr addr (wo)
        v_mov_b32 v115, %d
        v_mov_b32 v21, %d
        v_mov_b32 v22, 1
        ''' % (OFF_O, OOB, OFF_F, OFF_X, OFF_C, OFF_H, OFF_H, OFF_G, OFF_F, OFF_X, L_WG, L_WO, L_ST1, L_CNTO))
        def tr1():
            for m in range(8):
                a('ds_read_b64_tr_b16 v[%d:%d], v114 offset:%d' % (WO + 4 * m, WO + 4 * m + 1, 4096 * m))
                a('ds_read_b64_tr_b16 v[%d:%d], v114 offset:%d' % (WO + 4 * m + 2, WO + 4 * m + 3, 4096 * m + 512))
                if m == 3: a('s_waitcnt lgkmcnt(0)')
        def tr2():
            for m in range(4):
                a('ds_read_b64_tr_b16 v[%d:%d], v107 offset:%d' % (WG + 4 * m, WG + 4 * m + 1, 4096 * m))
                a('ds_read_b64_tr_b16 v[%d:%d], v107 offset:%d' % (WG + 4 * m + 2, WG + 4 * m + 3, 4096 * m + 512))
            for m in range(2):
                a('ds_read_b64_tr_b16 v[%d:%d], v107 offset:%d' % (WD + 4 * m, WD + 4 * m + 1, 16384 + 4096 * m))
                a('ds_read_b64_tr_b16 v[%d:%d], v107 offset:%d' % (WD + 4 * m + 2, WD + 4 * m + 3, 16384 + 4096 * m + 512))
        self.poll(['buffer_load_dwordx2 v[108:109], v106, s[16:19], s88 offen'], [108, 109], 20, sleep=8)
        a('''
        v_lshlrev_b32 v110, 16, v108
        v_and_b32 v111, 0xffff0000, v108
        v_lshlrev_b32 v112, 16, v109
        v_and_b32 v113, 0xffff0000, v109
        ''')
        if self.o['stg']:
            assert NE == 32
            a('s_cmp_lg_u32 s81, 3\ns_cbranch_scc1 L_T_nodma')
            self.tile_bases()
            a('''
            s_cmp_eq_u32 s79, 0
            s_cselect_b32 s24, s66, s62
            s_cselect_b32 s25, s61, s63
            s_mov_b32 s26, %d
            s_mov_b32 s27, 0x20000
            ''' % (640 * 3072))
            self.srd(8, 64, 1536 * 1280)
            a('''
            v_lshrrev_b32 v6, 3, v0
            v_and_b32 v7, 7, v0
            v_mul_u32_u24 v1, 3072, v6
            v_lshl_add_u32 v1, v7, 4, v1
            v_mul_u32_u24 v2, 1280, v6
            v_lshl_add_u32 v2, v7, 4, v2
            ''')
            self.lds_spin(L_CNTIS, 8, 8, 9, sleep=1)
            for t in range(16):
                a('s_mov_b32 m0, %d\ns_add_u32 s36, s34, %d\nbuffer_load_dwordx4 v1, s[24:27], s36 offen nt lds' % (L_WG + 1024 * t, t * 8 * 3072))
            for t in range(8):
                a('s_mov_b32 m0, %d\ns_add_u32 s36, s35, %d\nbuffer_load_dwordx4 v2, s[8:11], s36 offen nt lds' % (L_WD + 1024 * t, t * 8 * 1280))
            a.label('L_T_nodma')
        self.lds_spin(L_CNTPV, 8, 4, 5, sleep=1)
        h1loads = ['buffer_load_dword v%d, v96, s[16:19], s%d offen offset:%d' % (4 + jj, 82 if jj < 6 else 83, (jj if jj < 6 else jj - 6) * 768) for jj in range(8)]
        def h1post():
            a('''
            v_pk_add_f32 v[4:5], v[4:5], v[6:7]
            v_pk_add_f32 v[8:9], v[8:9], v[10:11]
            v_pk_add_f32 v[4:5], v[4:5], v[8:9]
            v_add_f32 v4, v4, v5
            v_cvt_pk_bf16_f32 v4, v4, v4
            ds_write_b16 v97, v4 offset:%d
            s_waitcnt lgkmcnt(0)
            s_mov_b64 exec, 1
            ds_add_u32 v21, v22
            s_mov_b64 exec, -1
            ''' % L_OB)
        a('s_mov_b32 s95, 0')
        a.label('L_T_pa')
        for i in h1loads: a(i + ' sc1')
        a('ds_read_b32 v12, v115\ns_waitcnt vmcnt(0) lgkmcnt(0)\nv_readfirstlane_b32 s93, v12')
        self.chk(list(range(4, 12)), 20)
        a('''
        s_cbranch_vccz L_T_px
        s_cmp_eq_u32 s93, %d
        s_cbranch_scc1 L_T_py
        s_add_u32 s95, s95, 1
        s_cmp_lt_u32 s95, 0x10000
        s_cbranch_scc1 L_T_pa
        L_T_px:
        ''' % ST1_T)
        h1post()
        self.lds_spin(L_ST1, ST1_T, 6, 5, sleep=0)
        tr1()
        a('s_branch L_T_pz')
        a.label('L_T_py')
        tr1()
        self.poll(h1loads, list(range(4, 12)), 20)
        h1post()
        a.label('L_T_pz')
        self.tstamp(5)
        self.lds_spin(L_CNTO, 4, 6, 5, sleep=0)
        self.nat_gemv(8, WO, 98, L_OB, 4, 116)
        a('buffer_store_dword v4, v104, s[16:19], s84 offen sc1')
        self.tstamp(6)
        if not self.o['stg']: self.lds_spin(L_ST2, 1, 6, 5, sleep=0)
        tr2()
        a('s_cmp_eq_u32 s58, 0\ns_cbranch_scc1 L_T_h2c')
        self.gather24(52)
        self.rnd(4, 4)
        a('v_mul_f32 v4, v31, v4')
        self.rnd(4, 4)
        a('v_add_f32 v4, v30, v4')
        self.rnd(32, 4)
        self.store_intra(['buffer_store_dword v32, v38, s[16:19], s51 offen'])
        self.tstamp(8)
        a.label('L_T_h2c')
        self.poll(['buffer_load_dwordx4 v[4:7], v105, s[16:19], s86 offen',
                   'buffer_load_dwordx4 v[8:11], v105, s[16:19], s86 offen offset:1024',
                   'buffer_load_dwordx2 v[12:13], v106, s[16:19], s86 offen offset:2048',
                   'buffer_load_dwordx2 v[14:15], v106, s[16:19], s87 offen'], list(range(4, 16)), 20)
        self.tstamp(9)
        a('v_readfirstlane_b32 s20, v4\ns_nop 1')
        for k in range(10): a('v_subrev_f32 v%d, s20, v%d' % (4 + k, 4 + k))
        a('''
        v_pk_mul_f32 v[16:17], v[4:5], v[4:5]
        v_pk_add_f32 v[18:19], v[4:5], v[6:7]
        v_pk_fma_f32 v[16:17], v[6:7], v[6:7], v[16:17]
        v_pk_add_f32 v[18:19], v[18:19], v[8:9]
        v_pk_fma_f32 v[16:17], v[8:9], v[8:9], v[16:17]
        v_pk_add_f32 v[18:19], v[18:19], v[10:11]
        v_pk_fma_f32 v[16:17], v[10:11], v[10:11], v[16:17]
        v_pk_add_f32 v[18:19], v[18:19], v[12:13]
        v_pk_fma_f32 v[16:17], v[12:13], v[12:13], v[16:17]
        v_add_f32 v18, v18, v19
        v_add_f32 v16, v16, v17
        s_nop 1
        v_permlane32_swap_b32 v18, v16
        v_add_f32 v18, v18, v16
        ''')
        for r in (8, 4, 2, 1): a('s_nop 1\nv_add_f32_dpp v18, v18, v18 row_ror:%d row_mask:0xf bank_mask:0xf' % r)
        a('''
        v_mov_b32 v16, v18
        s_nop 1
        v_permlane16_swap_b32 v18, v16
        v_add_f32 v18, v18, v16
        v_mul_f32 v18, %s, v18
        s_nop 0
        v_readlane_b32 s21, v18, 0
        v_readlane_b32 s22, v18, 32
        s_nop 1
        v_mov_b32 v16, s21
        v_mov_b32 v17, s22
        v_fma_f32 v17, -v16, v16, v17
        v_max_f32 v17, 0, v17
        v_add_f32 v16, s20, v16
        ''' % f32(1.0 / 640))
        self.rnd(17, 17)
        a('v_add_f32 v17, %s, v17' % f32(1e-5))
        self.rnd(17, 17)
        a('v_sqrt_f32 v17, v17')
        self.rnd(16, 16)
        self.rnd(17, 17)
        a('''
        v_rcp_f32 v18, v17
        v_sub_f32 v14, v14, v16
        v_sub_f32 v15, v15, v16
        v_cvt_pk_bf16_f32 v19, v14, v15
        v_lshlrev_b32 v14, 16, v19
        v_and_b32 v15, 0xffff0000, v19
        v_mul_f32 v4, v14, v18
        v_mul_f32 v5, v15, v18
        v_fma_f32 v6, -v4, v17, v14
        v_fma_f32 v7, -v5, v17, v15
        v_fma_f32 v14, v6, v18, v4
        v_fma_f32 v15, v7, v18, v5
        v_cvt_pk_bf16_f32 v19, v14, v15
        v_lshlrev_b32 v14, 16, v19
        v_and_b32 v15, 0xffff0000, v19
        v_mul_f32 v14, v14, v110
        v_mul_f32 v15, v15, v112
        v_cvt_pk_bf16_f32 v19, v14, v15
        v_lshlrev_b32 v14, 16, v19
        v_and_b32 v15, 0xffff0000, v19
        v_add_f32 v14, v14, v111
        v_add_f32 v15, v15, v113
        v_cvt_pk_bf16_f32 v19, v14, v15
        ds_write_b32 v101, v19 offset:%d
        s_waitcnt lgkmcnt(0)
        ''' % L_H2)
        self.nat_gemv(4, WG, 99, L_H2, 4, 116)
        self.store_intra(['buffer_store_dword v4, v104, s[16:19], s48 offen'])
        self.tstamp(10)
        loads = []
        for rs in range(5):
            loads.append('buffer_load_dword v%d, v103, s[16:19], s49 offen offset:%d' % (8 + 2 * rs, rs * 768))
            loads.append('buffer_load_dword v%d, v103, s[16:19], s50 offen offset:%d' % (9 + 2 * rs, rs * 768))
        self.poll(loads, list(range(8, 18)), 20)
        a('''
        v_pk_add_f32 v[8:9], v[8:9], v[10:11]
        v_pk_add_f32 v[12:13], v[12:13], v[14:15]
        v_pk_add_f32 v[8:9], v[8:9], v[16:17]
        v_pk_add_f32 v[8:9], v[8:9], v[12:13]
        v_cvt_pk_bf16_f32 v10, v8, v9
        v_lshlrev_b32 v8, 16, v10
        v_and_b32 v9, 0xffff0000, v10
        v_mul_f32 v8, v8, v9
        v_cvt_pk_bf16_f32 v8, v8, v8
        ds_write_b16 v102, v8 offset:%d
        s_waitcnt lgkmcnt(0)
        ''' % L_GU)
        self.nat_gemv(2, WD, 100, L_GU, 4, 116)
        a('buffer_store_dword v4, v104, s[16:19], s85 offen sc1')
        self.tstamp(11)
        a('s_cmp_eq_u32 s59, 0\ns_cbranch_scc1 L_T_end')
        self.gather24(55)
        self.rnd(4, 4)
        a('v_mul_f32 v4, v34, v4')
        self.rnd(4, 4)
        a('v_add_f32 v4, v32, v4\nv_cvt_pk_bf16_f32 v4, v4, v4\nbuffer_store_short v4, v39, s[28:31], s60 offen')
        self.tstamp(12)
        a.label('L_T_end')
        if self.stamps:
            for w, lst in ((8, self.stl_a0), (9, self.stl_a1), (10, self.stl_a2 + self.tl), (11, self.stl_a3)):
                l = a.newlabel('SFL')
                a('s_cmp_lg_u32 s3, %d\ns_cbranch_scc1 %s' % (w, l))
                self.stamp_flush(lst)
                a('s_endpgm')
                a.label(l)
        a.label('L_end')
        a('s_endpgm')

    def build(self):
        self.cold = []
        self.prologue(); self.s_wave(); self.a0_wave(); self.a1_wave(); self.a2_wave(); self.a3_wave(); self.tail()
        for lf, ins, lj in self.cold:
            self.a.label(lf)
            for i in ins: self.a(i)
            self.a('s_branch %s' % lj)
        s = wrap(self.a.text(), 256, 768, LDS_BYTES, 168)
        return s.replace('  .amdhsa_system_sgpr_workgroup_id_x 1\n', '  .amdhsa_system_sgpr_workgroup_id_x 1\n  .amdhsa_float_denorm_mode_32 3\n')

if __name__ == '__main__':
    import argparse
    ap = argparse.ArgumentParser()
    ap.add_argument('-o', default='k.s'); ap.add_argument('--stamps', action='store_true'); ap.add_argument('--opt', default='')
    x = ap.parse_args()
    kw = {}
    for kv in filter(None, x.opt.split(',')):
        k, v = kv.split('=')
        try: v = int(v)
        except ValueError: pass
        kw[k] = v
    open(x.o, 'w').write(Gen(stamps=x.stamps, **kw).build())
```

```python
import sys, struct
from asmgen import *

OFF_MOD = 0x0
OFF_Q   = 0x10000
OFF_ST  = 0x40000
OFF_O   = 0x50000
OFF_H   = 0x90000
OFF_C   = 0x98000
OFF_G   = 0xA0000
OFF_MB  = 0xC0000
OFF_X   = 0x0
OFF_F   = 0x80000
OFF_STAMP = 128 << 20
WS_BYTES = 268435456
OOB = 0x7ffffff0
L_FLAGQ, L_CNTST, L_FLAGP, L_MODE, L_INIT, L_CNTPV, L_CNTO, L_CNTSL, L_ST1, L_ST2, L_CNTIS = [4 * k for k in range(11)]
L_Q = 256; L_STAT = 1024; L_GSTAT = 1152; L_P = 2048; L_S = 4096; L_H = 5120
L_S2 = 1280; L_OSL = 6144; L_OB = 14336; L_H2 = 14848; L_GU = 15872
L_WO = 16384; L_WG = L_WO + 32768; L_WD = L_WO + 49152
LDS_BYTES = L_WO + 57344

def f32(x): return '0x%08x' % struct.unpack('<I', struct.pack('<f', x))[0]
LOG2E = 1.4426950408889634
L2E_HI = struct.unpack('<f', struct.pack('<f', LOG2E))[0]
L2E_LO = LOG2E - L2E_HI
LN2 = 0.6931471805599453

class VM:
    def __init__(self, a): self.a = a; self.n = 0; self.done = 0
    def issue(self): self.n += 1; return self.n - 1
    def wait(self, idx):
        if idx < self.done: return
        cnt = self.n - 1 - idx
        assert cnt <= 63
        self.a('s_waitcnt vmcnt(%d)' % cnt); self.done = idx + 1
    def throttle(self, depth):
        if self.n - self.done >= depth: self.wait(self.n - depth)
    def all(self):
        if self.done < self.n: self.a('s_waitcnt vmcnt(0)'); self.done = self.n

class Gen:
    STPOOL = [37, 38, 39, 40, 41, 42, 43, 44, 47, 98, 99, 100, 101]
    def __init__(self, stamps=False, **kw):
        self.a = Asm(); self.stamps = stamps
        self.o = dict(near=1, nms=6, xpol='sc0+sc1', ilv=0, kpol='nt', vpol='nt', wpol='nt', depth=3, qk_min=3, sig=22, rank=0, sprio=1, a1p=0, a1d=60, stg=1, adepth=8, ne=32, pw=4, minst=0, force_slow=0, tp=1)
        self.o.update(kw)

    def srd(self, d, p, size):
        self.a('s_mov_b32 s%d, s%d\ns_mov_b32 s%d, s%d\ns_mov_b32 s%d, %d\ns_mov_b32 s%d, 0x20000' % (d, p, d + 1, p + 1, d + 2, size, d + 3))
    def stamp_begin(self):
        self.stlist = []
        if self.stamps:
            for r in self.STPOOL: self.a('s_mov_b32 s%d, 0' % r)
    def stamp(self, idx):
        if not self.stamps: return
        r = self.STPOOL[len(self.stlist)]; self.stlist.append((idx, r))
        self.a('s_memrealtime s[90:91]\ns_waitcnt lgkmcnt(0)\ns_mov_b32 s%d, s90' % r)
    def tstamp(self, idx):
        if not self.stamps or (self.o['minst'] and idx != 12): return
        r = self.STPOOL[5 + len(self.tl)]; self.tl.append((idx, r))
        self.a('s_memrealtime s[90:91]\ns_waitcnt lgkmcnt(0)\ns_mov_b32 s%d, s90' % r)
    def stamp_flush(self, lst):
        if not self.stamps: return
        a = self.a
        a('s_lshl_b32 s92, s2, 8\ns_add_u32 s92, s92, %d\nv_mov_b32 v1, 0\nv_mov_b32 v3, 0\ns_mov_b64 exec, 1' % OFF_STAMP)
        for idx, r in lst:
            a('v_mov_b32 v2, s%d\nbuffer_store_dwordx2 v[2:3], v1, s[16:19], s92 offen offset:%d\ns_nop 1' % (r, idx * 8))
    def rnd(self, dst, src):
        self.a('v_cvt_pk_bf16_f32 v%d, v%d, v%d\nv_and_b32 v%d, 0xffff0000, v%d' % (dst, src, src, dst, dst))
    def wave_reduce(self, v, t, op):
        a = self.a
        for r in (8, 4, 2, 1):
            a('s_nop 1\nv_%s_f32_dpp v%d, v%d, v%d row_ror:%d row_mask:0xf bank_mask:0xf' % (op, v, v, v, r))
        for sw in ('16', '32'):
            a('v_mov_b32 v%d, v%d\ns_nop 1\nv_permlane%s_swap_b32 v%d, v%d\nv_%s_f32 v%d, v%d, v%d' % (t, v, sw, v, t, op, v, v, t))
    def red8(self, r):
        self.a('''
        s_nop 1
        v_permlane32_swap_b32 v%d, v%d
        v_permlane32_swap_b32 v%d, v%d
        v_add_f32 v%d, v%d, v%d
        v_add_f32 v%d, v%d, v%d
        s_nop 1
        v_permlane16_swap_b32 v%d, v%d
        v_add_f32 v%d, v%d, v%d
        s_nop 1
        v_add_f32_dpp v%d, v%d, v%d row_ror:8 row_mask:0xf bank_mask:0xf
        ''' % (r[0], r[1], r[2], r[3], r[0], r[0], r[1], r[2], r[2], r[3], r[0], r[2], r[0], r[0], r[2], r[0], r[0], r[0]))
    def exp(self, dst, x, t1, t2):
        self.a('''
        v_mul_f32 v%d, %s, v%d
        v_fma_f32 v%d, v%d, s94, -v%d
        v_fmac_f32 v%d, %s, v%d
        v_exp_f32 v%d, v%d
        v_mul_f32 v%d, %s, v%d
        v_fma_f32 v%d, v%d, v%d, v%d
        ''' % (t1, f32(L2E_HI), x, t2, x, t1, t2, f32(L2E_LO), x, t1, t1, t2, f32(LN2), t2, dst, t1, t2, t1))
    def div(self, dst, n, d, t1, t2):
        self.a('''
        v_rcp_f32 v%d, v%d
        s_nop 0
        v_mul_f32 v%d, v%d, v%d
        v_fma_f32 v%d, -v%d, v%d, v%d
        v_fma_f32 v%d, v%d, v%d, v%d
        ''' % (t1, d, t2, n, t1, dst, t2, d, n, dst, dst, t1, t2))
    def lds_spin(self, addr, val, vt, va, sleep=1):
        a = self.a; l = a.newlabel('SP'); l2 = a.newlabel('SPD')
        a('v_mov_b32 v%d, %d\ns_mov_b32 s95, 0' % (va, addr))
        a.label(l)
        a('ds_read_b32 v%d, v%d\ns_waitcnt lgkmcnt(0)\nv_readfirstlane_b32 s93, v%d' % (vt, va, vt))
        a('s_cmp_lg_u32 s93, 0' if val is None else 's_cmp_eq_u32 s93, %d' % val)
        a('s_cbranch_scc1 %s' % l2)
        if sleep: a('s_sleep %d' % sleep)
        a('s_add_u32 s95, s95, 1\ns_cmp_lt_u32 s95, 0x40000\ns_cbranch_scc1 %s' % l)
        a.label(l2)
    def lds_set(self, addr, val, vt, va):
        self.a('v_mov_b32 v%d, %d\nv_mov_b32 v%d, %s\nds_write_b32 v%d, v%d' % (va, addr, vt, val, va, vt))
    def lds_inc(self, addr, vt, va):
        self.a('v_mov_b32 v%d, %d\nv_mov_b32 v%d, 1\ns_mov_b64 exec, 1\nds_add_u32 v%d, v%d\ns_mov_b64 exec, -1' % (va, addr, vt, va, vt))
    def store_intra(self, instrs):
        a = self.a; lf = a.newlabel('SF'); lj = a.newlabel('SJ')
        a('s_cmp_eq_u32 s45, 1\ns_cbranch_scc0 %s' % lf)
        for i in instrs: a(i)
        a.label(lj)
        self.cold.append((lf, [i + ' sc1' for i in instrs], lj))
    def chk(self, regs, vt):
        a = self.a; rs = list(regs)
        if len(rs) == 1:
            a('v_cmp_eq_u32 vcc, -1, v%d' % rs[0]); return
        if len(rs) == 2:
            a('v_max_u32 v%d, v%d, v%d' % (vt, rs[0], rs[1])); rest = []
        else:
            a('v_max3_u32 v%d, v%d, v%d, v%d' % (vt, rs[0], rs[1], rs[2])); rest = rs[3:]
        while rest:
            if len(rest) == 1:
                a('v_max_u32 v%d, v%d, v%d' % (vt, vt, rest[0])); rest = []
            else:
                a('v_max3_u32 v%d, v%d, v%d, v%d' % (vt, vt, rest[0], rest[1])); rest = rest[2:]
        a('v_cmp_eq_u32 vcc, -1, v%d' % vt)
    def poll(self, loads, regs, vt, sleep=0):
        a = self.a; l = a.newlabel('PL'); l2 = a.newlabel('PD')
        a('s_mov_b32 s95, 0')
        a.label(l)
        for i in loads: a(i + ' sc1')
        a('s_waitcnt vmcnt(0)')
        self.chk(regs, vt)
        a('s_cbranch_vccz %s' % l2)
        if sleep: a('s_sleep %d' % sleep)
        a('s_add_u32 s95, s95, 1\ns_cmp_lt_u32 s95, 0x10000\ns_cbranch_scc1 %s' % l)
        a.label(l2)
    def sel_masks(self, m, t1, t2):
        a = self.a
        a('''
        v_and_b32 v%d, 1, v0
        v_lshlrev_b32 v%d, 4, v%d
        v_mov_b32 v%d, 0xffff
        v_lshlrev_b32 v%d, v%d, v%d
        v_bfe_u32 v%d, v0, 1, 2
        ''' % (t1, t1, t1, t2, t1, t1, t2, t2))
        for k in range(4):
            a('v_cmp_eq_u32 vcc, %d, v%d\ns_nop 1\nv_cndmask_b32 v%d, 0, v%d, vcc' % (k, t2, m + k, t1))
    def pv_addr(self, dst, t1, base):
        self.a('''
        v_lshrrev_b32 v%d, 4, v0
        v_bfe_u32 v%d, v0, 3, 1
        v_lshl_add_u32 v%d, v%d, 2, v%d
        v_lshlrev_b32 v%d, 2, v%d
        v_add_u32 v%d, %s, v%d
        ''' % (dst, t1, dst, t1, dst, dst, dst, dst, base, dst))
    def vshape_offsets(self, v1, v3, t1, t2, rs):
        self.a('''
        v_lshrrev_b32 v%d, 4, v0
        v_and_b32 v%d, 15, v0
        v_mul_u32_u24 v%d, %d, v%d
        v_lshl_add_u32 v%d, v%d, 4, v%d
        v_bfe_u32 v%d, v0, 3, 1
        v_lshl_add_u32 v%d, v%d, 2, v%d
        v_mul_u32_u24 v%d, %d, v%d
        v_and_b32 v%d, 7, v0
        v_lshl_add_u32 v%d, v%d, 4, v%d
        v_add_u32 v%d, 256, v%d
        ''' % (t1, t2, v1, rs, t1, v1, t2, v1, t2, v3, t2, t1, v3, rs, v3, t2, v3, t2, v3, v3, v3))
    def vshape_off(self, voff, t1, t2):
        self.a('''
        v_and_b32 v%d, 15, v0
        v_lshrrev_b32 v%d, 4, v0
        v_lshlrev_b32 v%d, 5, v%d
        v_lshl_add_u32 v%d, v%d, 4, v%d
        v_add_u32 v%d, %d, v%d
        v_cmp_gt_u32 vcc, 32, v0
        v_mov_b32 v%d, %s
        s_nop 0
        v_cndmask_b32 v%d, v%d, v%d, vcc
        v_and_b32 v%d, 40, v0
        v_cmp_eq_u32 vcc, 32, v%d
        s_nop 1
        v_cndmask_b32 v%d, v%d, v%d, vcc
        ''' % (t1, t2, voff, t1, voff, t2, voff, t1, 224, voff, t2, OOB, voff, t1, voff, t1, t1, voff, voff, t2))
    def vshape_combine(self, d1, d2, d3, clampit=True):
        a = self.a
        for r in range(4): a('v_permlane32_swap_b32 v%d, v%d' % (d2 + r, d3 + r))
        for r in range(4): a('v_add_f32 v%d, v%d, v%d' % (d1 + r, d1 + r, d3 + r))
        for r in range(4): a('v_add_f32_dpp v%d, v%d, v%d row_ror:8 row_mask:0xc bank_mask:0xf' % (d1 + r, d2 + r, d3 + r))
        if clampit:
            for r in range(4): a('v_min_u32 v%d, -2, v%d' % (d1 + r, d1 + r))
    def roles(self):
        self.a('''
        s_mul_i32 s77, s5, 26
        s_lshr_b32 s77, s77, 8
        s_mul_i32 s76, s77, 10
        s_sub_u32 s76, s5, s76
        s_mul_i32 s80, s5, 52
        s_lshr_b32 s80, s80, 8
        s_mul_i32 s78, s80, 5
        s_sub_u32 s78, s5, s78
        s_and_b32 s79, s80, 1
        s_lshr_b32 s80, s80, 1
        ''')
    def tile_bases(self):
        self.a('''
        s_mul_i32 s33, s4, %d
        s_mul_i32 s36, s77, %d
        s_add_u32 s33, s33, s36
        s_lshl_b32 s36, s76, 7
        s_add_u32 s33, s33, s36
        s_mul_i32 s34, s78, %d
        s_mul_i32 s35, s4, 384
        s_add_u32 s34, s34, s35
        s_lshl_b32 s35, s80, 7
        s_add_u32 s34, s34, s35
        s_mul_i32 s35, s4, %d
        s_mul_i32 s36, s77, %d
        s_add_u32 s35, s35, s36
        s_lshl_b32 s36, s76, 7
        s_add_u32 s35, s35, s36
        s_cmp_ge_u32 s5, 30
        s_cselect_b32 s33, 0x40000000, s33
        s_cselect_b32 s34, 0x40000000, s34
        s_cselect_b32 s35, 0x40000000, s35
        ''' % (768 * 1280, 256 * 1280, 128 * 3072, 192 * 1280, 64 * 1280))
    def red_addrs(self):
        self.a('''
        v_and_b32 v24, 7, v0
        v_lshlrev_b32 v24, 2, v24
        v_bfe_u32 v25, v0, 4, 1
        v_lshl_add_u32 v24, v25, 1, v24
        v_lshrrev_b32 v25, 5, v0
        v_add_u32 v24, v24, v25                  ; col in block = 4c + PI[q]
        v_and_b32 v27, 8, v0
        v_cmp_eq_u32 vcc, 0, v27
        v_mov_b32 v27, %s
        v_lshlrev_b32 v38, 2, v24
        v_cndmask_b32 v38, v27, v38, vcc         ; line store offset (dword)
        v_lshlrev_b32 v39, 1, v24
        v_cndmask_b32 v39, v27, v39, vcc         ; out store offset (2B)
        v_lshrrev_b32 v37, 3, v0
        v_mul_u32_u24 v37, 768, v37
        v_and_b32 v25, 3, v0
        v_lshl_add_u32 v37, v25, 4, v37
        v_bfe_u32 v25, v0, 2, 1
        v_lshl_add_u32 v37, v25, 7, v37          ; gather24 lane offset
        ''' % OOB)
    def xbase(self, d):
        self.a('s_add_u32 s%d, s74, 0x3fffff\ns_and_b32 s%d, s%d, 0xffe00000\ns_sub_u32 s%d, s%d, s74' % (d, d, d, d, d))
    def pub_off(self, d, t, a_expr):
        self.a('''
        s_lshl_b32 s%d, s76, 2
        s_add_u32 s%d, s%d, %s
        s_lshr_b32 s%d, s%d, 1
        s_lshl_b32 s%d, s%d, 14
        s_and_b32 s%d, s%d, 1
        s_lshl_b32 s%d, s%d, 7
        s_add_u32 s%d, s%d, s%d
        s_mul_i32 s%d, s4, 3
        s_add_u32 s%d, s%d, s77
        s_lshl_b32 s%d, s%d, 8
        s_add_u32 s%d, s%d, s%d
        ''' % (t, t, t, a_expr, d, t, d, d, t, t, t, t, d, d, t, t, t, t, t, t, d, d, t))
    def mbpoll(self, word, sleep=0):
        a = self.a; l = a.newlabel('MB'); l2 = a.newlabel('MBD')
        a('s_lshl_b32 s20, s6, 7\ns_add_u32 s20, s20, %d\ns_mov_b32 s95, 0' % (OFF_MB + 4 * word))
        a.label(l)
        a('s_load_dword s33, s[74:75], s20 glc\ns_waitcnt lgkmcnt(0)\ns_cmp_lg_u32 s33, -1\ns_cbranch_scc1 %s' % l2)
        if sleep: a('s_sleep %d' % sleep)
        a('s_add_u32 s95, s95, 1\ns_cmp_lt_u32 s95, 0x10000\ns_cbranch_scc1 %s' % l)
        a.label(l2)

    def prologue(self):
        a = self.a
        a('''
        s_cmp_ge_u32 s2, 256
        s_cbranch_scc1 L_end
        s_load_dwordx16 s[48:63], s[0:1], 0
        s_load_dwordx8 s[64:71], s[0:1], 64
        s_load_dwordx4 s[72:75], s[0:1], 96
        v_lshrrev_b32 v1, 6, v0
        v_and_b32 v0, 63, v0
        v_readfirstlane_b32 s3, v1
        s_and_b32 s4, s2, 7
        s_lshr_b32 s5, s2, 3
        s_lshl_b32 s6, s4, 5
        s_add_u32 s6, s6, s5
        s_lshr_b32 s7, s6, 3
        s_and_b32 s46, s6, 7
        s_mov_b32 s94, %s
        s_mov_b32 s45, 0
        s_waitcnt lgkmcnt(0)
        ''' % f32(L2E_HI))
        self.srd(16, 74, WS_BYTES)
        a('''
        s_cmp_eq_u32 s3, 8
        s_cbranch_scc1 L_A0
        s_cmp_eq_u32 s3, 9
        s_cbranch_scc1 L_A1
        s_cmp_eq_u32 s3, 10
        s_cbranch_scc1 L_A2
        s_cmp_eq_u32 s3, 11
        s_cbranch_scc1 L_A3
        ''')

    def s_wave(self):
        a = self.a; vm = VM(a); D = self.o['depth']; NE = self.o['ne']
        self.stamp_begin(); self.stamp(0)
        self.srd(8, 50, 50331648); self.srd(12, 52, 50331648)
        if self.o['sprio']:
            a('s_cmp_lt_u32 s3, 4\ns_cbranch_scc1 L_S_np\ns_setprio 1')
            a.label('L_S_np')
        a('''
        s_mul_i32 s20, s6, 196608
        s_mul_i32 s21, s3, %d
        s_add_u32 s20, s20, s21
        v_and_b32 v4, 7, v0
        v_mul_u32_u24 v1, 384, v4
        v_bfe_u32 v4, v0, 3, 1
        v_lshl_add_u32 v1, v4, 6, v1
        v_lshrrev_b32 v4, 4, v0
        v_lshl_add_u32 v1, v4, 4, v1
        ''' % (3072 if self.o['ilv'] else 24576))
        GS = 24576 if self.o['ilv'] else 3072
        KB = 28; VF = 124; NF = 11
        kreg = lambda t, s: KB + (t * 3 + s) * 4
        kidx = {}
        for t in range(8):
            a('s_add_u32 s21, s20, %d' % (t * GS))
            for s in range(3):
                vm.throttle(D)
                a('buffer_load_dwordx4 v[%d:%d], v1, s[8:11], s21 offen offset:%d nt' % (kreg(t, s), kreg(t, s) + 3, s * 128))
                kidx[(t, s)] = vm.issue()
                if vm.n == min(D, 4):
                    self.vshape_offsets(2, 3, 4, 5, 384)
                    a('s_barrier')
        vtiles = [(t, ty) for t in range(8) for ty in range(3)]
        vreg = {tt: (VF + 4 * n if n < NF else KB + 4 * (n - NF)) for n, tt in enumerate(vtiles)}
        vidx = {}
        def issue_v(n):
            t, ty = vtiles[n]
            vm.throttle(D)
            a('s_add_u32 s21, s20, %d' % (t * GS))
            r = vreg[(t, ty)]
            if ty == 0: a('buffer_load_dwordx4 v[%d:%d], v2, s[12:15], s21 offen nt' % (r, r + 3))
            elif ty == 1: a('buffer_load_dwordx4 v[%d:%d], v2, s[12:15], s21 offen offset:1536 nt' % (r, r + 3))
            else: a('buffer_load_dwordx4 v[%d:%d], v3, s[12:15], s21 offen nt' % (r, r + 3))
            vidx[(t, ty)] = vm.issue()
        P = 11
        QMIN = max(self.o['qk_min'], D)
        a('s_lshr_b32 s97, s3, 8\nv_mov_b32 v25, %d' % L_FLAGQ)
        for n in range(P):
            issue_v(n)
            if n + 1 >= QMIN and n + 1 < P:
                assert vm.done >= 24
                l = a.newlabel('QS')
                a('''
                s_cmp_lg_u32 s97, 0
                s_cbranch_scc1 %s
                ds_read_b32 v24, v25
                s_waitcnt lgkmcnt(0)
                v_readfirstlane_b32 s93, v24
                s_cmp_eq_u32 s93, 0
                s_cbranch_scc1 %s
                s_call_b64 s[30:31], L_QK
                ''' % (l, l))
                a.label(l)
        self.stamp(17)
        a('s_cmp_lg_u32 s97, 0\ns_cbranch_scc1 L_QK_done')
        self.lds_spin(L_FLAGQ, None, 24, 25, sleep=2)
        a('s_call_b64 s[30:31], L_QK\ns_branch L_QK_done')
        a.label('L_QK')
        a('''
        v_and_b32 v24, 1, v0
        v_lshrrev_b32 v25, 4, v0
        v_lshl_add_u32 v24, v24, 2, v25
        v_lshlrev_b32 v24, 4, v24
        ds_read_b128 v[4:7], v24 offset:%d
        ds_read_b128 v[8:11], v24 offset:%d
        ds_read_b128 v[12:15], v24 offset:%d
        s_waitcnt lgkmcnt(0)
        ''' % (L_Q, L_Q + 128, L_Q + 256))
        vS = 24
        def pack(t):
            acc = 16 + 4 * (t & 1)
            if t % 2 == 0: a('v_add_f32_dpp v%d, v%d, v%d row_ror:8 row_mask:0x%x bank_mask:0x3' % (vS, acc + 1, acc, 1 << (t // 2)))
            else: a('v_add_f32_dpp v%d, v%d, v%d row_ror:8 row_mask:0x%x bank_mask:0xc' % (vS, acc, acc + 1, 1 << (t // 2)))
        for t in range(8):
            acc = 16 + 4 * (t & 1)
            vm.wait(kidx[(t, 2)])
            for s in range(3):
                c = '0' if s == 0 else 'v[%d:%d]' % (acc, acc + 3)
                a('v_mfma_f32_16x16x32_bf16 v[%d:%d], v[%d:%d], v[%d:%d], %s' % (acc, acc + 3, 4 + 4 * s, 7 + 4 * s, kreg(t, s), kreg(t, s) + 3, c))
            if t >= 1:
                a('s_nop 4'); pack(t - 1); a('s_nop 2')
        a('s_nop 7'); pack(7); a('s_nop 0')
        if not self.o.get('skip_sc1'): self.rnd(vS, vS)
        a('v_mul_f32 v%d, %s, v%d' % (vS, f32(192 ** -0.5), vS))
        if not self.o.get('skip_sc2'): self.rnd(vS, vS)
        a('v_mov_b32 v16, v%d' % vS)
        self.wave_reduce(16, 17, 'max')
        a('v_sub_f32 v18, v%d, v16\nv_max_f32 v18, %s, v18' % (vS, f32(-200.0)))
        self.exp(17, 18, 19, 20)
        self.wave_reduce(17, 18, 'add')
        a('''
        s_lshl_b32 s21, s3, 3
        s_add_u32 s21, s21, %d
        v_mov_b32 v18, s21
        ds_write_b64 v18, v[16:17]
        s_waitcnt lgkmcnt(0)
        ''' % L_STAT)
        self.lds_inc(L_CNTST, 19, 18)
        self.stamp(15)
        a('s_or_b32 s97, s3, 256\ns_setpc_b64 s[30:31]')
        a.label('L_QK_done')
        for n in range(P, 24):
            issue_v(n)
            if n == self.o['sig']: self.lds_inc(L_CNTIS, 5, 4)
        self.sel_masks(16, 25, 26)
        a('s_lshl_b32 s22, s3, 8\ns_add_u32 s22, s22, %d' % L_P)
        self.pv_addr(1, 25, 's22')
        self.stamp(18)
        self.lds_spin(L_FLAGP, None, 25, 26, sleep=2)
        a('''
        v_mov_b32 v25, %d
        ds_read_b64 v[26:27], v25
        v_mov_b32 v25, %d
        ds_read_b32 v25, v25
        v_lshlrev_b32 v2, 2, v0
        v_add_u32 v2, s22, v2
        s_waitcnt lgkmcnt(0)
        v_readfirstlane_b32 s45, v25
        v_sub_f32 v24, v24, v26
        s_and_b32 s45, s45, 3
        v_max_f32 v24, %s, v24
        ''' % (L_GSTAT, L_MODE, f32(-200.0)))
        self.exp(24, 24, 20, 21)
        self.div(24, 24, 27, 20, 21)
        a('''
        v_cvt_pk_bf16_f32 v24, v24, v24
        ds_write_b32 v2, v24
        s_waitcnt lgkmcnt(0)
        ds_read_b32 v2, v1 offset:0
        ds_read_b32 v3, v1 offset:32
        s_setprio 3
        ''')
        for t in range(8):
            sel = 20 + 4 * (t & 1); pv = 2 + (t & 1)
            a('s_waitcnt lgkmcnt(%d)' % (1 if t < 7 else 0))
            for k in range(4): a('v_and_b32 v%d, v%d, v%d' % (sel + k, pv, 16 + k))
            if t + 2 < 8: a('ds_read_b32 v%d, v1 offset:%d\ns_nop 0' % (pv, 32 * (t + 2)))
            elif t == 6: a('s_nop 1')
            else:
                self.lds_inc(L_CNTPV, 2, 1)
                self.vshape_off(1, 2, 3)
                a('''
                v_min_u32 v2, 1008, v1
                s_lshl_b32 s21, s3, 10
                v_add_u32 v3, s21, v2
                v_mov_b32 v16, %d
                v_mov_b32 v17, 1
                s_mul_i32 s21, s6, 768
                s_add_u32 s21, s21, %d
                ''' % (L_CNTSL, OFF_O))
            for ty in range(3):
                vm.wait(vidx[(t, ty)])
                acc = 4 + 4 * ty
                c = '0' if t == 0 else 'v[%d:%d]' % (acc, acc + 3)
                r = vreg[(t, ty)]
                a('v_mfma_f32_16x16x32_bf16 v[%d:%d], v[%d:%d], v[%d:%d], %s' % (acc, acc + 3, sel, sel + 3, r, r + 3, c))
        a('s_nop 7')
        self.vshape_combine(4, 8, 12, clampit=False)
        a('''
        ds_write_b128 v3, v[4:7] offset:%d
        s_waitcnt lgkmcnt(0)
        s_mov_b64 exec, 1
        ds_add_rtn_u32 v17, v16, v17
        s_mov_b64 exec, -1
        s_waitcnt lgkmcnt(0)
        v_readfirstlane_b32 s22, v17
        s_cmp_lg_u32 s22, 7
        s_cbranch_scc1 L_S_end
        ''' % L_OSL)
        for k in range(8):
            a('ds_read_b128 v[%d:%d], v2 offset:%d' % (28 + 4 * k, 31 + 4 * k, L_OSL + 1024 * k))
        for k in range(0, 8, 2):
            a('s_waitcnt lgkmcnt(%d)' % (6 - k))
            a('v_pk_add_f32 v[%d:%d], v[%d:%d], v[%d:%d]' % (28 + 4 * k, 29 + 4 * k, 28 + 4 * k, 29 + 4 * k, 32 + 4 * k, 33 + 4 * k))
            a('v_pk_add_f32 v[%d:%d], v[%d:%d], v[%d:%d]' % (30 + 4 * k, 31 + 4 * k, 30 + 4 * k, 31 + 4 * k, 34 + 4 * k, 35 + 4 * k))
        a('''
        v_pk_add_f32 v[28:29], v[28:29], v[36:37]
        v_pk_add_f32 v[30:31], v[30:31], v[38:39]
        v_pk_add_f32 v[44:45], v[44:45], v[52:53]
        v_pk_add_f32 v[46:47], v[46:47], v[54:55]
        v_pk_add_f32 v[28:29], v[28:29], v[44:45]
        v_pk_add_f32 v[30:31], v[30:31], v[46:47]
        v_min_u32 v28, -2, v28
        v_min_u32 v29, -2, v29
        v_min_u32 v30, -2, v30
        v_min_u32 v31, -2, v31
        ''')
        self.store_intra(['buffer_store_dwordx4 v[28:31], v1, s[16:19], s21 offen'])
        self.stamp(4)
        a('s_branch L_S_end2')
        a.label('L_S_end')
        if self.stamps:
            r4 = self.stlist[-1][1]
            a('s_memrealtime s[90:91]\ns_waitcnt lgkmcnt(0)\ns_mov_b32 s%d, s90' % r4)
        if not self.o['stg']:
            a('s_cmp_lg_u32 s22, 0\ns_cbranch_scc1 L_S_end2\ns_cmp_ge_u32 s5, 30\ns_cbranch_scc1 L_S_end2\ns_setprio 0')
            self.roles(); self.tile_bases()
            a('''
            s_cmp_eq_u32 s79, 0
            s_cselect_b32 s24, s60, s62
            s_cselect_b32 s25, s61, s63
            s_mov_b32 s26, %d
            s_mov_b32 s27, 0x20000
            ''' % (640 * 3072))
            self.srd(28, 56, 6144 * 1280)
            self.srd(8, 64, 1536 * 1280)
            a('''
            v_lshrrev_b32 v6, 3, v0
            v_and_b32 v7, 7, v0
            v_mul_u32_u24 v4, 3072, v6
            v_lshl_add_u32 v4, v7, 4, v4
            v_mul_u32_u24 v5, 1280, v6
            v_lshl_add_u32 v5, v7, 4, v5
            ''')
            self.lds_spin(L_CNTIS, 8, 8, 9, sleep=1)
            for t in range(NE, 32):
                a('s_mov_b32 m0, %d\ns_add_u32 s36, s33, %d\nbuffer_load_dwordx4 v5, s[28:31], s36 offen nt lds' % (L_WO + 1024 * t, t * 8 * 1280))
            for t in range(16):
                a('s_mov_b32 m0, %d\ns_add_u32 s36, s34, %d\nbuffer_load_dwordx4 v4, s[24:27], s36 offen nt lds' % (L_WG + 1024 * t, t * 8 * 3072))
            for t in range(8):
                a('s_mov_b32 m0, %d\ns_add_u32 s36, s35, %d\nbuffer_load_dwordx4 v5, s[8:11], s36 offen nt lds' % (L_WD + 1024 * t, t * 8 * 1280))
            a('s_setprio 3')
            if NE < 32:
                a('s_waitcnt vmcnt(24)')
                self.lds_inc(L_ST1, 17, 16)
            a('s_waitcnt vmcnt(0)')
            self.lds_inc(L_ST2, 17, 16)
        a.label('L_S_end2')
        if self.stamps:
            r15 = [r for (i, r) in self.stlist if i == self.o['pw']][0]
            a('s_lshl_b32 s92, s2, 8\ns_add_u32 s92, s92, %d\ns_lshl_b32 s93, s3, 3\ns_add_u32 s92, s92, s93\nv_mov_b32 v1, 0\nv_mov_b32 v3, 0\nv_mov_b32 v2, s%d\ns_mov_b64 exec, 1\nbuffer_store_dwordx2 v[2:3], v1, s[16:19], s92 offen\ns_nop 1' % (OFF_STAMP + 160, r15))
            a('s_cmp_lg_u32 s3, 0\ns_cbranch_scc1 L_end')
            self.stamp_flush(self.stlist)
        a('s_endpgm')

    def m_tile_loads(self, vm):
        a = self.a
        a('''
        s_mul_i32 s22, s20, %d
        s_lshl_b32 s23, s21, 7
        s_add_u32 s22, s22, s23
        v_lshrrev_b32 v4, 4, v0
        v_bfe_u32 v5, v0, 3, 1
        v_lshl_add_u32 v4, v5, 2, v4
        v_mul_u32_u24 v4, 7680, v4
        v_and_b32 v5, 7, v0
        v_lshl_add_u32 v4, v5, 4, v4
        s_mul_i32 s24, s20, 320
        v_lshlrev_b32 v5, 1, v0
        buffer_load_ushort v6, v5, s[12:15], s24 offen
        buffer_load_ushort v7, v5, s[12:15], s24 offen offset:128
        buffer_load_ushort v8, v5, s[12:15], s24 offen offset:256
        ''' % (160 * 7680))
        for _ in range(3): vm.issue()
        W = 40; widx = []
        for t in range(20):
            a('s_add_u32 s23, s22, %d\nbuffer_load_dwordx4 v[%d:%d], v4, s[8:11], s23 offen nt' % (t * 8 * 7680, W + 4 * t, W + 4 * t + 3))
            widx.append(vm.issue())
        return widx

    def m_tile_compute(self, vm, widx, LS, wait_init):
        a = self.a; W = 40
        self.sel_masks(16, 9, 10)
        self.pv_addr(1, 9, str(LS))
        vm.wait(2)
        for k in range(3):
            r = 6 + k
            a('v_lshlrev_b32 v%d, 16, v%d\nv_sub_f32 v9, 0, v%d\nv_min_f32 v9, %s, v9\nv_max_f32 v9, %s, v9' % (r, r, r, f32(88.0), f32(-200.0)))
            self.exp(10, 9, 11, 12)
            a('v_add_f32 v10, 1.0, v10')
            self.div(r, r, 10, 11, 12)
            a('v_cvt_pk_bf16_f32 v%d, v%d, v%d' % (r, r, r))
        a('''
        v_lshlrev_b32 v9, 2, v0
        ds_write_b32 v9, v6 offset:%d
        ds_write_b32 v9, v7 offset:%d
        ds_write_b32 v9, v8 offset:%d
        s_waitcnt lgkmcnt(0)
        ds_read_b32 v2, v1 offset:0
        ds_read_b32 v3, v1 offset:32
        ''' % (LS, LS + 256, LS + 512))
        for t in range(20):
            sel = 20 + 4 * (t & 1); pv = 2 + (t & 1)
            a('s_waitcnt lgkmcnt(%d)' % (1 if t < 19 else 0))
            for k in range(4): a('v_and_b32 v%d, v%d, v%d' % (sel + k, pv, 16 + k))
            a('ds_read_b32 v%d, v1 offset:%d' % (pv, 32 * (t + 2)) if t + 2 < 20 else 's_nop 0')
            a('s_nop 0')
            vm.wait(widx[t])
            a('v_mfma_f32_16x16x32_bf16 v[4:7], v[%d:%d], v[%d:%d], %s' % (sel, sel + 3, W + 4 * t, W + 4 * t + 3, '0' if t == 0 else 'v[4:7]'))
        a('''
        v_and_b32 v9, 15, v0
        v_lshrrev_b32 v10, 4, v0
        v_lshlrev_b32 v1, 5, v9
        v_lshl_add_u32 v1, v10, 4, v1
        v_and_b32 v9, 40, v0
        v_cmp_eq_u32 vcc, 0, v9
        v_mov_b32 v10, %s
        s_nop 0
        v_cndmask_b32 v1, v10, v1, vcc
        s_nop 2
        ''' % OOB)
        for r in range(4): a('v_permlane32_swap_b32 v%d, v%d' % (4 + r, 8 + r))
        a('s_nop 1')
        for r in range(4): a('v_add_f32_dpp v%d, v%d, v%d row_ror:8 row_mask:0xf bank_mask:0xf' % (4 + r, 8 + r, 4 + r))
        for r in range(4): a('v_min_u32 v%d, -2, v%d' % (4 + r, 4 + r))
        if wait_init: self.lds_spin(L_INIT, None, 9, 10, sleep=1)
        a('''
        s_mul_i32 s22, s20, 15360
        s_lshl_b32 s23, s21, 8
        s_add_u32 s22, s22, s23
        s_add_u32 s22, s22, %d
        buffer_store_dwordx4 v[4:7], v1, s[16:19], s22 offen sc1
        ''' % OFF_MOD)

    def a0_wave(self):
        a = self.a; vm = VM(a)
        NT = 80 if self.o['rank'] else 240
        a.label('L_A0')
        self.stamp_begin()
        a('s_setprio 2')
        self.srd(8, 68, 640 * 7680); self.srd(12, 66, 1280)
        a('''
        v_lshlrev_b32 v1, 2, v0
        v_mov_b32 v2, 0
        ds_write_b32 v1, v2
        s_cmp_ge_u32 s2, %d
        s_cbranch_scc1 L_A0_bar
        s_and_b32 s20, s2, 3
        s_lshr_b32 s21, s2, 2
        ''' % NT)
        widx = self.m_tile_loads(vm)
        a.label('L_A0_bar')
        a('s_waitcnt lgkmcnt(0)\ns_barrier\ns_cmp_ge_u32 s2, %d\ns_cbranch_scc1 L_A0_stats' % NT)
        self.m_tile_compute(vm, widx, L_S, True)
        self.stamp(1)
        a.label('L_A0_stats')
        self.lds_spin(L_MODE, None, 9, 10, sleep=4)
        a('s_and_b32 s45, s93, 3')
        self.lds_spin(L_CNTST, 8, 9, 10, sleep=2)
        a('v_and_b32 v1, 7, v0\nv_lshlrev_b32 v2, 3, v1\nds_read_b64 v[4:5], v2 offset:%d\ns_waitcnt lgkmcnt(0)' % L_STAT)
        def combine_stats():
            a('v_mov_b32 v6, v4')
            for r in (4, 2, 1): a('s_nop 1\nv_max_f32_dpp v6, v6, v6 row_ror:%d row_mask:0xf bank_mask:0xf' % r)
            a('v_sub_f32 v8, v4, v6\nv_max_f32 v8, %s, v8' % f32(-200.0))
            self.exp(7, 8, 9, 10)
            a('v_mul_f32 v7, v7, v5')
            for r in (4, 2, 1): a('s_nop 1\nv_add_f32_dpp v7, v7, v7 row_ror:%d row_mask:0xf bank_mask:0xf' % r)
        combine_stats()
        a('''
        v_min_u32 v6, -2, v6
        v_min_u32 v7, -2, v7
        s_lshl_b32 s22, s6, 7
        s_add_u32 s22, s22, %d
        v_readfirstlane_b32 s24, v6
        v_readfirstlane_b32 s25, v7
        s_lshl_b32 s23, s7, 10
        s_add_u32 s23, s23, %d
        s_nop 2
        s_atomic_swap_x2 s[24:25], s[74:75], s22
        s_mov_b32 s95, 0
        L_A0_sp:
        ''' % (OFF_ST, OFF_ST))
        for k in range(8): a('s_load_dwordx2 s[%d:%d], s[74:75], s23 offset:%d glc' % (76 + 2 * k, 77 + 2 * k, 128 * k))
        a('s_waitcnt lgkmcnt(0)\ns_max_u32 s26, s76, s77')
        for k in range(2, 16): a('s_max_u32 s26, s26, s%d' % (76 + k))
        a('''
        s_cmp_lg_u32 s26, -1
        s_cbranch_scc1 L_A0_spd
        s_add_u32 s95, s95, 1
        s_cmp_lt_u32 s95, 0x10000
        s_cbranch_scc1 L_A0_sp
        L_A0_spd:
        ''')
        for k in range(8):
            a('v_writelane_b32 v4, s%d, %d\nv_writelane_b32 v4, s%d, %d\nv_writelane_b32 v5, s%d, %d\nv_writelane_b32 v5, s%d, %d' % (76 + 2 * k, k, 76 + 2 * k, k + 8, 77 + 2 * k, k, 77 + 2 * k, k + 8))
        combine_stats()
        a('v_mov_b32 v2, %d\ns_mov_b64 exec, 1\nds_write_b64 v2, v[6:7]\ns_mov_b64 exec, -1\ns_waitcnt lgkmcnt(0)' % L_GSTAT)
        self.lds_set(L_FLAGP, '1', 9, 10)
        self.stamp(3)
        self.stl_a0 = list(self.stlist)
        a('s_branch L_TAIL')

    def a1_wave(self):
        a = self.a; vm = VM(a)
        a.label('L_A1')
        self.stamp_begin()
        a('s_setprio %d' % self.o['a1p'])
        self.srd(8, 54, 640 * 12288); self.srd(12, 48, 1280)
        a('''
        v_lshlrev_b32 v4, 2, v0
        buffer_load_dword v20, v4, s[12:15], 0 offen
        buffer_load_dword v21, v4, s[12:15], 0 offen offset:256
        buffer_load_dword v22, v4, s[12:15], 0 offen offset:512
        buffer_load_dword v23, v4, s[12:15], 0 offen offset:768
        buffer_load_dword v24, v4, s[12:15], 0 offen offset:1024
        v_min_u32 v1, 19, v0
        v_lshlrev_b32 v4, 3, v1
        s_mul_i32 s20, s46, 160
        buffer_load_dwordx2 v[26:27], v4, s[12:15], s20 offen
        ''')
        for _ in range(6): vm.issue()
        self.vshape_offsets(2, 3, 4, 5, 12288)
        a('s_barrier\ns_mul_i32 s20, s46, %d\ns_mul_i32 s21, s7, 384\ns_add_u32 s20, s20, s21' % (80 * 12288))
        W = 40
        for t in range(10):
            a('s_add_u32 s21, s20, %d\ns_add_u32 s22, s20, %d' % (t * 8 * 12288, (t * 8 + 4) * 12288))
            for ty in range(3):
                r = W + (t * 3 + ty) * 4
                vm.throttle(self.o['a1d'])
                a('buffer_load_dwordx4 v[%d:%d], v%d, s[8:11], s%d offen nt' % (r, r + 3, 3 if ty == 2 else 2, 22 if ty == 1 else 21))
                vm.issue()
        a('s_setprio 2')
        vm.wait(5)
        for k in range(5):
            a('v_lshlrev_b32 v%d, 16, v%d\nv_and_b32 v%d, 0xffff0000, v%d' % (28 + 2 * k, 20 + k, 29 + 2 * k, 20 + k))
        vals = list(range(28, 38)); vmu, vden = 38, 39
        a('v_add_f32 v%d, v%d, v%d' % (vmu, vals[0], vals[1]))
        for v in vals[2:]: a('v_add_f32 v%d, v%d, v%d' % (vmu, vmu, v))
        self.wave_reduce(vmu, 4, 'add')
        a('v_mul_f32 v%d, %s, v%d' % (vmu, f32(1.0 / 640), vmu))
        a('v_sub_f32 v4, v%d, v%d\nv_mul_f32 v%d, v4, v4' % (vals[0], vmu, vden))
        for v in vals[1:]: a('v_sub_f32 v4, v%d, v%d\nv_fmac_f32 v%d, v4, v4' % (v, vmu, vden))
        self.wave_reduce(vden, 4, 'add')
        a('v_mul_f32 v%d, %s, v%d' % (vden, f32(1.0 / 640), vden))
        self.rnd(vden, vden)
        a('v_add_f32 v%d, %s, v%d' % (vden, f32(1e-5), vden))
        self.rnd(vden, vden)
        a('v_sqrt_f32 v%d, v%d\ns_nop 0' % (vden, vden))
        self.rnd(vden, vden); self.rnd(vmu, vmu)
        a('''
        v_lshlrev_b32 v28, 16, v26
        v_and_b32 v29, 0xffff0000, v26
        v_lshlrev_b32 v30, 16, v27
        v_and_b32 v31, 0xffff0000, v27
        v_rcp_f32 v32, v39
        ''')
        for k in range(4):
            x = 28 + k
            a('v_sub_f32 v%d, v%d, v38' % (x, x)); self.rnd(x, x)
            a('v_mul_f32 v33, v%d, v32\nv_fma_f32 v34, -v33, v39, v%d\nv_fma_f32 v%d, v34, v32, v33' % (x, x, x)); self.rnd(x, x)
        self.pv_addr(35, 33, str(L_H))
        self.vshape_off(36, 33, 34)
        self.lds_spin(L_MODE, None, 4, 5, sleep=4)
        a('''
        s_and_b32 s45, s93, 3
        s_mul_i32 s20, s46, 320
        s_add_u32 s20, s20, %d
        s_add_u32 s21, s20, 15360
        s_add_u32 s22, s20, 30720
        s_add_u32 s23, s20, 46080
        v_lshlrev_b32 v2, 4, v1
        ''' % OFF_MOD)
        g = [4, 8, 12, 16, 20, 24, 160, 164]
        loads = []
        for rs in range(4):
            loads.append('buffer_load_dwordx4 v[%d:%d], v2, s[16:19], s%d offen' % (g[rs], g[rs] + 3, 20 + rs))
            loads.append('buffer_load_dwordx4 v[%d:%d], v2, s[16:19], s%d offen offset:2560' % (g[4 + rs], g[4 + rs] + 3, 20 + rs))
        self.poll(loads, [b + k for b in g for k in range(4)], 33, sleep=2)
        self.stamp(14)
        for h in range(2):
            k = 2 * h
            a('''
            v_pk_add_f32 v[%d:%d], v[%d:%d], v[%d:%d]
            v_pk_add_f32 v[%d:%d], v[%d:%d], v[%d:%d]
            v_pk_add_f32 v[%d:%d], v[%d:%d], v[%d:%d]
            v_pk_add_f32 v[%d:%d], v[%d:%d], v[%d:%d]
            v_pk_add_f32 v[%d:%d], v[%d:%d], v[%d:%d]
            v_pk_add_f32 v[%d:%d], v[%d:%d], v[%d:%d]
            ''' % (4 + k, 5 + k, 4 + k, 5 + k, 8 + k, 9 + k, 12 + k, 13 + k, 12 + k, 13 + k, 16 + k, 17 + k,
                   20 + k, 21 + k, 20 + k, 21 + k, 24 + k, 25 + k, 160 + k, 161 + k, 160 + k, 161 + k, 164 + k, 165 + k,
                   4 + k, 5 + k, 4 + k, 5 + k, 12 + k, 13 + k, 20 + k, 21 + k, 20 + k, 21 + k, 160 + k, 161 + k))
        for k in range(4):
            self.rnd(4 + k, 4 + k); self.rnd(20 + k, 20 + k)
            a('v_add_f32 v%d, 1.0, v%d' % (20 + k, 20 + k)); self.rnd(20 + k, 20 + k)
            a('v_mul_f32 v%d, v%d, v%d' % (28 + k, 28 + k, 20 + k)); self.rnd(28 + k, 28 + k)
            a('v_add_f32 v%d, v%d, v%d\nv_cvt_pk_bf16_f32 v%d, v%d, v%d' % (28 + k, 28 + k, 4 + k, 28 + k, 28 + k, 28 + k))
        a('ds_write_b128 v2, v[28:31] offset:%d' % L_H)
        self.sel_masks(16, 33, 34)
        a('s_waitcnt lgkmcnt(0)\nds_read_b32 v2, v35 offset:0\nds_read_b32 v3, v35 offset:32')
        for t in range(10):
            sel = 20 + 4 * (t & 1); pv = 2 + (t & 1)
            a('s_waitcnt lgkmcnt(%d)' % (1 if t < 9 else 0))
            for k in range(4): a('v_and_b32 v%d, v%d, v%d' % (sel + k, pv, 16 + k))
            a('ds_read_b32 v%d, v35 offset:%d' % (pv, 32 * (t + 2)) if t + 2 < 10 else 's_nop 0')
            a('s_nop 0')
            for ty in range(3):
                acc = 4 + 4 * ty; r = W + (t * 3 + ty) * 4
                a('v_mfma_f32_16x16x32_bf16 v[%d:%d], v[%d:%d], v[%d:%d], %s' % (acc, acc + 3, sel, sel + 3, r, r + 3, '0' if t == 0 else 'v[%d:%d]' % (acc, acc + 3)))
        a('s_mul_i32 s21, s6, 768\ns_add_u32 s21, s21, %d\ns_nop 7' % OFF_Q)
        self.vshape_combine(4, 8, 12)
        self.store_intra(['buffer_store_dwordx4 v[4:7], v36, s[16:19], s21 offen'])
        a('''
        s_mul_i32 s21, s7, 6144
        s_add_u32 s21, s21, %d
        s_add_u32 s22, s21, 3072
        v_min_u32 v1, 47, v0
        v_lshlrev_b32 v2, 4, v1
        ''' % OFF_Q)
        loads = ['buffer_load_dwordx4 v[%d:%d], v2, s[16:19], s%d offen offset:%d' % (40 + 4 * p, 43 + 4 * p, 21 + p // 4, (p % 4) * 768) for p in range(8)]
        self.poll(loads, list(range(40, 72)), 33, sleep=1)
        for k in (0, 2):
            for st in (1, 2, 4):
                for p in range(0, 8, 2 * st):
                    a('v_pk_add_f32 v[%d:%d], v[%d:%d], v[%d:%d]' % (40 + 4 * p + k, 41 + 4 * p + k, 40 + 4 * p + k, 41 + 4 * p + k, 40 + 4 * (p + st) + k, 41 + 4 * (p + st) + k))
        a('''
        v_cvt_pk_bf16_f32 v4, v40, v41
        v_cvt_pk_bf16_f32 v5, v42, v43
        v_lshlrev_b32 v2, 3, v1
        ds_write_b64 v2, v[4:5] offset:%d
        s_waitcnt lgkmcnt(0)
        ''' % L_Q)
        self.lds_set(L_FLAGQ, '1', 9, 10)
        self.stamp(2)
        self.stl_a1 = list(self.stlist)
        a('s_branch L_TAIL')

    def a2_wave(self):
        a = self.a
        a.label('L_A2')
        self.stamp_begin()
        a('s_setprio 3')
        self.srd(12, 48, 1280)
        a('v_mov_b32 v4, -1\nv_mov_b32 v5, -1\nv_mov_b32 v6, -1\nv_mov_b32 v7, -1\nv_lshlrev_b32 v1, 4, v0')
        def init(base_expr, nbytes, pol):
            a(base_expr)
            m = (1 << (nbytes // 16)) - 1
            a('s_mov_b32 exec_lo, 0x%x\ns_mov_b32 exec_hi, 0x%x' % (m & 0xffffffff, m >> 32))
            a('buffer_store_dwordx4 v[4:7], v1, s[16:19], s20 offen %s\ns_mov_b64 exec, -1' % pol)
        def slot(off, gstride, n, sz):
            return 's_min_u32 s21, s5, %d\ns_mul_i32 s21, s21, %d\ns_mul_i32 s20, s4, %d\ns_add_u32 s20, s20, s21\ns_add_u32 s20, s20, %d' % (n - 1, sz, gstride, off)
        def init_intra(pol):
            init('s_mul_i32 s20, s6, 768\ns_add_u32 s20, s20, %d' % OFF_Q, 768, pol)
            init('s_mul_i32 s20, s6, 768\ns_add_u32 s20, s20, %d' % OFF_O, 768, pol)
            init(slot(OFF_H, 2560, 20, 128), 128, pol)
            init(slot(OFF_C, 2560, 20, 128), 128, pol)
            init(slot(OFF_G, 7680, 30, 256), 256, pol)
        def fanout(word):
            a('''
            v_mov_b32 v10, s35
            v_lshlrev_b32 v8, 7, v0
            s_lshl_b32 s20, s4, 12
            s_add_u32 s20, s20, %d
            s_mov_b32 exec_hi, 0
            buffer_store_dword v10, v8, s[16:19], s20 offen sc1
            s_mov_b64 exec, -1
            ''' % (OFF_MB + 4 * word))
        def toppoll(off):
            l = a.newlabel('TP'); l2 = a.newlabel('TPD')
            a('s_mov_b32 s95, 0'); a.label(l)
            a('''
            s_and_b32 s36, s35, 0xffff
            s_cmp_eq_u32 s36, 8
            s_cbranch_scc1 %s
            s_load_dword s35, s[72:73], 0x%x glc
            s_waitcnt lgkmcnt(0)
            s_add_u32 s95, s95, 1
            s_cmp_lt_u32 s95, 0x10000
            s_cbranch_scc1 %s
            ''' % (l2, off, l))
            a.label(l2)
        init('s_lshl_b32 s20, s6, 7\ns_add_u32 s20, s20, %d' % OFF_MB, 16, 'sc1')
        init('s_lshl_b32 s20, s6, 7\ns_add_u32 s20, s20, %d' % OFF_ST, 16, 'sc1')
        init('s_min_u32 s22, s2, 239\ns_and_b32 s20, s22, 3\ns_mul_i32 s20, s20, 15360\ns_lshr_b32 s21, s22, 2\ns_lshl_b32 s21, s21, 8\ns_add_u32 s20, s20, s21\ns_add_u32 s20, s20, %d\ns_cmp_ge_u32 s2, 240\ns_cselect_b32 s20, %d, s20' % (OFF_MOD, OOB), 256, 'sc1')
        self.roles()
        self.xbase(67)
        self.pub_off(20, 21, '0')
        a('''
        s_add_u32 s20, s20, s67
        s_cmp_ge_u32 s5, 30
        s_cselect_b32 s20, %d, s20
        v_lshrrev_b32 v8, 5, v0
        v_lshlrev_b32 v8, 19, v8
        v_bfe_u32 v9, v0, 4, 1
        v_lshl_add_u32 v8, v9, 13, v8
        v_bfe_u32 v9, v0, 3, 1
        v_lshl_add_u32 v8, v9, 14, v8
        v_bfe_u32 v9, v0, 2, 1
        v_lshl_add_u32 v8, v9, 7, v8
        v_and_b32 v9, 3, v0
        v_lshl_add_u32 v8, v9, 4, v8
        buffer_store_dwordx4 v[4:7], v8, s[16:19], s20 offen sc1
        ''' % 0x40000000)
        init_intra('')
        a('''
        s_barrier
        s_getreg_b32 s20, hwreg(HW_REG_XCC_ID)
        s_and_b32 s20, s20, 7
        s_lshl_b32 s22, s20, 3
        s_lshl_b64 s[32:33], 1, s22
        s_lshl_b32 s21, s4, 5
        s_mov_b64 s[34:35], s[32:33]
        s_waitcnt vmcnt(0)
        s_atomic_add_x2 s[34:35], s[72:73], s21 glc
        ''')
        self.lds_set(L_INIT, '1', 9, 12)
        a('''
        s_waitcnt lgkmcnt(0)
        s_add_u32 s34, s34, s32
        s_addc_u32 s35, s35, s33
        v_mov_b32 v10, s34
        v_mov_b32 v11, s35
        v_sad_u8 v12, v10, 0, 0
        v_sad_u8 v12, v11, 0, v12
        s_nop 0
        v_readfirstlane_b32 s36, v12
        ''')
        self.stamp(16)
        a('''
        s_nop 3
        s_cmp_lg_u32 s36, 32
        s_cbranch_scc1 L_A2_mb
        s_or_b32 s34, s34, s35
        s_and_b32 s34, s34, 0xdfdfdfdf
        s_cmp_lg_u32 s34, 0
        s_cselect_b32 s34, 0x10001, 1
        s_mov_b32 s35, s34
        s_atomic_add s35, s[72:73], 0x8 glc
        s_waitcnt lgkmcnt(0)
        s_and_b32 s23, s35, 7
        s_lshl_b32 s23, s23, 8
        s_add_u32 s35, s35, s34
        ''')
        toppoll(0x8)
        a('s_lshr_b32 s35, s35, 16\ns_cmp_lg_u32 s35, 0\ns_cselect_b32 s35, 2, 1\ns_or_b32 s35, s35, s23')
        fanout(0)
        a.label('L_A2_mb')
        self.mbpoll(0)
        a('s_and_b32 s97, s33, 0x700\ns_and_b32 s33, s33, 3\ns_cmp_eq_u32 s33, 1\ns_cselect_b32 s45, 1, 2')
        if self.o['force_slow']: a('s_mov_b32 s45, 2')
        a('s_cmp_eq_u32 s45, 1\ns_cbranch_scc1 L_A2_fast')
        init_intra('sc1')
        a('''
        s_mov_b32 s34, 1
        s_lshl_b32 s21, s4, 5
        s_add_u32 s21, s21, 16
        s_waitcnt vmcnt(0)
        s_atomic_add s34, s[72:73], s21 glc
        s_waitcnt lgkmcnt(0)
        s_cmp_lg_u32 s34, 31
        s_cbranch_scc1 L_A2_mb2
        s_mov_b32 s35, 1
        s_atomic_add s35, s[72:73], 0x18 glc
        s_waitcnt lgkmcnt(0)
        s_add_u32 s35, s35, 1
        ''')
        toppoll(0x18)
        a('s_mov_b32 s35, 1')
        fanout(1)
        a.label('L_A2_mb2')
        self.mbpoll(1, sleep=2)
        a.label('L_A2_fast')
        a('s_or_b32 s97, s97, s45')
        self.lds_set(L_MODE, 's97', 9, 10)
        self.stamp(13)
        self.red_addrs()
        a('''
        s_lshr_b32 s68, s5, 8
        s_cmp_ge_u32 s5, 20
        s_cbranch_scc1 L_TAIL
        s_lshl_b32 s20, s5, 7
        s_add_u32 s20, s20, %d
        s_add_u32 s21, s20, 15360
        s_add_u32 s22, s20, 30720
        s_add_u32 s23, s20, 46080
        v_lshlrev_b32 v25, 2, v24
        v_add_u32 v26, 5120, v25
        v_add_u32 v27, 10240, v25
        s_lshl_b32 s32, s5, 6
        v_lshlrev_b32 v28, 1, v24
        buffer_load_ushort v30, v28, s[12:15], s32 offen
        ''' % OFF_MOD)
        loads = []
        for rs in range(4):
            loads.append('buffer_load_dword v%d, v26, s[16:19], s%d offen' % (4 + rs, 20 + rs))
            loads.append('buffer_load_dword v%d, v26, s[16:19], s%d offen offset:2560' % (8 + rs, 20 + rs))
            loads.append('buffer_load_dword v%d, v27, s[16:19], s%d offen' % (12 + rs, 20 + rs))
            loads.append('buffer_load_dword v%d, v27, s[16:19], s%d offen offset:2560' % (16 + rs, 20 + rs))
        self.poll(loads, list(range(4, 20)), 20, sleep=8)
        for n, dst in enumerate((31, 32, 33, 34)):
            b = 4 + 4 * n
            a('v_add_f32 v%d, v%d, v%d\nv_add_f32 v%d, v%d, v%d\nv_add_f32 v%d, v%d, v%d' % (b, b, b + 1, b + 2, b + 2, b + 3, dst, b, b + 2))
            self.rnd(dst, dst)
        a('''
        v_add_f32 v33, 1.0, v33
        v_cvt_pk_bf16_f32 v33, v33, v32
        v_min_u32 v33, -2, v33
        v_lshlrev_b32 v30, 16, v30
        s_mul_i32 s21, s4, 2560
        s_lshl_b32 s22, s5, 7
        s_add_u32 s21, s21, s22
        s_add_u32 s21, s21, %d
        ''' % OFF_C)
        self.store_intra(['buffer_store_dword v33, v38, s[16:19], s21 offen'])
        if self.o['near'] == 1:
            a('''
            s_lshl_b32 s20, s5, 14
            s_add_u32 s20, s20, s67
            s_lshl_b32 s21, s4, 7
            s_add_u32 s20, s20, s21
            s_add_u32 s20, s20, 6144
            s_add_u32 s21, s20, 8192
            s_mov_b32 s22, -1
            s_mov_b32 s23, -1
            s_mov_b32 s95, 0
            L_A2_ms:
            s_memtime s[24:25]
            s_waitcnt lgkmcnt(0)
            s_load_dword s32, s[74:75], s20 glc
            s_waitcnt lgkmcnt(0)
            s_memtime s[26:27]
            s_waitcnt lgkmcnt(0)
            s_load_dword s32, s[74:75], s21 glc
            s_waitcnt lgkmcnt(0)
            s_memtime s[34:35]
            s_waitcnt lgkmcnt(0)
            s_sub_u32 s24, s26, s24
            s_sub_u32 s26, s34, s26
            s_min_u32 s22, s22, s24
            s_min_u32 s23, s23, s26
            s_add_u32 s95, s95, 1
            s_cmp_lt_u32 s95, %d
            s_cbranch_scc1 L_A2_ms
            s_cmp_lt_u32 s23, s22
            s_cselect_b32 s68, 8192, 0
            ''' % self.o['nms'])
        elif self.o['near'] == 2:
            a('s_mov_b32 s68, 8192')
        self.stl_a2 = list(self.stlist)
        a('s_branch L_TAIL')

    def a3_wave(self):
        a = self.a; vm = VM(a); NE = self.o['ne']
        a.label('L_A3')
        self.stamp_begin()
        a('s_setprio 2\ns_barrier')
        self.lds_spin(L_MODE, None, 4, 5, sleep=4)
        a('s_and_b32 s45, s93, 3')
        if self.o['rank']:
            R = self.o['rank']
            per = 160 // R
            self.srd(8, 68, 640 * 7680); self.srd(12, 66, 1280)
            a('''
            s_lshr_b32 s20, s93, 8
            s_cmp_ge_u32 s20, %d
            s_cbranch_scc1 L_A3_nomt
            s_cmp_ge_u32 s5, %d
            s_cbranch_scc1 L_A3_nomt
            s_mul_i32 s20, s20, %d
            s_add_u32 s20, s20, s5
            s_lshr_b32 s21, s20, 2
            s_add_u32 s21, s21, 20
            s_and_b32 s20, s20, 3
            ''' % (R, per, per))
            vm2 = VM(a)
            widx = self.m_tile_loads(vm2)
            self.m_tile_compute(vm2, widx, L_S2, False)
            a.label('L_A3_nomt')
        a('s_cmp_ge_u32 s5, 30\ns_cbranch_scc1 L_end')
        if NE:
            self.roles(); self.tile_bases()
            self.srd(12, 56, 6144 * 1280)
            a('v_lshrrev_b32 v3, 3, v0\nv_and_b32 v4, 7, v0\nv_mul_u32_u24 v2, 1280, v3\nv_lshl_add_u32 v2, v4, 4, v2')
            for t in range(NE):
                vm.throttle(self.o['adepth'])
                a('s_mov_b32 m0, %d\ns_add_u32 s36, s33, %d\nbuffer_load_dwordx4 v2, s[12:15], s36 offen nt lds' % (L_WO + 1024 * t, t * 8 * 1280))
                vm.issue()
            vm.all()
            self.lds_inc(L_ST1, 4, 5)
        self.stamp(19)
        self.stl_a3 = list(self.stlist)

    def nat_gemv(self, n, W, actaddr, lbase, acc, areg):
        a = self.a
        for m in range(n):
            a('ds_read_b128 v[%d:%d], v%d offset:%d' % (areg + 4 * m, areg + 4 * m + 3, actaddr, lbase + 64 * m))
        for m in range(n):
            a('s_waitcnt lgkmcnt(%d)' % (n - 1 - m))
            a('v_mfma_f32_16x16x32_bf16 v[%d:%d], v[%d:%d], v[%d:%d], %s' % (acc, acc + 3, areg + 4 * m, areg + 4 * m + 3, W + 4 * m, W + 4 * m + 3, '0' if m == 0 else 'v[%d:%d]' % (acc, acc + 3)))
        a('s_nop 7\nv_min_u32 v%d, -2, v%d' % (acc, acc))

    def gather24(self, sb):
        a = self.a
        self.poll(['buffer_load_dwordx4 v[%d:%d], v37, s[16:19], s%d offen offset:%d' % (4 + 4 * k, 7 + 4 * k, sb, 256 * k) for k in range(3)], list(range(4, 16)), 20)
        a('''
        v_pk_add_f32 v[4:5], v[4:5], v[8:9]
        v_pk_add_f32 v[6:7], v[6:7], v[10:11]
        v_pk_add_f32 v[4:5], v[4:5], v[12:13]
        v_pk_add_f32 v[6:7], v[6:7], v[14:15]
        ''')
        self.red8([4, 5, 6, 7])

    def tail(self):
        a = self.a; NE = self.o['ne']
        ST1_T = (1 if NE < 32 else 0) + (1 if NE else 0)
        self.tl = []
        a.label('L_TAIL')
        a('s_setprio %d\ns_cmp_ge_u32 s5, 30\ns_cbranch_scc1 L_T_end\ns_sub_u32 s81, s3, 8' % self.o['tp'])
        self.roles()
        self.srd(28, 70, 1280)
        self.red_addrs()
        WO, WG, WD = 40, 72, 88
        self.xbase(67)
        self.pub_off(84, 20, 's81')
        a('s_add_u32 s84, s84, s67\ns_cmp_eq_u32 s81, 2\ns_cselect_b32 s68, s68, 0')
        a('''
        s_lshl_b32 s20, s77, 8
        s_lshl_b32 s21, s81, 6
        s_add_u32 s20, s20, s21
        v_add_u32 v4, s20, v0                    ; R' = 256 rb + 64 a + l
        v_mul_u32_u24 v5, 1366, v4
        v_lshrrev_b32 v5, 18, v5
        v_mul_u32_u24 v5, 5376, v5
        v_lshl_add_u32 v96, v4, 2, v5            ; H1 gather lane offset
        s_mul_i32 s82, s4, 24576
        s_add_u32 s82, s82, %d
        s_add_u32 s83, s82, 4608
        s_lshl_b32 s20, s81, 7
        v_lshl_add_u32 v97, v0, 1, s20           ; L_OB write addr
        v_lshrrev_b32 v98, 4, v0
        v_lshlrev_b32 v98, 4, v98                ; act read addr: 16 g
        s_lshl_b32 s20, s81, 8
        v_add_u32 v99, s20, v98
        s_lshl_b32 s21, s81, 7
        v_add_u32 v100, s21, v98
        v_lshl_add_u32 v101, v0, 2, s20          ; L_H2 write addr
        v_lshl_add_u32 v102, v0, 1, s21          ; L_GU write addr
        v_cmp_gt_u32 vcc, 16, v0
        v_mov_b32 v5, %s
        v_lshlrev_b32 v103, 2, v0
        v_cndmask_b32 v104, v5, v103, vcc        ; result store offset (lanes<16)
        v_lshlrev_b32 v105, 4, v0
        v_lshlrev_b32 v106, 3, v0
        s_lshl_b32 s20, s81, 6
        s_add_u32 s85, s84, %d                   ; B_f publish (copy A)
        s_add_u32 s84, s84, %d                   ; B_x publish (copy A)
        s_add_u32 s53, s84, 8192                 ; copy B
        s_add_u32 s54, s85, 8192
        s_mul_i32 s86, s4, 2560
        s_lshl_b32 s21, s78, 9
        s_add_u32 s87, s86, s21
        s_add_u32 s88, s87, %d                   ; B_c own rows
        s_add_u32 s87, s87, %d                   ; B_h own rows
        s_add_u32 s86, s86, %d                   ; B_h group base
        s_mul_i32 s89, s4, 7680
        s_add_u32 s89, s89, %d
        s_mul_i32 s48, s79, 5
        s_add_u32 s48, s48, s78
        s_mul_i32 s48, s48, 768
        s_lshl_b32 s21, s80, 8
        s_add_u32 s48, s48, s21
        s_add_u32 s48, s48, s20
        s_add_u32 s48, s48, s89                  ; B_g publish
        s_lshl_b32 s49, s77, 8
        s_add_u32 s49, s49, s89                  ; B_g gather (g)
        s_add_u32 s50, s49, 3840                 ; (u)
        s_lshl_b32 s52, s5, 14
        s_add_u32 s52, s52, s67
        s_add_u32 s52, s52, s68                  ; near copy
        s_add_u32 s55, s52, %d                   ; gather24 F base
        s_add_u32 s52, s52, %d                   ; gather24 X base
        s_lshl_b32 s51, s5, 7
        s_add_u32 s51, s51, s86                  ; B_h publish
        s_mov_b32 s66, s60
        s_lshl_b32 s60, s5, 6                    ; out offset
        s_cmp_eq_u32 s81, 2
        s_cselect_b32 s20, 1, 0
        s_cmp_lt_u32 s5, 20
        s_cselect_b32 s21, 1, 0
        s_and_b32 s58, s20, s21                  ; reducer?
        s_and_b32 s21, s5, 7
        s_cmp_eq_u32 s21, s4
        s_cselect_b32 s21, 1, 0
        s_and_b32 s59, s58, s21                  ; final?
        v_lshrrev_b32 v4, 4, v0
        v_bfe_u32 v5, v0, 2, 2
        v_lshl_add_u32 v4, v4, 3, v5
        v_lshlrev_b32 v4, 7, v4
        v_and_b32 v5, 3, v0
        v_lshl_add_u32 v4, v5, 3, v4
        s_lshl_b32 s20, s81, 5
        v_add_u32 v4, s20, v4
        v_add_u32 v107, %d, v4                   ; tr addr (gate/up, down)
        v_add_u32 v114, %d, v4                   ; tr addr (wo)
        v_mov_b32 v115, %d
        v_mov_b32 v21, %d
        v_mov_b32 v22, 1
        ''' % (OFF_O, OOB, OFF_F, OFF_X, OFF_C, OFF_H, OFF_H, OFF_G, OFF_F, OFF_X, L_WG, L_WO, L_ST1, L_CNTO))
        def tr1():
            for m in range(8):
                a('ds_read_b64_tr_b16 v[%d:%d], v114 offset:%d' % (WO + 4 * m, WO + 4 * m + 1, 4096 * m))
                a('ds_read_b64_tr_b16 v[%d:%d], v114 offset:%d' % (WO + 4 * m + 2, WO + 4 * m + 3, 4096 * m + 512))
                if m == 3: a('s_waitcnt lgkmcnt(0)')
        def tr2():
            for m in range(4):
                a('ds_read_b64_tr_b16 v[%d:%d], v107 offset:%d' % (WG + 4 * m, WG + 4 * m + 1, 4096 * m))
                a('ds_read_b64_tr_b16 v[%d:%d], v107 offset:%d' % (WG + 4 * m + 2, WG + 4 * m + 3, 4096 * m + 512))
            for m in range(2):
                a('ds_read_b64_tr_b16 v[%d:%d], v107 offset:%d' % (WD + 4 * m, WD + 4 * m + 1, 16384 + 4096 * m))
                a('ds_read_b64_tr_b16 v[%d:%d], v107 offset:%d' % (WD + 4 * m + 2, WD + 4 * m + 3, 16384 + 4096 * m + 512))
        self.poll(['buffer_load_dwordx2 v[108:109], v106, s[16:19], s88 offen'], [108, 109], 20, sleep=8)
        a('''
        v_lshlrev_b32 v110, 16, v108
        v_and_b32 v111, 0xffff0000, v108
        v_lshlrev_b32 v112, 16, v109
        v_and_b32 v113, 0xffff0000, v109
        ''')
        if self.o['stg']:
            assert NE == 32
            a('s_cmp_lg_u32 s81, 3\ns_cbranch_scc1 L_T_nodma')
            self.tile_bases()
            a('''
            s_cmp_eq_u32 s79, 0
            s_cselect_b32 s24, s66, s62
            s_cselect_b32 s25, s61, s63
            s_mov_b32 s26, %d
            s_mov_b32 s27, 0x20000
            ''' % (640 * 3072))
            self.srd(8, 64, 1536 * 1280)
            a('''
            v_lshrrev_b32 v6, 3, v0
            v_and_b32 v7, 7, v0
            v_mul_u32_u24 v1, 3072, v6
            v_lshl_add_u32 v1, v7, 4, v1
            v_mul_u32_u24 v2, 1280, v6
            v_lshl_add_u32 v2, v7, 4, v2
            ''')
            self.lds_spin(L_CNTIS, 8, 8, 9, sleep=1)
            for t in range(16):
                a('s_mov_b32 m0, %d\ns_add_u32 s36, s34, %d\nbuffer_load_dwordx4 v1, s[24:27], s36 offen nt lds' % (L_WG + 1024 * t, t * 8 * 3072))
            for t in range(8):
                a('s_mov_b32 m0, %d\ns_add_u32 s36, s35, %d\nbuffer_load_dwordx4 v2, s[8:11], s36 offen nt lds' % (L_WD + 1024 * t, t * 8 * 1280))
            a.label('L_T_nodma')
        self.lds_spin(L_CNTPV, 8, 4, 5, sleep=1)
        h1loads = ['buffer_load_dword v%d, v96, s[16:19], s%d offen offset:%d' % (4 + jj, 82 if jj < 6 else 83, (jj if jj < 6 else jj - 6) * 768) for jj in range(8)]
        def h1post():
            a('''
            v_pk_add_f32 v[4:5], v[4:5], v[6:7]
            v_pk_add_f32 v[8:9], v[8:9], v[10:11]
            v_pk_add_f32 v[4:5], v[4:5], v[8:9]
            v_add_f32 v4, v4, v5
            v_cvt_pk_bf16_f32 v4, v4, v4
            ds_write_b16 v97, v4 offset:%d
            s_waitcnt lgkmcnt(0)
            s_mov_b64 exec, 1
            ds_add_u32 v21, v22
            s_mov_b64 exec, -1
            ''' % L_OB)
        a('s_mov_b32 s95, 0')
        a.label('L_T_pa')
        for i in h1loads: a(i + ' sc1')
        a('ds_read_b32 v12, v115\ns_waitcnt vmcnt(0) lgkmcnt(0)\nv_readfirstlane_b32 s93, v12')
        self.chk(list(range(4, 12)), 20)
        a('''
        s_cbranch_vccz L_T_px
        s_cmp_eq_u32 s93, %d
        s_cbranch_scc1 L_T_py
        s_add_u32 s95, s95, 1
        s_cmp_lt_u32 s95, 0x10000
        s_cbranch_scc1 L_T_pa
        L_T_px:
        ''' % ST1_T)
        h1post()
        self.lds_spin(L_ST1, ST1_T, 6, 5, sleep=0)
        tr1()
        a('s_branch L_T_pz')
        a.label('L_T_py')
        tr1()
        self.poll(h1loads, list(range(4, 12)), 20)
        h1post()
        a.label('L_T_pz')
        self.tstamp(5)
        self.lds_spin(L_CNTO, 4, 6, 5, sleep=0)
        self.nat_gemv(8, WO, 98, L_OB, 4, 116)
        xp = self.o['xpol'].replace('+', ' ')
        a('buffer_store_dword v4, v104, s[16:19], s84 offen %s\nbuffer_store_dword v4, v104, s[16:19], s53 offen %s' % (xp, xp))
        self.tstamp(6)
        if not self.o['stg']: self.lds_spin(L_ST2, 1, 6, 5, sleep=0)
        tr2()
        a('s_cmp_eq_u32 s58, 0\ns_cbranch_scc1 L_T_h2c')
        self.gather24(52)
        self.rnd(4, 4)
        a('v_mul_f32 v4, v31, v4')
        self.rnd(4, 4)
        a('v_add_f32 v4, v30, v4')
        self.rnd(32, 4)
        self.store_intra(['buffer_store_dword v32, v38, s[16:19], s51 offen'])
        self.tstamp(8)
        a.label('L_T_h2c')
        self.poll(['buffer_load_dwordx4 v[4:7], v105, s[16:19], s86 offen',
                   'buffer_load_dwordx4 v[8:11], v105, s[16:19], s86 offen offset:1024',
                   'buffer_load_dwordx2 v[12:13], v106, s[16:19], s86 offen offset:2048',
                   'buffer_load_dwordx2 v[14:15], v106, s[16:19], s87 offen'], list(range(4, 16)), 20)
        self.tstamp(9)
        a('v_readfirstlane_b32 s20, v4\ns_nop 1')
        for k in range(10): a('v_subrev_f32 v%d, s20, v%d' % (4 + k, 4 + k))
        a('''
        v_pk_mul_f32 v[16:17], v[4:5], v[4:5]
        v_pk_add_f32 v[18:19], v[4:5], v[6:7]
        v_pk_fma_f32 v[16:17], v[6:7], v[6:7], v[16:17]
        v_pk_add_f32 v[18:19], v[18:19], v[8:9]
        v_pk_fma_f32 v[16:17], v[8:9], v[8:9], v[16:17]
        v_pk_add_f32 v[18:19], v[18:19], v[10:11]
        v_pk_fma_f32 v[16:17], v[10:11], v[10:11], v[16:17]
        v_pk_add_f32 v[18:19], v[18:19], v[12:13]
        v_pk_fma_f32 v[16:17], v[12:13], v[12:13], v[16:17]
        v_add_f32 v18, v18, v19
        v_add_f32 v16, v16, v17
        s_nop 1
        v_permlane32_swap_b32 v18, v16
        v_add_f32 v18, v18, v16
        ''')
        for r in (8, 4, 2, 1): a('s_nop 1\nv_add_f32_dpp v18, v18, v18 row_ror:%d row_mask:0xf bank_mask:0xf' % r)
        a('''
        v_mov_b32 v16, v18
        s_nop 1
        v_permlane16_swap_b32 v18, v16
        v_add_f32 v18, v18, v16
        v_mul_f32 v18, %s, v18
        s_nop 0
        v_readlane_b32 s21, v18, 0
        v_readlane_b32 s22, v18, 32
        s_nop 1
        v_mov_b32 v16, s21
        v_mov_b32 v17, s22
        v_fma_f32 v17, -v16, v16, v17
        v_max_f32 v17, 0, v17
        v_add_f32 v16, s20, v16
        ''' % f32(1.0 / 640))
        self.rnd(17, 17)
        a('v_add_f32 v17, %s, v17' % f32(1e-5))
        self.rnd(17, 17)
        a('v_sqrt_f32 v17, v17')
        self.rnd(16, 16)
        self.rnd(17, 17)
        a('''
        v_rcp_f32 v18, v17
        v_sub_f32 v14, v14, v16
        v_sub_f32 v15, v15, v16
        v_cvt_pk_bf16_f32 v19, v14, v15
        v_lshlrev_b32 v14, 16, v19
        v_and_b32 v15, 0xffff0000, v19
        v_mul_f32 v4, v14, v18
        v_mul_f32 v5, v15, v18
        v_fma_f32 v6, -v4, v17, v14
        v_fma_f32 v7, -v5, v17, v15
        v_fma_f32 v14, v6, v18, v4
        v_fma_f32 v15, v7, v18, v5
        v_cvt_pk_bf16_f32 v19, v14, v15
        v_lshlrev_b32 v14, 16, v19
        v_and_b32 v15, 0xffff0000, v19
        v_mul_f32 v14, v14, v110
        v_mul_f32 v15, v15, v112
        v_cvt_pk_bf16_f32 v19, v14, v15
        v_lshlrev_b32 v14, 16, v19
        v_and_b32 v15, 0xffff0000, v19
        v_add_f32 v14, v14, v111
        v_add_f32 v15, v15, v113
        v_cvt_pk_bf16_f32 v19, v14, v15
        ds_write_b32 v101, v19 offset:%d
        s_waitcnt lgkmcnt(0)
        ''' % L_H2)
        self.nat_gemv(4, WG, 99, L_H2, 4, 116)
        self.store_intra(['buffer_store_dword v4, v104, s[16:19], s48 offen'])
        self.tstamp(10)
        loads = []
        for rs in range(5):
            loads.append('buffer_load_dword v%d, v103, s[16:19], s49 offen offset:%d' % (8 + 2 * rs, rs * 768))
            loads.append('buffer_load_dword v%d, v103, s[16:19], s50 offen offset:%d' % (9 + 2 * rs, rs * 768))
        self.poll(loads, list(range(8, 18)), 20)
        a('''
        v_pk_add_f32 v[8:9], v[8:9], v[10:11]
        v_pk_add_f32 v[12:13], v[12:13], v[14:15]
        v_pk_add_f32 v[8:9], v[8:9], v[16:17]
        v_pk_add_f32 v[8:9], v[8:9], v[12:13]
        v_cvt_pk_bf16_f32 v10, v8, v9
        v_lshlrev_b32 v8, 16, v10
        v_and_b32 v9, 0xffff0000, v10
        v_mul_f32 v8, v8, v9
        v_cvt_pk_bf16_f32 v8, v8, v8
        ds_write_b16 v102, v8 offset:%d
        s_waitcnt lgkmcnt(0)
        ''' % L_GU)
        self.nat_gemv(2, WD, 100, L_GU, 4, 116)
        a('buffer_store_dword v4, v104, s[16:19], s85 offen %s\nbuffer_store_dword v4, v104, s[16:19], s54 offen %s' % (xp, xp))
        self.tstamp(11)
        a('s_cmp_eq_u32 s59, 0\ns_cbranch_scc1 L_T_end')
        self.gather24(55)
        self.rnd(4, 4)
        a('v_mul_f32 v4, v34, v4')
        self.rnd(4, 4)
        a('v_add_f32 v4, v32, v4\nv_cvt_pk_bf16_f32 v4, v4, v4\nbuffer_store_short v4, v39, s[28:31], s60 offen')
        self.tstamp(12)
        a.label('L_T_end')
        if self.stamps:
            for w, lst in ((8, self.stl_a0), (9, self.stl_a1), (10, self.stl_a2 + self.tl), (11, self.stl_a3)):
                l = a.newlabel('SFL')
                a('s_cmp_lg_u32 s3, %d\ns_cbranch_scc1 %s' % (w, l))
                self.stamp_flush(lst)
                a('s_endpgm')
                a.label(l)
        a.label('L_end')
        a('s_endpgm')

    def build(self):
        self.cold = []
        self.prologue(); self.s_wave(); self.a0_wave(); self.a1_wave(); self.a2_wave(); self.a3_wave(); self.tail()
        for lf, ins, lj in self.cold:
            self.a.label(lf)
            for i in ins: self.a(i)
            self.a('s_branch %s' % lj)
        txt = self.a.text()
        out = []; sec = ''
        for l in txt.split('\n'):
            if '================' in l: sec = l
            if ' nt' in l and 'buffer_load' in l:
                if 'S wave' in sec and 'lds' not in l:
                    pol = self.o['kpol'] if 's[8:11]' in l else self.o['vpol']
                else:
                    pol = self.o['wpol']
                pol = pol.replace('+', ' ').replace('def', '')
                l = l.replace(' nt', (' ' + pol) if pol else '')
            out.append(l)
        s = wrap('\n'.join(out), 256, 768, LDS_BYTES, 168)
        return s.replace('  .amdhsa_system_sgpr_workgroup_id_x 1\n', '  .amdhsa_system_sgpr_workgroup_id_x 1\n  .amdhsa_float_denorm_mode_32 3\n')

if __name__ == '__main__':
    import argparse
    ap = argparse.ArgumentParser()
    ap.add_argument('-o', default='k.s'); ap.add_argument('--stamps', action='store_true'); ap.add_argument('--opt', default='')
    x = ap.parse_args()
    kw = {}
    for kv in filter(None, x.opt.split(',')):
        k, v = kv.split('=')
        try: v = int(v)
        except ValueError: pass
        kw[k] = v
    open(x.o, 'w').write(Gen(stamps=x.stamps, **kw).build())
```

```python
import sys, struct
from asmgen import *

OFF_MOD = 0x0
OFF_Q   = 0x10000
OFF_ST  = 0x40000
OFF_O   = 0x50000
OFF_H   = 0x90000
OFF_C   = 0x98000
OFF_G   = 0xA0000
OFF_MB  = 0xC0000
OFF_X   = 0x100000
OFF_F   = 0x120000
OFF_STAMP = 128 << 20
WS_BYTES = 268435456
OOB = 0x7ffffff0
L_FLAGQ, L_CNTST, L_FLAGP, L_MODE, L_INIT, L_CNTPV, L_CNTO, L_CNTSL, L_ST1, L_ST2, L_CNTIS = [4 * k for k in range(11)]
L_Q = 256; L_STAT = 1024; L_GSTAT = 1152; L_P = 2048; L_S = 4096; L_H = 5120
L_S2 = 1280; L_OSL = 6144; L_OB = 14336; L_H2 = 14848; L_GU = 15872
L_WO = 16384; L_WG = L_WO + 32768; L_WD = L_WO + 49152
LDS_BYTES = L_WO + 57344

def f32(x): return '0x%08x' % struct.unpack('<I', struct.pack('<f', x))[0]
LOG2E = 1.4426950408889634
L2E_HI = struct.unpack('<f', struct.pack('<f', LOG2E))[0]
L2E_LO = LOG2E - L2E_HI
LN2 = 0.6931471805599453

class VM:
    def __init__(self, a): self.a = a; self.n = 0; self.done = 0
    def issue(self): self.n += 1; return self.n - 1
    def wait(self, idx):
        if idx < self.done: return
        cnt = self.n - 1 - idx
        assert cnt <= 63
        self.a('s_waitcnt vmcnt(%d)' % cnt); self.done = idx + 1
    def throttle(self, depth):
        if self.n - self.done >= depth: self.wait(self.n - depth)
    def all(self):
        if self.done < self.n: self.a('s_waitcnt vmcnt(0)'); self.done = self.n

class Gen:
    STPOOL = [37, 38, 39, 40, 41, 42, 43, 44, 47, 98, 99, 100, 101]
    def __init__(self, stamps=False, **kw):
        self.a = Asm(); self.stamps = stamps
        self.o = dict(ilv=0, kpol='nt', vpol='nt', wpol='nt', depth=3, qk_min=3, sig=22, rank=0, sprio=1, a1p=0, a1d=60, stg=1, adepth=8, ne=32, pw=4, minst=0, force_slow=0, tp=1)
        self.o.update(kw)

    def srd(self, d, p, size):
        self.a('s_mov_b32 s%d, s%d\ns_mov_b32 s%d, s%d\ns_mov_b32 s%d, %d\ns_mov_b32 s%d, 0x20000' % (d, p, d + 1, p + 1, d + 2, size, d + 3))
    def stamp_begin(self):
        self.stlist = []
        if self.stamps:
            for r in self.STPOOL: self.a('s_mov_b32 s%d, 0' % r)
    def stamp(self, idx):
        if not self.stamps: return
        r = self.STPOOL[len(self.stlist)]; self.stlist.append((idx, r))
        self.a('s_memrealtime s[90:91]\ns_waitcnt lgkmcnt(0)\ns_mov_b32 s%d, s90' % r)
    def tstamp(self, idx):
        if not self.stamps or (self.o['minst'] and idx != 12): return
        r = self.STPOOL[5 + len(self.tl)]; self.tl.append((idx, r))
        self.a('s_memrealtime s[90:91]\ns_waitcnt lgkmcnt(0)\ns_mov_b32 s%d, s90' % r)
    def stamp_flush(self, lst):
        if not self.stamps: return
        a = self.a
        a('s_lshl_b32 s92, s2, 8\ns_add_u32 s92, s92, %d\nv_mov_b32 v1, 0\nv_mov_b32 v3, 0\ns_mov_b64 exec, 1' % OFF_STAMP)
        for idx, r in lst:
            a('v_mov_b32 v2, s%d\nbuffer_store_dwordx2 v[2:3], v1, s[16:19], s92 offen offset:%d\ns_nop 1' % (r, idx * 8))
    def rnd(self, dst, src):
        self.a('v_cvt_pk_bf16_f32 v%d, v%d, v%d\nv_and_b32 v%d, 0xffff0000, v%d' % (dst, src, src, dst, dst))
    def wave_reduce(self, v, t, op):
        a = self.a
        for r in (8, 4, 2, 1):
            a('s_nop 1\nv_%s_f32_dpp v%d, v%d, v%d row_ror:%d row_mask:0xf bank_mask:0xf' % (op, v, v, v, r))
        for sw in ('16', '32'):
            a('v_mov_b32 v%d, v%d\ns_nop 1\nv_permlane%s_swap_b32 v%d, v%d\nv_%s_f32 v%d, v%d, v%d' % (t, v, sw, v, t, op, v, v, t))
    def red8(self, r):
        self.a('''
        s_nop 1
        v_permlane32_swap_b32 v%d, v%d
        v_permlane32_swap_b32 v%d, v%d
        v_add_f32 v%d, v%d, v%d
        v_add_f32 v%d, v%d, v%d
        s_nop 1
        v_permlane16_swap_b32 v%d, v%d
        v_add_f32 v%d, v%d, v%d
        s_nop 1
        v_add_f32_dpp v%d, v%d, v%d row_ror:8 row_mask:0xf bank_mask:0xf
        ''' % (r[0], r[1], r[2], r[3], r[0], r[0], r[1], r[2], r[2], r[3], r[0], r[2], r[0], r[0], r[2], r[0], r[0], r[0]))
    def exp(self, dst, x, t1, t2):
        self.a('''
        v_mul_f32 v%d, %s, v%d
        v_fma_f32 v%d, v%d, s94, -v%d
        v_fmac_f32 v%d, %s, v%d
        v_exp_f32 v%d, v%d
        v_mul_f32 v%d, %s, v%d
        v_fma_f32 v%d, v%d, v%d, v%d
        ''' % (t1, f32(L2E_HI), x, t2, x, t1, t2, f32(L2E_LO), x, t1, t1, t2, f32(LN2), t2, dst, t1, t2, t1))
    def div(self, dst, n, d, t1, t2):
        self.a('''
        v_rcp_f32 v%d, v%d
        s_nop 0
        v_mul_f32 v%d, v%d, v%d
        v_fma_f32 v%d, -v%d, v%d, v%d
        v_fma_f32 v%d, v%d, v%d, v%d
        ''' % (t1, d, t2, n, t1, dst, t2, d, n, dst, dst, t1, t2))
    def lds_spin(self, addr, val, vt, va, sleep=1):
        a = self.a; l = a.newlabel('SP'); l2 = a.newlabel('SPD')
        a('v_mov_b32 v%d, %d\ns_mov_b32 s95, 0' % (va, addr))
        a.label(l)
        a('ds_read_b32 v%d, v%d\ns_waitcnt lgkmcnt(0)\nv_readfirstlane_b32 s93, v%d' % (vt, va, vt))
        a('s_cmp_lg_u32 s93, 0' if val is None else 's_cmp_eq_u32 s93, %d' % val)
        a('s_cbranch_scc1 %s' % l2)
        if sleep: a('s_sleep %d' % sleep)
        a('s_add_u32 s95, s95, 1\ns_cmp_lt_u32 s95, 0x40000\ns_cbranch_scc1 %s' % l)
        a.label(l2)
    def lds_set(self, addr, val, vt, va):
        self.a('v_mov_b32 v%d, %d\nv_mov_b32 v%d, %s\nds_write_b32 v%d, v%d' % (va, addr, vt, val, va, vt))
    def lds_inc(self, addr, vt, va):
        self.a('v_mov_b32 v%d, %d\nv_mov_b32 v%d, 1\ns_mov_b64 exec, 1\nds_add_u32 v%d, v%d\ns_mov_b64 exec, -1' % (va, addr, vt, va, vt))
    def store_intra(self, instrs):
        a = self.a; lf = a.newlabel('SF'); lj = a.newlabel('SJ')
        a('s_cmp_eq_u32 s45, 1\ns_cbranch_scc0 %s' % lf)
        for i in instrs: a(i)
        a.label(lj)
        self.cold.append((lf, [i + ' sc1' for i in instrs], lj))
    def chk(self, regs, vt):
        a = self.a; rs = list(regs)
        if len(rs) == 1:
            a('v_cmp_eq_u32 vcc, -1, v%d' % rs[0]); return
        if len(rs) == 2:
            a('v_max_u32 v%d, v%d, v%d' % (vt, rs[0], rs[1])); rest = []
        else:
            a('v_max3_u32 v%d, v%d, v%d, v%d' % (vt, rs[0], rs[1], rs[2])); rest = rs[3:]
        while rest:
            if len(rest) == 1:
                a('v_max_u32 v%d, v%d, v%d' % (vt, vt, rest[0])); rest = []
            else:
                a('v_max3_u32 v%d, v%d, v%d, v%d' % (vt, vt, rest[0], rest[1])); rest = rest[2:]
        a('v_cmp_eq_u32 vcc, -1, v%d' % vt)
    def poll(self, loads, regs, vt, sleep=0):
        a = self.a; l = a.newlabel('PL'); l2 = a.newlabel('PD')
        a('s_mov_b32 s95, 0')
        a.label(l)
        for i in loads: a(i + ' sc1')
        a('s_waitcnt vmcnt(0)')
        self.chk(regs, vt)
        a('s_cbranch_vccz %s' % l2)
        if sleep: a('s_sleep %d' % sleep)
        a('s_add_u32 s95, s95, 1\ns_cmp_lt_u32 s95, 0x10000\ns_cbranch_scc1 %s' % l)
        a.label(l2)
    def sel_masks(self, m, t1, t2):
        a = self.a
        a('''
        v_and_b32 v%d, 1, v0
        v_lshlrev_b32 v%d, 4, v%d
        v_mov_b32 v%d, 0xffff
        v_lshlrev_b32 v%d, v%d, v%d
        v_bfe_u32 v%d, v0, 1, 2
        ''' % (t1, t1, t1, t2, t1, t1, t2, t2))
        for k in range(4):
            a('v_cmp_eq_u32 vcc, %d, v%d\ns_nop 1\nv_cndmask_b32 v%d, 0, v%d, vcc' % (k, t2, m + k, t1))
    def pv_addr(self, dst, t1, base):
        self.a('''
        v_lshrrev_b32 v%d, 4, v0
        v_bfe_u32 v%d, v0, 3, 1
        v_lshl_add_u32 v%d, v%d, 2, v%d
        v_lshlrev_b32 v%d, 2, v%d
        v_add_u32 v%d, %s, v%d
        ''' % (dst, t1, dst, t1, dst, dst, dst, dst, base, dst))
    def vshape_offsets(self, v1, v3, t1, t2, rs):
        self.a('''
        v_lshrrev_b32 v%d, 4, v0
        v_and_b32 v%d, 15, v0
        v_mul_u32_u24 v%d, %d, v%d
        v_lshl_add_u32 v%d, v%d, 4, v%d
        v_bfe_u32 v%d, v0, 3, 1
        v_lshl_add_u32 v%d, v%d, 2, v%d
        v_mul_u32_u24 v%d, %d, v%d
        v_and_b32 v%d, 7, v0
        v_lshl_add_u32 v%d, v%d, 4, v%d
        v_add_u32 v%d, 256, v%d
        ''' % (t1, t2, v1, rs, t1, v1, t2, v1, t2, v3, t2, t1, v3, rs, v3, t2, v3, t2, v3, v3, v3))
    def vshape_off(self, voff, t1, t2):
        self.a('''
        v_and_b32 v%d, 15, v0
        v_lshrrev_b32 v%d, 4, v0
        v_lshlrev_b32 v%d, 5, v%d
        v_lshl_add_u32 v%d, v%d, 4, v%d
        v_add_u32 v%d, %d, v%d
        v_cmp_gt_u32 vcc, 32, v0
        v_mov_b32 v%d, %s
        s_nop 0
        v_cndmask_b32 v%d, v%d, v%d, vcc
        v_and_b32 v%d, 40, v0
        v_cmp_eq_u32 vcc, 32, v%d
        s_nop 1
        v_cndmask_b32 v%d, v%d, v%d, vcc
        ''' % (t1, t2, voff, t1, voff, t2, voff, t1, 224, voff, t2, OOB, voff, t1, voff, t1, t1, voff, voff, t2))
    def vshape_combine(self, d1, d2, d3, clampit=True):
        a = self.a
        for r in range(4): a('v_permlane32_swap_b32 v%d, v%d' % (d2 + r, d3 + r))
        for r in range(4): a('v_add_f32 v%d, v%d, v%d' % (d1 + r, d1 + r, d3 + r))
        for r in range(4): a('v_add_f32_dpp v%d, v%d, v%d row_ror:8 row_mask:0xc bank_mask:0xf' % (d1 + r, d2 + r, d3 + r))
        if clampit:
            for r in range(4): a('v_min_u32 v%d, -2, v%d' % (d1 + r, d1 + r))
    def roles(self):
        self.a('''
        s_mul_i32 s77, s5, 26
        s_lshr_b32 s77, s77, 8
        s_mul_i32 s76, s77, 10
        s_sub_u32 s76, s5, s76
        s_mul_i32 s80, s5, 52
        s_lshr_b32 s80, s80, 8
        s_mul_i32 s78, s80, 5
        s_sub_u32 s78, s5, s78
        s_and_b32 s79, s80, 1
        s_lshr_b32 s80, s80, 1
        ''')
    def tile_bases(self):
        self.a('''
        s_mul_i32 s33, s4, %d
        s_mul_i32 s36, s77, %d
        s_add_u32 s33, s33, s36
        s_lshl_b32 s36, s76, 7
        s_add_u32 s33, s33, s36
        s_mul_i32 s34, s78, %d
        s_mul_i32 s35, s4, 384
        s_add_u32 s34, s34, s35
        s_lshl_b32 s35, s80, 7
        s_add_u32 s34, s34, s35
        s_mul_i32 s35, s4, %d
        s_mul_i32 s36, s77, %d
        s_add_u32 s35, s35, s36
        s_lshl_b32 s36, s76, 7
        s_add_u32 s35, s35, s36
        s_cmp_ge_u32 s5, 30
        s_cselect_b32 s33, 0x40000000, s33
        s_cselect_b32 s34, 0x40000000, s34
        s_cselect_b32 s35, 0x40000000, s35
        ''' % (768 * 1280, 256 * 1280, 128 * 3072, 192 * 1280, 64 * 1280))
    def red_addrs(self):
        self.a('''
        v_and_b32 v24, 7, v0
        v_lshlrev_b32 v24, 2, v24
        v_bfe_u32 v25, v0, 4, 1
        v_lshl_add_u32 v24, v25, 1, v24
        v_lshrrev_b32 v25, 5, v0
        v_add_u32 v24, v24, v25                  ; col in block = 4c + PI[q]
        v_and_b32 v27, 8, v0
        v_cmp_eq_u32 vcc, 0, v27
        v_mov_b32 v27, %s
        v_lshlrev_b32 v38, 2, v24
        v_cndmask_b32 v38, v27, v38, vcc         ; line store offset (dword)
        v_lshlrev_b32 v39, 1, v24
        v_cndmask_b32 v39, v27, v39, vcc         ; out store offset (2B)
        v_lshrrev_b32 v37, 3, v0
        v_mul_u32_u24 v37, 15360, v37
        v_and_b32 v25, 3, v0
        v_lshl_add_u32 v37, v25, 4, v37
        v_bfe_u32 v25, v0, 2, 1
        v_lshl_add_u32 v37, v25, 7, v37          ; gather24 lane offset
        ''' % OOB)
    def mbpoll(self, word, sleep=0):
        a = self.a; l = a.newlabel('MB'); l2 = a.newlabel('MBD')
        a('s_lshl_b32 s20, s6, 7\ns_add_u32 s20, s20, %d\ns_mov_b32 s95, 0' % (OFF_MB + 4 * word))
        a.label(l)
        a('s_load_dword s33, s[74:75], s20 glc\ns_waitcnt lgkmcnt(0)\ns_cmp_lg_u32 s33, -1\ns_cbranch_scc1 %s' % l2)
        if sleep: a('s_sleep %d' % sleep)
        a('s_add_u32 s95, s95, 1\ns_cmp_lt_u32 s95, 0x10000\ns_cbranch_scc1 %s' % l)
        a.label(l2)

    def prologue(self):
        a = self.a
        a('''
        s_cmp_ge_u32 s2, 256
        s_cbranch_scc1 L_end
        s_load_dwordx16 s[48:63], s[0:1], 0
        s_load_dwordx8 s[64:71], s[0:1], 64
        s_load_dwordx4 s[72:75], s[0:1], 96
        v_lshrrev_b32 v1, 6, v0
        v_and_b32 v0, 63, v0
        v_readfirstlane_b32 s3, v1
        s_and_b32 s4, s2, 7
        s_lshr_b32 s5, s2, 3
        s_lshl_b32 s6, s4, 5
        s_add_u32 s6, s6, s5
        s_lshr_b32 s7, s6, 3
        s_and_b32 s46, s6, 7
        s_mov_b32 s94, %s
        s_mov_b32 s45, 0
        s_waitcnt lgkmcnt(0)
        ''' % f32(L2E_HI))
        self.srd(16, 74, WS_BYTES)
        a('''
        s_cmp_eq_u32 s3, 8
        s_cbranch_scc1 L_A0
        s_cmp_eq_u32 s3, 9
        s_cbranch_scc1 L_A1
        s_cmp_eq_u32 s3, 10
        s_cbranch_scc1 L_A2
        s_cmp_eq_u32 s3, 11
        s_cbranch_scc1 L_A3
        ''')

    def s_wave(self):
        a = self.a; vm = VM(a); D = self.o['depth']; NE = self.o['ne']
        self.stamp_begin(); self.stamp(0)
        self.srd(8, 50, 50331648); self.srd(12, 52, 50331648)
        if self.o['sprio']:
            a('s_cmp_lt_u32 s3, 4\ns_cbranch_scc1 L_S_np\ns_setprio 1')
            a.label('L_S_np')
        a('''
        s_mul_i32 s20, s6, 196608
        s_mul_i32 s21, s3, %d
        s_add_u32 s20, s20, s21
        v_and_b32 v4, 7, v0
        v_mul_u32_u24 v1, 384, v4
        v_bfe_u32 v4, v0, 3, 1
        v_lshl_add_u32 v1, v4, 6, v1
        v_lshrrev_b32 v4, 4, v0
        v_lshl_add_u32 v1, v4, 4, v1
        ''' % (3072 if self.o['ilv'] else 24576))
        GS = 24576 if self.o['ilv'] else 3072
        KB = 28; VF = 124; NF = 11
        kreg = lambda t, s: KB + (t * 3 + s) * 4
        kidx = {}
        for t in range(8):
            a('s_add_u32 s21, s20, %d' % (t * GS))
            for s in range(3):
                vm.throttle(D)
                a('buffer_load_dwordx4 v[%d:%d], v1, s[8:11], s21 offen offset:%d nt' % (kreg(t, s), kreg(t, s) + 3, s * 128))
                kidx[(t, s)] = vm.issue()
                if vm.n == min(D, 4):
                    self.vshape_offsets(2, 3, 4, 5, 384)
                    a('s_barrier')
        vtiles = [(t, ty) for t in range(8) for ty in range(3)]
        vreg = {tt: (VF + 4 * n if n < NF else KB + 4 * (n - NF)) for n, tt in enumerate(vtiles)}
        vidx = {}
        def issue_v(n):
            t, ty = vtiles[n]
            vm.throttle(D)
            a('s_add_u32 s21, s20, %d' % (t * GS))
            r = vreg[(t, ty)]
            if ty == 0: a('buffer_load_dwordx4 v[%d:%d], v2, s[12:15], s21 offen nt' % (r, r + 3))
            elif ty == 1: a('buffer_load_dwordx4 v[%d:%d], v2, s[12:15], s21 offen offset:1536 nt' % (r, r + 3))
            else: a('buffer_load_dwordx4 v[%d:%d], v3, s[12:15], s21 offen nt' % (r, r + 3))
            vidx[(t, ty)] = vm.issue()
        P = 11
        QMIN = max(self.o['qk_min'], D)
        a('s_lshr_b32 s97, s3, 8\nv_mov_b32 v25, %d' % L_FLAGQ)
        for n in range(P):
            issue_v(n)
            if n + 1 >= QMIN and n + 1 < P:
                assert vm.done >= 24
                l = a.newlabel('QS')
                a('''
                s_cmp_lg_u32 s97, 0
                s_cbranch_scc1 %s
                ds_read_b32 v24, v25
                s_waitcnt lgkmcnt(0)
                v_readfirstlane_b32 s93, v24
                s_cmp_eq_u32 s93, 0
                s_cbranch_scc1 %s
                s_call_b64 s[30:31], L_QK
                ''' % (l, l))
                a.label(l)
        self.stamp(17)
        a('s_cmp_lg_u32 s97, 0\ns_cbranch_scc1 L_QK_done')
        self.lds_spin(L_FLAGQ, None, 24, 25, sleep=2)
        a('s_call_b64 s[30:31], L_QK\ns_branch L_QK_done')
        a.label('L_QK')
        a('''
        v_and_b32 v24, 1, v0
        v_lshrrev_b32 v25, 4, v0
        v_lshl_add_u32 v24, v24, 2, v25
        v_lshlrev_b32 v24, 4, v24
        ds_read_b128 v[4:7], v24 offset:%d
        ds_read_b128 v[8:11], v24 offset:%d
        ds_read_b128 v[12:15], v24 offset:%d
        s_waitcnt lgkmcnt(0)
        ''' % (L_Q, L_Q + 128, L_Q + 256))
        vS = 24
        def pack(t):
            acc = 16 + 4 * (t & 1)
            if t % 2 == 0: a('v_add_f32_dpp v%d, v%d, v%d row_ror:8 row_mask:0x%x bank_mask:0x3' % (vS, acc + 1, acc, 1 << (t // 2)))
            else: a('v_add_f32_dpp v%d, v%d, v%d row_ror:8 row_mask:0x%x bank_mask:0xc' % (vS, acc, acc + 1, 1 << (t // 2)))
        for t in range(8):
            acc = 16 + 4 * (t & 1)
            vm.wait(kidx[(t, 2)])
            for s in range(3):
                c = '0' if s == 0 else 'v[%d:%d]' % (acc, acc + 3)
                a('v_mfma_f32_16x16x32_bf16 v[%d:%d], v[%d:%d], v[%d:%d], %s' % (acc, acc + 3, 4 + 4 * s, 7 + 4 * s, kreg(t, s), kreg(t, s) + 3, c))
            if t >= 1:
                a('s_nop 4'); pack(t - 1); a('s_nop 2')
        a('s_nop 7'); pack(7); a('s_nop 0')
        if not self.o.get('skip_sc1'): self.rnd(vS, vS)
        a('v_mul_f32 v%d, %s, v%d' % (vS, f32(192 ** -0.5), vS))
        if not self.o.get('skip_sc2'): self.rnd(vS, vS)
        a('v_mov_b32 v16, v%d' % vS)
        self.wave_reduce(16, 17, 'max')
        a('v_sub_f32 v18, v%d, v16\nv_max_f32 v18, %s, v18' % (vS, f32(-200.0)))
        self.exp(17, 18, 19, 20)
        self.wave_reduce(17, 18, 'add')
        a('''
        s_lshl_b32 s21, s3, 3
        s_add_u32 s21, s21, %d
        v_mov_b32 v18, s21
        ds_write_b64 v18, v[16:17]
        s_waitcnt lgkmcnt(0)
        ''' % L_STAT)
        self.lds_inc(L_CNTST, 19, 18)
        self.stamp(15)
        a('s_or_b32 s97, s3, 256\ns_setpc_b64 s[30:31]')
        a.label('L_QK_done')
        for n in range(P, 24):
            issue_v(n)
            if n == self.o['sig']: self.lds_inc(L_CNTIS, 5, 4)
        self.sel_masks(16, 25, 26)
        a('s_lshl_b32 s22, s3, 8\ns_add_u32 s22, s22, %d' % L_P)
        self.pv_addr(1, 25, 's22')
        self.stamp(18)
        self.lds_spin(L_FLAGP, None, 25, 26, sleep=2)
        a('''
        v_mov_b32 v25, %d
        ds_read_b64 v[26:27], v25
        v_mov_b32 v25, %d
        ds_read_b32 v25, v25
        v_lshlrev_b32 v2, 2, v0
        v_add_u32 v2, s22, v2
        s_waitcnt lgkmcnt(0)
        v_readfirstlane_b32 s45, v25
        v_sub_f32 v24, v24, v26
        s_and_b32 s45, s45, 3
        v_max_f32 v24, %s, v24
        ''' % (L_GSTAT, L_MODE, f32(-200.0)))
        self.exp(24, 24, 20, 21)
        self.div(24, 24, 27, 20, 21)
        a('''
        v_cvt_pk_bf16_f32 v24, v24, v24
        ds_write_b32 v2, v24
        s_waitcnt lgkmcnt(0)
        ds_read_b32 v2, v1 offset:0
        ds_read_b32 v3, v1 offset:32
        s_setprio 3
        ''')
        for t in range(8):
            sel = 20 + 4 * (t & 1); pv = 2 + (t & 1)
            a('s_waitcnt lgkmcnt(%d)' % (1 if t < 7 else 0))
            for k in range(4): a('v_and_b32 v%d, v%d, v%d' % (sel + k, pv, 16 + k))
            if t + 2 < 8: a('ds_read_b32 v%d, v1 offset:%d\ns_nop 0' % (pv, 32 * (t + 2)))
            elif t == 6: a('s_nop 1')
            else:
                self.lds_inc(L_CNTPV, 2, 1)
                self.vshape_off(1, 2, 3)
                a('''
                v_min_u32 v2, 1008, v1
                s_lshl_b32 s21, s3, 10
                v_add_u32 v3, s21, v2
                v_mov_b32 v16, %d
                v_mov_b32 v17, 1
                s_mul_i32 s21, s6, 768
                s_add_u32 s21, s21, %d
                ''' % (L_CNTSL, OFF_O))
            for ty in range(3):
                vm.wait(vidx[(t, ty)])
                acc = 4 + 4 * ty
                c = '0' if t == 0 else 'v[%d:%d]' % (acc, acc + 3)
                r = vreg[(t, ty)]
                a('v_mfma_f32_16x16x32_bf16 v[%d:%d], v[%d:%d], v[%d:%d], %s' % (acc, acc + 3, sel, sel + 3, r, r + 3, c))
        a('s_nop 7')
        self.vshape_combine(4, 8, 12, clampit=False)
        a('''
        ds_write_b128 v3, v[4:7] offset:%d
        s_waitcnt lgkmcnt(0)
        s_mov_b64 exec, 1
        ds_add_rtn_u32 v17, v16, v17
        s_mov_b64 exec, -1
        s_waitcnt lgkmcnt(0)
        v_readfirstlane_b32 s22, v17
        s_cmp_lg_u32 s22, 7
        s_cbranch_scc1 L_S_end
        ''' % L_OSL)
        for k in range(8):
            a('ds_read_b128 v[%d:%d], v2 offset:%d' % (28 + 4 * k, 31 + 4 * k, L_OSL + 1024 * k))
        for k in range(0, 8, 2):
            a('s_waitcnt lgkmcnt(%d)' % (6 - k))
            a('v_pk_add_f32 v[%d:%d], v[%d:%d], v[%d:%d]' % (28 + 4 * k, 29 + 4 * k, 28 + 4 * k, 29 + 4 * k, 32 + 4 * k, 33 + 4 * k))
            a('v_pk_add_f32 v[%d:%d], v[%d:%d], v[%d:%d]' % (30 + 4 * k, 31 + 4 * k, 30 + 4 * k, 31 + 4 * k, 34 + 4 * k, 35 + 4 * k))
        a('''
        v_pk_add_f32 v[28:29], v[28:29], v[36:37]
        v_pk_add_f32 v[30:31], v[30:31], v[38:39]
        v_pk_add_f32 v[44:45], v[44:45], v[52:53]
        v_pk_add_f32 v[46:47], v[46:47], v[54:55]
        v_pk_add_f32 v[28:29], v[28:29], v[44:45]
        v_pk_add_f32 v[30:31], v[30:31], v[46:47]
        v_min_u32 v28, -2, v28
        v_min_u32 v29, -2, v29
        v_min_u32 v30, -2, v30
        v_min_u32 v31, -2, v31
        ''')
        self.store_intra(['buffer_store_dwordx4 v[28:31], v1, s[16:19], s21 offen'])
        self.stamp(4)
        a('s_branch L_S_end2')
        a.label('L_S_end')
        if self.stamps:
            r4 = self.stlist[-1][1]
            a('s_memrealtime s[90:91]\ns_waitcnt lgkmcnt(0)\ns_mov_b32 s%d, s90' % r4)
        if not self.o['stg']:
            a('s_cmp_lg_u32 s22, 0\ns_cbranch_scc1 L_S_end2\ns_cmp_ge_u32 s5, 30\ns_cbranch_scc1 L_S_end2\ns_setprio 0')
            self.roles(); self.tile_bases()
            a('''
            s_cmp_eq_u32 s79, 0
            s_cselect_b32 s24, s60, s62
            s_cselect_b32 s25, s61, s63
            s_mov_b32 s26, %d
            s_mov_b32 s27, 0x20000
            ''' % (640 * 3072))
            self.srd(28, 56, 6144 * 1280)
            self.srd(8, 64, 1536 * 1280)
            a('''
            v_lshrrev_b32 v6, 3, v0
            v_and_b32 v7, 7, v0
            v_mul_u32_u24 v4, 3072, v6
            v_lshl_add_u32 v4, v7, 4, v4
            v_mul_u32_u24 v5, 1280, v6
            v_lshl_add_u32 v5, v7, 4, v5
            ''')
            self.lds_spin(L_CNTIS, 8, 8, 9, sleep=1)
            for t in range(NE, 32):
                a('s_mov_b32 m0, %d\ns_add_u32 s36, s33, %d\nbuffer_load_dwordx4 v5, s[28:31], s36 offen nt lds' % (L_WO + 1024 * t, t * 8 * 1280))
            for t in range(16):
                a('s_mov_b32 m0, %d\ns_add_u32 s36, s34, %d\nbuffer_load_dwordx4 v4, s[24:27], s36 offen nt lds' % (L_WG + 1024 * t, t * 8 * 3072))
            for t in range(8):
                a('s_mov_b32 m0, %d\ns_add_u32 s36, s35, %d\nbuffer_load_dwordx4 v5, s[8:11], s36 offen nt lds' % (L_WD + 1024 * t, t * 8 * 1280))
            a('s_setprio 3')
            if NE < 32:
                a('s_waitcnt vmcnt(24)')
                self.lds_inc(L_ST1, 17, 16)
            a('s_waitcnt vmcnt(0)')
            self.lds_inc(L_ST2, 17, 16)
        a.label('L_S_end2')
        if self.stamps:
            r15 = [r for (i, r) in self.stlist if i == self.o['pw']][0]
            a('s_lshl_b32 s92, s2, 8\ns_add_u32 s92, s92, %d\ns_lshl_b32 s93, s3, 3\ns_add_u32 s92, s92, s93\nv_mov_b32 v1, 0\nv_mov_b32 v3, 0\nv_mov_b32 v2, s%d\ns_mov_b64 exec, 1\nbuffer_store_dwordx2 v[2:3], v1, s[16:19], s92 offen\ns_nop 1' % (OFF_STAMP + 160, r15))
            a('s_cmp_lg_u32 s3, 0\ns_cbranch_scc1 L_end')
            self.stamp_flush(self.stlist)
        a('s_endpgm')

    def m_tile_loads(self, vm):
        a = self.a
        a('''
        s_mul_i32 s22, s20, %d
        s_lshl_b32 s23, s21, 7
        s_add_u32 s22, s22, s23
        v_lshrrev_b32 v4, 4, v0
        v_bfe_u32 v5, v0, 3, 1
        v_lshl_add_u32 v4, v5, 2, v4
        v_mul_u32_u24 v4, 7680, v4
        v_and_b32 v5, 7, v0
        v_lshl_add_u32 v4, v5, 4, v4
        s_mul_i32 s24, s20, 320
        v_lshlrev_b32 v5, 1, v0
        buffer_load_ushort v6, v5, s[12:15], s24 offen
        buffer_load_ushort v7, v5, s[12:15], s24 offen offset:128
        buffer_load_ushort v8, v5, s[12:15], s24 offen offset:256
        ''' % (160 * 7680))
        for _ in range(3): vm.issue()
        W = 40; widx = []
        for t in range(20):
            a('s_add_u32 s23, s22, %d\nbuffer_load_dwordx4 v[%d:%d], v4, s[8:11], s23 offen nt' % (t * 8 * 7680, W + 4 * t, W + 4 * t + 3))
            widx.append(vm.issue())
        return widx

    def m_tile_compute(self, vm, widx, LS, wait_init):
        a = self.a; W = 40
        self.sel_masks(16, 9, 10)
        self.pv_addr(1, 9, str(LS))
        vm.wait(2)
        for k in range(3):
            r = 6 + k
            a('v_lshlrev_b32 v%d, 16, v%d\nv_sub_f32 v9, 0, v%d\nv_min_f32 v9, %s, v9\nv_max_f32 v9, %s, v9' % (r, r, r, f32(88.0), f32(-200.0)))
            self.exp(10, 9, 11, 12)
            a('v_add_f32 v10, 1.0, v10')
            self.div(r, r, 10, 11, 12)
            a('v_cvt_pk_bf16_f32 v%d, v%d, v%d' % (r, r, r))
        a('''
        v_lshlrev_b32 v9, 2, v0
        ds_write_b32 v9, v6 offset:%d
        ds_write_b32 v9, v7 offset:%d
        ds_write_b32 v9, v8 offset:%d
        s_waitcnt lgkmcnt(0)
        ds_read_b32 v2, v1 offset:0
        ds_read_b32 v3, v1 offset:32
        ''' % (LS, LS + 256, LS + 512))
        for t in range(20):
            sel = 20 + 4 * (t & 1); pv = 2 + (t & 1)
            a('s_waitcnt lgkmcnt(%d)' % (1 if t < 19 else 0))
            for k in range(4): a('v_and_b32 v%d, v%d, v%d' % (sel + k, pv, 16 + k))
            a('ds_read_b32 v%d, v1 offset:%d' % (pv, 32 * (t + 2)) if t + 2 < 20 else 's_nop 0')
            a('s_nop 0')
            vm.wait(widx[t])
            a('v_mfma_f32_16x16x32_bf16 v[4:7], v[%d:%d], v[%d:%d], %s' % (sel, sel + 3, W + 4 * t, W + 4 * t + 3, '0' if t == 0 else 'v[4:7]'))
        a('''
        v_and_b32 v9, 15, v0
        v_lshrrev_b32 v10, 4, v0
        v_lshlrev_b32 v1, 5, v9
        v_lshl_add_u32 v1, v10, 4, v1
        v_and_b32 v9, 40, v0
        v_cmp_eq_u32 vcc, 0, v9
        v_mov_b32 v10, %s
        s_nop 0
        v_cndmask_b32 v1, v10, v1, vcc
        s_nop 2
        ''' % OOB)
        for r in range(4): a('v_permlane32_swap_b32 v%d, v%d' % (4 + r, 8 + r))
        a('s_nop 1')
        for r in range(4): a('v_add_f32_dpp v%d, v%d, v%d row_ror:8 row_mask:0xf bank_mask:0xf' % (4 + r, 8 + r, 4 + r))
        for r in range(4): a('v_min_u32 v%d, -2, v%d' % (4 + r, 4 + r))
        if wait_init: self.lds_spin(L_INIT, None, 9, 10, sleep=1)
        a('''
        s_mul_i32 s22, s20, 15360
        s_lshl_b32 s23, s21, 8
        s_add_u32 s22, s22, s23
        s_add_u32 s22, s22, %d
        buffer_store_dwordx4 v[4:7], v1, s[16:19], s22 offen sc1
        ''' % OFF_MOD)

    def a0_wave(self):
        a = self.a; vm = VM(a)
        NT = 80 if self.o['rank'] else 240
        a.label('L_A0')
        self.stamp_begin()
        a('s_setprio 2')
        self.srd(8, 68, 640 * 7680); self.srd(12, 66, 1280)
        a('''
        v_lshlrev_b32 v1, 2, v0
        v_mov_b32 v2, 0
        ds_write_b32 v1, v2
        s_cmp_ge_u32 s2, %d
        s_cbranch_scc1 L_A0_bar
        s_and_b32 s20, s2, 3
        s_lshr_b32 s21, s2, 2
        ''' % NT)
        widx = self.m_tile_loads(vm)
        a.label('L_A0_bar')
        a('s_waitcnt lgkmcnt(0)\ns_barrier\ns_cmp_ge_u32 s2, %d\ns_cbranch_scc1 L_A0_stats' % NT)
        self.m_tile_compute(vm, widx, L_S, True)
        self.stamp(1)
        a.label('L_A0_stats')
        self.lds_spin(L_MODE, None, 9, 10, sleep=4)
        a('s_and_b32 s45, s93, 3')
        self.lds_spin(L_CNTST, 8, 9, 10, sleep=2)
        a('v_and_b32 v1, 7, v0\nv_lshlrev_b32 v2, 3, v1\nds_read_b64 v[4:5], v2 offset:%d\ns_waitcnt lgkmcnt(0)' % L_STAT)
        def combine_stats():
            a('v_mov_b32 v6, v4')
            for r in (4, 2, 1): a('s_nop 1\nv_max_f32_dpp v6, v6, v6 row_ror:%d row_mask:0xf bank_mask:0xf' % r)
            a('v_sub_f32 v8, v4, v6\nv_max_f32 v8, %s, v8' % f32(-200.0))
            self.exp(7, 8, 9, 10)
            a('v_mul_f32 v7, v7, v5')
            for r in (4, 2, 1): a('s_nop 1\nv_add_f32_dpp v7, v7, v7 row_ror:%d row_mask:0xf bank_mask:0xf' % r)
        combine_stats()
        a('''
        v_min_u32 v6, -2, v6
        v_min_u32 v7, -2, v7
        s_lshl_b32 s22, s6, 7
        s_add_u32 s22, s22, %d
        v_readfirstlane_b32 s24, v6
        v_readfirstlane_b32 s25, v7
        s_lshl_b32 s23, s7, 10
        s_add_u32 s23, s23, %d
        s_nop 2
        s_atomic_swap_x2 s[24:25], s[74:75], s22
        s_mov_b32 s95, 0
        L_A0_sp:
        ''' % (OFF_ST, OFF_ST))
        for k in range(8): a('s_load_dwordx2 s[%d:%d], s[74:75], s23 offset:%d glc' % (76 + 2 * k, 77 + 2 * k, 128 * k))
        a('s_waitcnt lgkmcnt(0)\ns_max_u32 s26, s76, s77')
        for k in range(2, 16): a('s_max_u32 s26, s26, s%d' % (76 + k))
        a('''
        s_cmp_lg_u32 s26, -1
        s_cbranch_scc1 L_A0_spd
        s_add_u32 s95, s95, 1
        s_cmp_lt_u32 s95, 0x10000
        s_cbranch_scc1 L_A0_sp
        L_A0_spd:
        ''')
        for k in range(8):
            a('v_writelane_b32 v4, s%d, %d\nv_writelane_b32 v4, s%d, %d\nv_writelane_b32 v5, s%d, %d\nv_writelane_b32 v5, s%d, %d' % (76 + 2 * k, k, 76 + 2 * k, k + 8, 77 + 2 * k, k, 77 + 2 * k, k + 8))
        combine_stats()
        a('v_mov_b32 v2, %d\ns_mov_b64 exec, 1\nds_write_b64 v2, v[6:7]\ns_mov_b64 exec, -1\ns_waitcnt lgkmcnt(0)' % L_GSTAT)
        self.lds_set(L_FLAGP, '1', 9, 10)
        self.stamp(3)
        self.stl_a0 = list(self.stlist)
        a('s_branch L_TAIL')

    def a1_wave(self):
        a = self.a; vm = VM(a)
        a.label('L_A1')
        self.stamp_begin()
        a('s_setprio %d' % self.o['a1p'])
        self.srd(8, 54, 640 * 12288); self.srd(12, 48, 1280)
        a('''
        v_lshlrev_b32 v4, 2, v0
        buffer_load_dword v20, v4, s[12:15], 0 offen
        buffer_load_dword v21, v4, s[12:15], 0 offen offset:256
        buffer_load_dword v22, v4, s[12:15], 0 offen offset:512
        buffer_load_dword v23, v4, s[12:15], 0 offen offset:768
        buffer_load_dword v24, v4, s[12:15], 0 offen offset:1024
        v_min_u32 v1, 19, v0
        v_lshlrev_b32 v4, 3, v1
        s_mul_i32 s20, s46, 160
        buffer_load_dwordx2 v[26:27], v4, s[12:15], s20 offen
        ''')
        for _ in range(6): vm.issue()
        self.vshape_offsets(2, 3, 4, 5, 12288)
        a('s_barrier\ns_mul_i32 s20, s46, %d\ns_mul_i32 s21, s7, 384\ns_add_u32 s20, s20, s21' % (80 * 12288))
        W = 40
        for t in range(10):
            a('s_add_u32 s21, s20, %d\ns_add_u32 s22, s20, %d' % (t * 8 * 12288, (t * 8 + 4) * 12288))
            for ty in range(3):
                r = W + (t * 3 + ty) * 4
                vm.throttle(self.o['a1d'])
                a('buffer_load_dwordx4 v[%d:%d], v%d, s[8:11], s%d offen nt' % (r, r + 3, 3 if ty == 2 else 2, 22 if ty == 1 else 21))
                vm.issue()
        a('s_setprio 2')
        vm.wait(5)
        for k in range(5):
            a('v_lshlrev_b32 v%d, 16, v%d\nv_and_b32 v%d, 0xffff0000, v%d' % (28 + 2 * k, 20 + k, 29 + 2 * k, 20 + k))
        vals = list(range(28, 38)); vmu, vden = 38, 39
        a('v_add_f32 v%d, v%d, v%d' % (vmu, vals[0], vals[1]))
        for v in vals[2:]: a('v_add_f32 v%d, v%d, v%d' % (vmu, vmu, v))
        self.wave_reduce(vmu, 4, 'add')
        a('v_mul_f32 v%d, %s, v%d' % (vmu, f32(1.0 / 640), vmu))
        a('v_sub_f32 v4, v%d, v%d\nv_mul_f32 v%d, v4, v4' % (vals[0], vmu, vden))
        for v in vals[1:]: a('v_sub_f32 v4, v%d, v%d\nv_fmac_f32 v%d, v4, v4' % (v, vmu, vden))
        self.wave_reduce(vden, 4, 'add')
        a('v_mul_f32 v%d, %s, v%d' % (vden, f32(1.0 / 640), vden))
        self.rnd(vden, vden)
        a('v_add_f32 v%d, %s, v%d' % (vden, f32(1e-5), vden))
        self.rnd(vden, vden)
        a('v_sqrt_f32 v%d, v%d\ns_nop 0' % (vden, vden))
        self.rnd(vden, vden); self.rnd(vmu, vmu)
        a('''
        v_lshlrev_b32 v28, 16, v26
        v_and_b32 v29, 0xffff0000, v26
        v_lshlrev_b32 v30, 16, v27
        v_and_b32 v31, 0xffff0000, v27
        v_rcp_f32 v32, v39
        ''')
        for k in range(4):
            x = 28 + k
            a('v_sub_f32 v%d, v%d, v38' % (x, x)); self.rnd(x, x)
            a('v_mul_f32 v33, v%d, v32\nv_fma_f32 v34, -v33, v39, v%d\nv_fma_f32 v%d, v34, v32, v33' % (x, x, x)); self.rnd(x, x)
        self.pv_addr(35, 33, str(L_H))
        self.vshape_off(36, 33, 34)
        self.lds_spin(L_MODE, None, 4, 5, sleep=4)
        a('''
        s_and_b32 s45, s93, 3
        s_mul_i32 s20, s46, 320
        s_add_u32 s20, s20, %d
        s_add_u32 s21, s20, 15360
        s_add_u32 s22, s20, 30720
        s_add_u32 s23, s20, 46080
        v_lshlrev_b32 v2, 4, v1
        ''' % OFF_MOD)
        g = [4, 8, 12, 16, 20, 24, 160, 164]
        loads = []
        for rs in range(4):
            loads.append('buffer_load_dwordx4 v[%d:%d], v2, s[16:19], s%d offen' % (g[rs], g[rs] + 3, 20 + rs))
            loads.append('buffer_load_dwordx4 v[%d:%d], v2, s[16:19], s%d offen offset:2560' % (g[4 + rs], g[4 + rs] + 3, 20 + rs))
        self.poll(loads, [b + k for b in g for k in range(4)], 33, sleep=2)
        self.stamp(14)
        for h in range(2):
            k = 2 * h
            a('''
            v_pk_add_f32 v[%d:%d], v[%d:%d], v[%d:%d]
            v_pk_add_f32 v[%d:%d], v[%d:%d], v[%d:%d]
            v_pk_add_f32 v[%d:%d], v[%d:%d], v[%d:%d]
            v_pk_add_f32 v[%d:%d], v[%d:%d], v[%d:%d]
            v_pk_add_f32 v[%d:%d], v[%d:%d], v[%d:%d]
            v_pk_add_f32 v[%d:%d], v[%d:%d], v[%d:%d]
            ''' % (4 + k, 5 + k, 4 + k, 5 + k, 8 + k, 9 + k, 12 + k, 13 + k, 12 + k, 13 + k, 16 + k, 17 + k,
                   20 + k, 21 + k, 20 + k, 21 + k, 24 + k, 25 + k, 160 + k, 161 + k, 160 + k, 161 + k, 164 + k, 165 + k,
                   4 + k, 5 + k, 4 + k, 5 + k, 12 + k, 13 + k, 20 + k, 21 + k, 20 + k, 21 + k, 160 + k, 161 + k))
        for k in range(4):
            self.rnd(4 + k, 4 + k); self.rnd(20 + k, 20 + k)
            a('v_add_f32 v%d, 1.0, v%d' % (20 + k, 20 + k)); self.rnd(20 + k, 20 + k)
            a('v_mul_f32 v%d, v%d, v%d' % (28 + k, 28 + k, 20 + k)); self.rnd(28 + k, 28 + k)
            a('v_add_f32 v%d, v%d, v%d\nv_cvt_pk_bf16_f32 v%d, v%d, v%d' % (28 + k, 28 + k, 4 + k, 28 + k, 28 + k, 28 + k))
        a('ds_write_b128 v2, v[28:31] offset:%d' % L_H)
        self.sel_masks(16, 33, 34)
        a('s_waitcnt lgkmcnt(0)\nds_read_b32 v2, v35 offset:0\nds_read_b32 v3, v35 offset:32')
        for t in range(10):
            sel = 20 + 4 * (t & 1); pv = 2 + (t & 1)
            a('s_waitcnt lgkmcnt(%d)' % (1 if t < 9 else 0))
            for k in range(4): a('v_and_b32 v%d, v%d, v%d' % (sel + k, pv, 16 + k))
            a('ds_read_b32 v%d, v35 offset:%d' % (pv, 32 * (t + 2)) if t + 2 < 10 else 's_nop 0')
            a('s_nop 0')
            for ty in range(3):
                acc = 4 + 4 * ty; r = W + (t * 3 + ty) * 4
                a('v_mfma_f32_16x16x32_bf16 v[%d:%d], v[%d:%d], v[%d:%d], %s' % (acc, acc + 3, sel, sel + 3, r, r + 3, '0' if t == 0 else 'v[%d:%d]' % (acc, acc + 3)))
        a('s_mul_i32 s21, s6, 768\ns_add_u32 s21, s21, %d\ns_nop 7' % OFF_Q)
        self.vshape_combine(4, 8, 12)
        self.store_intra(['buffer_store_dwordx4 v[4:7], v36, s[16:19], s21 offen'])
        a('''
        s_mul_i32 s21, s7, 6144
        s_add_u32 s21, s21, %d
        s_add_u32 s22, s21, 3072
        v_min_u32 v1, 47, v0
        v_lshlrev_b32 v2, 4, v1
        ''' % OFF_Q)
        loads = ['buffer_load_dwordx4 v[%d:%d], v2, s[16:19], s%d offen offset:%d' % (40 + 4 * p, 43 + 4 * p, 21 + p // 4, (p % 4) * 768) for p in range(8)]
        self.poll(loads, list(range(40, 72)), 33, sleep=1)
        for k in (0, 2):
            for st in (1, 2, 4):
                for p in range(0, 8, 2 * st):
                    a('v_pk_add_f32 v[%d:%d], v[%d:%d], v[%d:%d]' % (40 + 4 * p + k, 41 + 4 * p + k, 40 + 4 * p + k, 41 + 4 * p + k, 40 + 4 * (p + st) + k, 41 + 4 * (p + st) + k))
        a('''
        v_cvt_pk_bf16_f32 v4, v40, v41
        v_cvt_pk_bf16_f32 v5, v42, v43
        v_lshlrev_b32 v2, 3, v1
        ds_write_b64 v2, v[4:5] offset:%d
        s_waitcnt lgkmcnt(0)
        ''' % L_Q)
        self.lds_set(L_FLAGQ, '1', 9, 10)
        self.stamp(2)
        self.stl_a1 = list(self.stlist)
        a('s_branch L_TAIL')

    def a2_wave(self):
        a = self.a
        a.label('L_A2')
        self.stamp_begin()
        a('s_setprio 3')
        self.srd(12, 48, 1280)
        a('v_mov_b32 v4, -1\nv_mov_b32 v5, -1\nv_mov_b32 v6, -1\nv_mov_b32 v7, -1\nv_lshlrev_b32 v1, 4, v0')
        def init(base_expr, nbytes, pol):
            a(base_expr)
            m = (1 << (nbytes // 16)) - 1
            a('s_mov_b32 exec_lo, 0x%x\ns_mov_b32 exec_hi, 0x%x' % (m & 0xffffffff, m >> 32))
            a('buffer_store_dwordx4 v[4:7], v1, s[16:19], s20 offen %s\ns_mov_b64 exec, -1' % pol)
        def slot(off, gstride, n, sz):
            return 's_min_u32 s21, s5, %d\ns_mul_i32 s21, s21, %d\ns_mul_i32 s20, s4, %d\ns_add_u32 s20, s20, s21\ns_add_u32 s20, s20, %d' % (n - 1, sz, gstride, off)
        def init_intra(pol):
            init('s_mul_i32 s20, s6, 768\ns_add_u32 s20, s20, %d' % OFF_Q, 768, pol)
            init('s_mul_i32 s20, s6, 768\ns_add_u32 s20, s20, %d' % OFF_O, 768, pol)
            init(slot(OFF_H, 2560, 20, 128), 128, pol)
            init(slot(OFF_C, 2560, 20, 128), 128, pol)
            init(slot(OFF_G, 7680, 30, 256), 256, pol)
        def fanout(word):
            a('''
            v_mov_b32 v10, s35
            v_lshlrev_b32 v8, 7, v0
            s_lshl_b32 s20, s4, 12
            s_add_u32 s20, s20, %d
            s_mov_b32 exec_hi, 0
            buffer_store_dword v10, v8, s[16:19], s20 offen sc1
            s_mov_b64 exec, -1
            ''' % (OFF_MB + 4 * word))
        def toppoll(off):
            l = a.newlabel('TP'); l2 = a.newlabel('TPD')
            a('s_mov_b32 s95, 0'); a.label(l)
            a('''
            s_and_b32 s36, s35, 0xffff
            s_cmp_eq_u32 s36, 8
            s_cbranch_scc1 %s
            s_load_dword s35, s[72:73], 0x%x glc
            s_waitcnt lgkmcnt(0)
            s_add_u32 s95, s95, 1
            s_cmp_lt_u32 s95, 0x10000
            s_cbranch_scc1 %s
            ''' % (l2, off, l))
            a.label(l2)
        init('s_lshl_b32 s20, s6, 7\ns_add_u32 s20, s20, %d' % OFF_MB, 16, 'sc1')
        init('s_lshl_b32 s20, s6, 7\ns_add_u32 s20, s20, %d' % OFF_ST, 16, 'sc1')
        init('s_min_u32 s22, s2, 239\ns_and_b32 s20, s22, 3\ns_mul_i32 s20, s20, 15360\ns_lshr_b32 s21, s22, 2\ns_lshl_b32 s21, s21, 8\ns_add_u32 s20, s20, s21\ns_add_u32 s20, s20, %d\ns_cmp_ge_u32 s2, 240\ns_cselect_b32 s20, %d, s20' % (OFF_MOD, OOB), 256, 'sc1')
        init(slot(OFF_X, 15360, 30, 512), 512, 'sc1')
        init(slot(OFF_F, 15360, 30, 512), 512, 'sc1')
        init_intra('')
        a('''
        s_barrier
        s_getreg_b32 s20, hwreg(HW_REG_XCC_ID)
        s_and_b32 s20, s20, 7
        s_lshl_b32 s22, s20, 3
        s_lshl_b64 s[32:33], 1, s22
        s_lshl_b32 s21, s4, 5
        s_mov_b64 s[34:35], s[32:33]
        s_waitcnt vmcnt(0)
        s_atomic_add_x2 s[34:35], s[72:73], s21 glc
        ''')
        self.lds_set(L_INIT, '1', 9, 12)
        a('''
        s_waitcnt lgkmcnt(0)
        s_add_u32 s34, s34, s32
        s_addc_u32 s35, s35, s33
        v_mov_b32 v10, s34
        v_mov_b32 v11, s35
        v_sad_u8 v12, v10, 0, 0
        v_sad_u8 v12, v11, 0, v12
        s_nop 0
        v_readfirstlane_b32 s36, v12
        ''')
        self.stamp(16)
        a('''
        s_nop 3
        s_cmp_lg_u32 s36, 32
        s_cbranch_scc1 L_A2_mb
        s_or_b32 s34, s34, s35
        s_and_b32 s34, s34, 0xdfdfdfdf
        s_cmp_lg_u32 s34, 0
        s_cselect_b32 s34, 0x10001, 1
        s_mov_b32 s35, s34
        s_atomic_add s35, s[72:73], 0x8 glc
        s_waitcnt lgkmcnt(0)
        s_and_b32 s23, s35, 7
        s_lshl_b32 s23, s23, 8
        s_add_u32 s35, s35, s34
        ''')
        toppoll(0x8)
        a('s_lshr_b32 s35, s35, 16\ns_cmp_lg_u32 s35, 0\ns_cselect_b32 s35, 2, 1\ns_or_b32 s35, s35, s23')
        fanout(0)
        a.label('L_A2_mb')
        self.mbpoll(0)
        a('s_and_b32 s97, s33, 0x700\ns_and_b32 s33, s33, 3\ns_cmp_eq_u32 s33, 1\ns_cselect_b32 s45, 1, 2')
        if self.o['force_slow']: a('s_mov_b32 s45, 2')
        a('s_cmp_eq_u32 s45, 1\ns_cbranch_scc1 L_A2_fast')
        init_intra('sc1')
        a('''
        s_mov_b32 s34, 1
        s_lshl_b32 s21, s4, 5
        s_add_u32 s21, s21, 16
        s_waitcnt vmcnt(0)
        s_atomic_add s34, s[72:73], s21 glc
        s_waitcnt lgkmcnt(0)
        s_cmp_lg_u32 s34, 31
        s_cbranch_scc1 L_A2_mb2
        s_mov_b32 s35, 1
        s_atomic_add s35, s[72:73], 0x18 glc
        s_waitcnt lgkmcnt(0)
        s_add_u32 s35, s35, 1
        ''')
        toppoll(0x18)
        a('s_mov_b32 s35, 1')
        fanout(1)
        a.label('L_A2_mb2')
        self.mbpoll(1, sleep=2)
        a.label('L_A2_fast')
        a('s_or_b32 s97, s97, s45')
        self.lds_set(L_MODE, 's97', 9, 10)
        self.stamp(13)
        self.red_addrs()
        a('''
        s_cmp_ge_u32 s5, 20
        s_cbranch_scc1 L_TAIL
        s_lshl_b32 s20, s5, 7
        s_add_u32 s20, s20, %d
        s_add_u32 s21, s20, 15360
        s_add_u32 s22, s20, 30720
        s_add_u32 s23, s20, 46080
        v_lshlrev_b32 v25, 2, v24
        v_add_u32 v26, 5120, v25
        v_add_u32 v27, 10240, v25
        s_lshl_b32 s32, s5, 6
        v_lshlrev_b32 v28, 1, v24
        buffer_load_ushort v30, v28, s[12:15], s32 offen
        ''' % OFF_MOD)
        loads = []
        for rs in range(4):
            loads.append('buffer_load_dword v%d, v26, s[16:19], s%d offen' % (4 + rs, 20 + rs))
            loads.append('buffer_load_dword v%d, v26, s[16:19], s%d offen offset:2560' % (8 + rs, 20 + rs))
            loads.append('buffer_load_dword v%d, v27, s[16:19], s%d offen' % (12 + rs, 20 + rs))
            loads.append('buffer_load_dword v%d, v27, s[16:19], s%d offen offset:2560' % (16 + rs, 20 + rs))
        self.poll(loads, list(range(4, 20)), 20, sleep=8)
        for n, dst in enumerate((31, 32, 33, 34)):
            b = 4 + 4 * n
            a('v_add_f32 v%d, v%d, v%d\nv_add_f32 v%d, v%d, v%d\nv_add_f32 v%d, v%d, v%d' % (b, b, b + 1, b + 2, b + 2, b + 3, dst, b, b + 2))
            self.rnd(dst, dst)
        a('''
        v_add_f32 v33, 1.0, v33
        v_cvt_pk_bf16_f32 v33, v33, v32
        v_min_u32 v33, -2, v33
        v_lshlrev_b32 v30, 16, v30
        s_mul_i32 s21, s4, 2560
        s_lshl_b32 s22, s5, 7
        s_add_u32 s21, s21, s22
        s_add_u32 s21, s21, %d
        ''' % OFF_C)
        self.store_intra(['buffer_store_dword v33, v38, s[16:19], s21 offen'])
        self.stl_a2 = list(self.stlist)
        a('s_branch L_TAIL')

    def a3_wave(self):
        a = self.a; vm = VM(a); NE = self.o['ne']
        a.label('L_A3')
        self.stamp_begin()
        a('s_setprio 2\ns_barrier')
        self.lds_spin(L_MODE, None, 4, 5, sleep=4)
        a('s_and_b32 s45, s93, 3')
        if self.o['rank']:
            R = self.o['rank']
            per = 160 // R
            self.srd(8, 68, 640 * 7680); self.srd(12, 66, 1280)
            a('''
            s_lshr_b32 s20, s93, 8
            s_cmp_ge_u32 s20, %d
            s_cbranch_scc1 L_A3_nomt
            s_cmp_ge_u32 s5, %d
            s_cbranch_scc1 L_A3_nomt
            s_mul_i32 s20, s20, %d
            s_add_u32 s20, s20, s5
            s_lshr_b32 s21, s20, 2
            s_add_u32 s21, s21, 20
            s_and_b32 s20, s20, 3
            ''' % (R, per, per))
            vm2 = VM(a)
            widx = self.m_tile_loads(vm2)
            self.m_tile_compute(vm2, widx, L_S2, False)
            a.label('L_A3_nomt')
        a('s_cmp_ge_u32 s5, 30\ns_cbranch_scc1 L_end')
        if NE:
            self.roles(); self.tile_bases()
            self.srd(12, 56, 6144 * 1280)
            a('v_lshrrev_b32 v3, 3, v0\nv_and_b32 v4, 7, v0\nv_mul_u32_u24 v2, 1280, v3\nv_lshl_add_u32 v2, v4, 4, v2')
            for t in range(NE):
                vm.throttle(self.o['adepth'])
                a('s_mov_b32 m0, %d\ns_add_u32 s36, s33, %d\nbuffer_load_dwordx4 v2, s[12:15], s36 offen nt lds' % (L_WO + 1024 * t, t * 8 * 1280))
                vm.issue()
            vm.all()
            self.lds_inc(L_ST1, 4, 5)
        self.stamp(19)
        self.stl_a3 = list(self.stlist)

    def nat_gemv(self, n, W, actaddr, lbase, acc, areg):
        a = self.a
        for m in range(n):
            a('ds_read_b128 v[%d:%d], v%d offset:%d' % (areg + 4 * m, areg + 4 * m + 3, actaddr, lbase + 64 * m))
        for m in range(n):
            a('s_waitcnt lgkmcnt(%d)' % (n - 1 - m))
            a('v_mfma_f32_16x16x32_bf16 v[%d:%d], v[%d:%d], v[%d:%d], %s' % (acc, acc + 3, areg + 4 * m, areg + 4 * m + 3, W + 4 * m, W + 4 * m + 3, '0' if m == 0 else 'v[%d:%d]' % (acc, acc + 3)))
        a('s_nop 7\nv_min_u32 v%d, -2, v%d' % (acc, acc))

    def gather24(self, sb):
        a = self.a
        self.poll(['buffer_load_dwordx4 v[%d:%d], v37, s[16:19], s%d offen' % (4 + 4 * k, 7 + 4 * k, sb + k) for k in range(3)], list(range(4, 16)), 20)
        a('''
        v_pk_add_f32 v[4:5], v[4:5], v[8:9]
        v_pk_add_f32 v[6:7], v[6:7], v[10:11]
        v_pk_add_f32 v[4:5], v[4:5], v[12:13]
        v_pk_add_f32 v[6:7], v[6:7], v[14:15]
        ''')
        self.red8([4, 5, 6, 7])

    def tail(self):
        a = self.a; NE = self.o['ne']
        ST1_T = (1 if NE < 32 else 0) + (1 if NE else 0)
        self.tl = []
        a.label('L_TAIL')
        a('s_setprio %d\ns_cmp_ge_u32 s5, 30\ns_cbranch_scc1 L_T_end\ns_sub_u32 s81, s3, 8' % self.o['tp'])
        self.roles()
        self.srd(28, 70, 1280)
        self.red_addrs()
        WO, WG, WD = 40, 72, 88
        a('''
        s_lshl_b32 s20, s77, 8
        s_lshl_b32 s21, s81, 6
        s_add_u32 s20, s20, s21
        v_add_u32 v4, s20, v0                    ; R' = 256 rb + 64 a + l
        v_mul_u32_u24 v5, 1366, v4
        v_lshrrev_b32 v5, 18, v5
        v_mul_u32_u24 v5, 5376, v5
        v_lshl_add_u32 v96, v4, 2, v5            ; H1 gather lane offset
        s_mul_i32 s82, s4, 24576
        s_add_u32 s82, s82, %d
        s_add_u32 s83, s82, 4608
        s_lshl_b32 s20, s81, 7
        v_lshl_add_u32 v97, v0, 1, s20           ; L_OB write addr
        v_lshrrev_b32 v98, 4, v0
        v_lshlrev_b32 v98, 4, v98                ; act read addr: 16 g
        s_lshl_b32 s20, s81, 8
        v_add_u32 v99, s20, v98
        s_lshl_b32 s21, s81, 7
        v_add_u32 v100, s21, v98
        v_lshl_add_u32 v101, v0, 2, s20          ; L_H2 write addr
        v_lshl_add_u32 v102, v0, 1, s21          ; L_GU write addr
        v_cmp_gt_u32 vcc, 16, v0
        v_mov_b32 v5, %s
        v_lshlrev_b32 v103, 2, v0
        v_cndmask_b32 v104, v5, v103, vcc        ; result store offset (lanes<16)
        v_lshlrev_b32 v105, 4, v0
        v_lshlrev_b32 v106, 3, v0
        s_mul_i32 s84, s4, 3
        s_add_u32 s84, s84, s77
        s_mul_i32 s84, s84, 5120
        s_lshl_b32 s20, s76, 9
        s_add_u32 s84, s84, s20
        s_lshl_b32 s20, s81, 7
        s_add_u32 s84, s84, s20
        s_lshl_b32 s20, s81, 6
        s_add_u32 s85, s84, %d                   ; B_f publish
        s_add_u32 s84, s84, %d                   ; B_x publish
        s_mul_i32 s86, s4, 2560
        s_lshl_b32 s21, s78, 9
        s_add_u32 s87, s86, s21
        s_add_u32 s88, s87, %d                   ; B_c own rows
        s_add_u32 s87, s87, %d                   ; B_h own rows
        s_add_u32 s86, s86, %d                   ; B_h group base
        s_mul_i32 s89, s4, 7680
        s_add_u32 s89, s89, %d
        s_mul_i32 s48, s79, 5
        s_add_u32 s48, s48, s78
        s_mul_i32 s48, s48, 768
        s_lshl_b32 s21, s80, 8
        s_add_u32 s48, s48, s21
        s_add_u32 s48, s48, s20
        s_add_u32 s48, s48, s89                  ; B_g publish
        s_lshl_b32 s49, s77, 8
        s_add_u32 s49, s49, s89                  ; B_g gather (g)
        s_add_u32 s50, s49, 3840                 ; (u)
        s_lshl_b32 s52, s5, 8
        s_add_u32 s55, s52, %d                   ; gather24 F bases s55..57
        s_add_u32 s56, s55, 5120
        s_add_u32 s57, s55, 10240
        s_add_u32 s52, s52, %d                   ; gather24 X bases s52..54
        s_add_u32 s53, s52, 5120
        s_add_u32 s54, s52, 10240
        s_lshl_b32 s51, s5, 7
        s_add_u32 s51, s51, s86                  ; B_h publish
        s_mov_b32 s66, s60
        s_lshl_b32 s60, s5, 6                    ; out offset
        s_cmp_eq_u32 s81, 2
        s_cselect_b32 s20, 1, 0
        s_cmp_lt_u32 s5, 20
        s_cselect_b32 s21, 1, 0
        s_and_b32 s58, s20, s21                  ; reducer?
        s_and_b32 s21, s5, 7
        s_cmp_eq_u32 s21, s4
        s_cselect_b32 s21, 1, 0
        s_and_b32 s59, s58, s21                  ; final?
        v_lshrrev_b32 v4, 4, v0
        v_bfe_u32 v5, v0, 2, 2
        v_lshl_add_u32 v4, v4, 3, v5
        v_lshlrev_b32 v4, 7, v4
        v_and_b32 v5, 3, v0
        v_lshl_add_u32 v4, v5, 3, v4
        s_lshl_b32 s20, s81, 5
        v_add_u32 v4, s20, v4
        v_add_u32 v107, %d, v4                   ; tr addr (gate/up, down)
        v_add_u32 v114, %d, v4                   ; tr addr (wo)
        v_mov_b32 v115, %d
        v_mov_b32 v21, %d
        v_mov_b32 v22, 1
        ''' % (OFF_O, OOB, OFF_F, OFF_X, OFF_C, OFF_H, OFF_H, OFF_G, OFF_F, OFF_X, L_WG, L_WO, L_ST1, L_CNTO))
        def tr1():
            for m in range(8):
                a('ds_read_b64_tr_b16 v[%d:%d], v114 offset:%d' % (WO + 4 * m, WO + 4 * m + 1, 4096 * m))
                a('ds_read_b64_tr_b16 v[%d:%d], v114 offset:%d' % (WO + 4 * m + 2, WO + 4 * m + 3, 4096 * m + 512))
                if m == 3: a('s_waitcnt lgkmcnt(0)')
        def tr2():
            for m in range(4):
                a('ds_read_b64_tr_b16 v[%d:%d], v107 offset:%d' % (WG + 4 * m, WG + 4 * m + 1, 4096 * m))
                a('ds_read_b64_tr_b16 v[%d:%d], v107 offset:%d' % (WG + 4 * m + 2, WG + 4 * m + 3, 4096 * m + 512))
            for m in range(2):
                a('ds_read_b64_tr_b16 v[%d:%d], v107 offset:%d' % (WD + 4 * m, WD + 4 * m + 1, 16384 + 4096 * m))
                a('ds_read_b64_tr_b16 v[%d:%d], v107 offset:%d' % (WD + 4 * m + 2, WD + 4 * m + 3, 16384 + 4096 * m + 512))
        self.poll(['buffer_load_dwordx2 v[108:109], v106, s[16:19], s88 offen'], [108, 109], 20, sleep=8)
        a('''
        v_lshlrev_b32 v110, 16, v108
        v_and_b32 v111, 0xffff0000, v108
        v_lshlrev_b32 v112, 16, v109
        v_and_b32 v113, 0xffff0000, v109
        ''')
        if self.o['stg']:
            assert NE == 32
            a('s_cmp_lg_u32 s81, 3\ns_cbranch_scc1 L_T_nodma')
            self.tile_bases()
            a('''
            s_cmp_eq_u32 s79, 0
            s_cselect_b32 s24, s66, s62
            s_cselect_b32 s25, s61, s63
            s_mov_b32 s26, %d
            s_mov_b32 s27, 0x20000
            ''' % (640 * 3072))
            self.srd(8, 64, 1536 * 1280)
            a('''
            v_lshrrev_b32 v6, 3, v0
            v_and_b32 v7, 7, v0
            v_mul_u32_u24 v1, 3072, v6
            v_lshl_add_u32 v1, v7, 4, v1
            v_mul_u32_u24 v2, 1280, v6
            v_lshl_add_u32 v2, v7, 4, v2
            ''')
            self.lds_spin(L_CNTIS, 8, 8, 9, sleep=1)
            for t in range(16):
                a('s_mov_b32 m0, %d\ns_add_u32 s36, s34, %d\nbuffer_load_dwordx4 v1, s[24:27], s36 offen nt lds' % (L_WG + 1024 * t, t * 8 * 3072))
            for t in range(8):
                a('s_mov_b32 m0, %d\ns_add_u32 s36, s35, %d\nbuffer_load_dwordx4 v2, s[8:11], s36 offen nt lds' % (L_WD + 1024 * t, t * 8 * 1280))
            a.label('L_T_nodma')
        self.lds_spin(L_CNTPV, 8, 4, 5, sleep=1)
        h1loads = ['buffer_load_dword v%d, v96, s[16:19], s%d offen offset:%d' % (4 + jj, 82 if jj < 6 else 83, (jj if jj < 6 else jj - 6) * 768) for jj in range(8)]
        def h1post():
            a('''
            v_pk_add_f32 v[4:5], v[4:5], v[6:7]
            v_pk_add_f32 v[8:9], v[8:9], v[10:11]
            v_pk_add_f32 v[4:5], v[4:5], v[8:9]
            v_add_f32 v4, v4, v5
            v_cvt_pk_bf16_f32 v4, v4, v4
            ds_write_b16 v97, v4 offset:%d
            s_waitcnt lgkmcnt(0)
            s_mov_b64 exec, 1
            ds_add_u32 v21, v22
            s_mov_b64 exec, -1
            ''' % L_OB)
        a('s_mov_b32 s95, 0')
        a.label('L_T_pa')
        for i in h1loads: a(i + ' sc1')
        a('ds_read_b32 v12, v115\ns_waitcnt vmcnt(0) lgkmcnt(0)\nv_readfirstlane_b32 s93, v12')
        self.chk(list(range(4, 12)), 20)
        a('''
        s_cbranch_vccz L_T_px
        s_cmp_eq_u32 s93, %d
        s_cbranch_scc1 L_T_py
        s_add_u32 s95, s95, 1
        s_cmp_lt_u32 s95, 0x10000
        s_cbranch_scc1 L_T_pa
        L_T_px:
        ''' % ST1_T)
        h1post()
        self.lds_spin(L_ST1, ST1_T, 6, 5, sleep=0)
        tr1()
        a('s_branch L_T_pz')
        a.label('L_T_py')
        tr1()
        self.poll(h1loads, list(range(4, 12)), 20)
        h1post()
        a.label('L_T_pz')
        self.tstamp(5)
        self.lds_spin(L_CNTO, 4, 6, 5, sleep=0)
        self.nat_gemv(8, WO, 98, L_OB, 4, 116)
        a('buffer_store_dword v4, v104, s[16:19], s84 offen sc1')
        self.tstamp(6)
        if not self.o['stg']: self.lds_spin(L_ST2, 1, 6, 5, sleep=0)
        tr2()
        a('s_cmp_eq_u32 s58, 0\ns_cbranch_scc1 L_T_h2c')
        self.gather24(52)
        self.rnd(4, 4)
        a('v_mul_f32 v4, v31, v4')
        self.rnd(4, 4)
        a('v_add_f32 v4, v30, v4')
        self.rnd(32, 4)
        self.store_intra(['buffer_store_dword v32, v38, s[16:19], s51 offen'])
        self.tstamp(8)
        a.label('L_T_h2c')
        self.poll(['buffer_load_dwordx4 v[4:7], v105, s[16:19], s86 offen',
                   'buffer_load_dwordx4 v[8:11], v105, s[16:19], s86 offen offset:1024',
                   'buffer_load_dwordx2 v[12:13], v106, s[16:19], s86 offen offset:2048',
                   'buffer_load_dwordx2 v[14:15], v106, s[16:19], s87 offen'], list(range(4, 16)), 20)
        self.tstamp(9)
        a('v_readfirstlane_b32 s20, v4\ns_nop 1')
        for k in range(10): a('v_subrev_f32 v%d, s20, v%d' % (4 + k, 4 + k))
        a('''
        v_pk_mul_f32 v[16:17], v[4:5], v[4:5]
        v_pk_add_f32 v[18:19], v[4:5], v[6:7]
        v_pk_fma_f32 v[16:17], v[6:7], v[6:7], v[16:17]
        v_pk_add_f32 v[18:19], v[18:19], v[8:9]
        v_pk_fma_f32 v[16:17], v[8:9], v[8:9], v[16:17]
        v_pk_add_f32 v[18:19], v[18:19], v[10:11]
        v_pk_fma_f32 v[16:17], v[10:11], v[10:11], v[16:17]
        v_pk_add_f32 v[18:19], v[18:19], v[12:13]
        v_pk_fma_f32 v[16:17], v[12:13], v[12:13], v[16:17]
        v_add_f32 v18, v18, v19
        v_add_f32 v16, v16, v17
        s_nop 1
        v_permlane32_swap_b32 v18, v16
        v_add_f32 v18, v18, v16
        ''')
        for r in (8, 4, 2, 1): a('s_nop 1\nv_add_f32_dpp v18, v18, v18 row_ror:%d row_mask:0xf bank_mask:0xf' % r)
        a('''
        v_mov_b32 v16, v18
        s_nop 1
        v_permlane16_swap_b32 v18, v16
        v_add_f32 v18, v18, v16
        v_mul_f32 v18, %s, v18
        s_nop 0
        v_readlane_b32 s21, v18, 0
        v_readlane_b32 s22, v18, 32
        s_nop 1
        v_mov_b32 v16, s21
        v_mov_b32 v17, s22
        v_fma_f32 v17, -v16, v16, v17
        v_max_f32 v17, 0, v17
        v_add_f32 v16, s20, v16
        ''' % f32(1.0 / 640))
        self.rnd(17, 17)
        a('v_add_f32 v17, %s, v17' % f32(1e-5))
        self.rnd(17, 17)
        a('v_sqrt_f32 v17, v17')
        self.rnd(16, 16)
        self.rnd(17, 17)
        a('''
        v_rcp_f32 v18, v17
        v_sub_f32 v14, v14, v16
        v_sub_f32 v15, v15, v16
        v_cvt_pk_bf16_f32 v19, v14, v15
        v_lshlrev_b32 v14, 16, v19
        v_and_b32 v15, 0xffff0000, v19
        v_mul_f32 v4, v14, v18
        v_mul_f32 v5, v15, v18
        v_fma_f32 v6, -v4, v17, v14
        v_fma_f32 v7, -v5, v17, v15
        v_fma_f32 v14, v6, v18, v4
        v_fma_f32 v15, v7, v18, v5
        v_cvt_pk_bf16_f32 v19, v14, v15
        v_lshlrev_b32 v14, 16, v19
        v_and_b32 v15, 0xffff0000, v19
        v_mul_f32 v14, v14, v110
        v_mul_f32 v15, v15, v112
        v_cvt_pk_bf16_f32 v19, v14, v15
        v_lshlrev_b32 v14, 16, v19
        v_and_b32 v15, 0xffff0000, v19
        v_add_f32 v14, v14, v111
        v_add_f32 v15, v15, v113
        v_cvt_pk_bf16_f32 v19, v14, v15
        ds_write_b32 v101, v19 offset:%d
        s_waitcnt lgkmcnt(0)
        ''' % L_H2)
        self.nat_gemv(4, WG, 99, L_H2, 4, 116)
        self.store_intra(['buffer_store_dword v4, v104, s[16:19], s48 offen'])
        self.tstamp(10)
        loads = []
        for rs in range(5):
            loads.append('buffer_load_dword v%d, v103, s[16:19], s49 offen offset:%d' % (8 + 2 * rs, rs * 768))
            loads.append('buffer_load_dword v%d, v103, s[16:19], s50 offen offset:%d' % (9 + 2 * rs, rs * 768))
        self.poll(loads, list(range(8, 18)), 20)
        a('''
        v_pk_add_f32 v[8:9], v[8:9], v[10:11]
        v_pk_add_f32 v[12:13], v[12:13], v[14:15]
        v_pk_add_f32 v[8:9], v[8:9], v[16:17]
        v_pk_add_f32 v[8:9], v[8:9], v[12:13]
        v_cvt_pk_bf16_f32 v10, v8, v9
        v_lshlrev_b32 v8, 16, v10
        v_and_b32 v9, 0xffff0000, v10
        v_mul_f32 v8, v8, v9
        v_cvt_pk_bf16_f32 v8, v8, v8
        ds_write_b16 v102, v8 offset:%d
        s_waitcnt lgkmcnt(0)
        ''' % L_GU)
        self.nat_gemv(2, WD, 100, L_GU, 4, 116)
        a('buffer_store_dword v4, v104, s[16:19], s85 offen sc1')
        self.tstamp(11)
        a('s_cmp_eq_u32 s59, 0\ns_cbranch_scc1 L_T_end')
        self.gather24(55)
        self.rnd(4, 4)
        a('v_mul_f32 v4, v34, v4')
        self.rnd(4, 4)
        a('v_add_f32 v4, v32, v4\nv_cvt_pk_bf16_f32 v4, v4, v4\nbuffer_store_short v4, v39, s[28:31], s60 offen')
        self.tstamp(12)
        a.label('L_T_end')
        if self.stamps:
            for w, lst in ((8, self.stl_a0), (9, self.stl_a1), (10, self.stl_a2 + self.tl), (11, self.stl_a3)):
                l = a.newlabel('SFL')
                a('s_cmp_lg_u32 s3, %d\ns_cbranch_scc1 %s' % (w, l))
                self.stamp_flush(lst)
                a('s_endpgm')
                a.label(l)
        a.label('L_end')
        a('s_endpgm')

    def build(self):
        self.cold = []
        self.prologue(); self.s_wave(); self.a0_wave(); self.a1_wave(); self.a2_wave(); self.a3_wave(); self.tail()
        for lf, ins, lj in self.cold:
            self.a.label(lf)
            for i in ins: self.a(i)
            self.a('s_branch %s' % lj)
        txt = self.a.text()
        out = []; sec = ''
        for l in txt.split('\n'):
            if '================' in l: sec = l
            if ' nt' in l and 'buffer_load' in l:
                if 'S wave' in sec and 'lds' not in l:
                    pol = self.o['kpol'] if 's[8:11]' in l else self.o['vpol']
                else:
                    pol = self.o['wpol']
                pol = pol.replace('+', ' ').replace('def', '')
                l = l.replace(' nt', (' ' + pol) if pol else '')
            out.append(l)
        s = wrap('\n'.join(out), 256, 768, LDS_BYTES, 168)
        return s.replace('  .amdhsa_system_sgpr_workgroup_id_x 1\n', '  .amdhsa_system_sgpr_workgroup_id_x 1\n  .amdhsa_float_denorm_mode_32 3\n')

if __name__ == '__main__':
    import argparse
    ap = argparse.ArgumentParser()
    ap.add_argument('-o', default='k.s'); ap.add_argument('--stamps', action='store_true'); ap.add_argument('--opt', default='')
    x = ap.parse_args()
    kw = {}
    for kv in filter(None, x.opt.split(',')):
        k, v = kv.split('=')
        try: v = int(v)
        except ValueError: pass
        kw[k] = v
    open(x.o, 'w').write(Gen(stamps=x.stamps, **kw).build())
```

```python
import sys, struct
from asmgen import *

OFF_MOD = 0x0
OFF_Q   = 0x10000
OFF_ST  = 0x40000
OFF_O   = 0x50000
OFF_H   = 0x90000
OFF_C   = 0x98000
OFF_G   = 0xA0000
OFF_MB  = 0xC0000
OFF_X   = 0x0
OFF_F   = 0x80000
OFF_STAMP = 128 << 20
WS_BYTES = 268435456
OOB = 0x7ffffff0
L_FLAGQ, L_CNTST, L_FLAGP, L_MODE, L_INIT, L_CNTPV, L_CNTO, L_CNTSL, L_ST1, L_ST2, L_CNTIS = [4 * k for k in range(11)]
L_Q = 256; L_STAT = 1024; L_GSTAT = 1152; L_P = 2048; L_S = 4096; L_H = 5120
L_S2 = 1280; L_OSL = 6144; L_OB = 14336; L_H2 = 14848; L_GU = 15872
L_WO = 16384; L_WG = L_WO + 32768; L_WD = L_WO + 49152
LDS_BYTES = L_WO + 57344

def f32(x): return '0x%08x' % struct.unpack('<I', struct.pack('<f', x))[0]
LOG2E = 1.4426950408889634
L2E_HI = struct.unpack('<f', struct.pack('<f', LOG2E))[0]
L2E_LO = LOG2E - L2E_HI
LN2 = 0.6931471805599453

class VM:
    def __init__(self, a): self.a = a; self.n = 0; self.done = 0
    def issue(self): self.n += 1; return self.n - 1
    def wait(self, idx):
        if idx < self.done: return
        cnt = self.n - 1 - idx
        assert cnt <= 63
        self.a('s_waitcnt vmcnt(%d)' % cnt); self.done = idx + 1
    def throttle(self, depth):
        if self.n - self.done >= depth: self.wait(self.n - depth)
    def all(self):
        if self.done < self.n: self.a('s_waitcnt vmcnt(0)'); self.done = self.n

class Gen:
    STPOOL = [37, 38, 39, 40, 41, 42, 43, 44, 47, 98, 99, 100, 101]
    def __init__(self, stamps=False, **kw):
        self.a = Asm(); self.stamps = stamps
        self.o = dict(near=1, nms=6, xpol='sc0+sc1', ilv=0, kpol='nt', vpol='nt', wpol='nt', depth=3, qk_min=3, sig=22, rank=0, sprio=1, a1p=0, a1d=60, stg=1, adepth=8, ne=32, pw=4, minst=0, force_slow=0, tp=1)
        self.o.update(kw)

    def srd(self, d, p, size):
        self.a('s_mov_b32 s%d, s%d\ns_mov_b32 s%d, s%d\ns_mov_b32 s%d, %d\ns_mov_b32 s%d, 0x20000' % (d, p, d + 1, p + 1, d + 2, size, d + 3))
    def stamp_begin(self):
        self.stlist = []
        if self.stamps:
            for r in self.STPOOL: self.a('s_mov_b32 s%d, 0' % r)
    def stamp(self, idx):
        if not self.stamps: return
        r = self.STPOOL[len(self.stlist)]; self.stlist.append((idx, r))
        self.a('s_memrealtime s[90:91]\ns_waitcnt lgkmcnt(0)\ns_mov_b32 s%d, s90' % r)
    def tstamp(self, idx):
        if not self.stamps or (self.o['minst'] and idx != 12): return
        r = self.STPOOL[5 + len(self.tl)]; self.tl.append((idx, r))
        self.a('s_memrealtime s[90:91]\ns_waitcnt lgkmcnt(0)\ns_mov_b32 s%d, s90' % r)
    def stamp_flush(self, lst):
        if not self.stamps: return
        a = self.a
        a('s_lshl_b32 s92, s2, 8\ns_add_u32 s92, s92, %d\nv_mov_b32 v1, 0\nv_mov_b32 v3, 0\ns_mov_b64 exec, 1' % OFF_STAMP)
        for idx, r in lst:
            a('v_mov_b32 v2, s%d\nbuffer_store_dwordx2 v[2:3], v1, s[16:19], s92 offen offset:%d\ns_nop 1' % (r, idx * 8))
    def rnd(self, dst, src):
        self.a('v_cvt_pk_bf16_f32 v%d, v%d, v%d\nv_and_b32 v%d, 0xffff0000, v%d' % (dst, src, src, dst, dst))
    def wave_reduce(self, v, t, op):
        a = self.a
        for r in (8, 4, 2, 1):
            a('s_nop 1\nv_%s_f32_dpp v%d, v%d, v%d row_ror:%d row_mask:0xf bank_mask:0xf' % (op, v, v, v, r))
        for sw in ('16', '32'):
            a('v_mov_b32 v%d, v%d\ns_nop 1\nv_permlane%s_swap_b32 v%d, v%d\nv_%s_f32 v%d, v%d, v%d' % (t, v, sw, v, t, op, v, v, t))
    def red8(self, r):
        self.a('''
        s_nop 1
        v_permlane32_swap_b32 v%d, v%d
        v_permlane32_swap_b32 v%d, v%d
        v_add_f32 v%d, v%d, v%d
        v_add_f32 v%d, v%d, v%d
        s_nop 1
        v_permlane16_swap_b32 v%d, v%d
        v_add_f32 v%d, v%d, v%d
        s_nop 1
        v_add_f32_dpp v%d, v%d, v%d row_ror:8 row_mask:0xf bank_mask:0xf
        ''' % (r[0], r[1], r[2], r[3], r[0], r[0], r[1], r[2], r[2], r[3], r[0], r[2], r[0], r[0], r[2], r[0], r[0], r[0]))
    def exp(self, dst, x, t1, t2):
        self.a('''
        v_mul_f32 v%d, %s, v%d
        v_fma_f32 v%d, v%d, s94, -v%d
        v_fmac_f32 v%d, %s, v%d
        v_exp_f32 v%d, v%d
        v_mul_f32 v%d, %s, v%d
        v_fma_f32 v%d, v%d, v%d, v%d
        ''' % (t1, f32(L2E_HI), x, t2, x, t1, t2, f32(L2E_LO), x, t1, t1, t2, f32(LN2), t2, dst, t1, t2, t1))
    def div(self, dst, n, d, t1, t2):
        self.a('''
        v_rcp_f32 v%d, v%d
        s_nop 0
        v_mul_f32 v%d, v%d, v%d
        v_fma_f32 v%d, -v%d, v%d, v%d
        v_fma_f32 v%d, v%d, v%d, v%d
        ''' % (t1, d, t2, n, t1, dst, t2, d, n, dst, dst, t1, t2))
    def lds_spin(self, addr, val, vt, va, sleep=1):
        a = self.a; l = a.newlabel('SP'); l2 = a.newlabel('SPD')
        a('v_mov_b32 v%d, %d\ns_mov_b32 s95, 0' % (va, addr))
        a.label(l)
        a('ds_read_b32 v%d, v%d\ns_waitcnt lgkmcnt(0)\nv_readfirstlane_b32 s93, v%d' % (vt, va, vt))
        a('s_cmp_lg_u32 s93, 0' if val is None else 's_cmp_eq_u32 s93, %d' % val)
        a('s_cbranch_scc1 %s' % l2)
        if sleep: a('s_sleep %d' % sleep)
        a('s_add_u32 s95, s95, 1\ns_cmp_lt_u32 s95, 0x40000\ns_cbranch_scc1 %s' % l)
        a.label(l2)
    def lds_set(self, addr, val, vt, va):
        self.a('v_mov_b32 v%d, %d\nv_mov_b32 v%d, %s\nds_write_b32 v%d, v%d' % (va, addr, vt, val, va, vt))
    def lds_inc(self, addr, vt, va):
        self.a('v_mov_b32 v%d, %d\nv_mov_b32 v%d, 1\ns_mov_b64 exec, 1\nds_add_u32 v%d, v%d\ns_mov_b64 exec, -1' % (va, addr, vt, va, vt))
    def store_intra(self, instrs):
        a = self.a; lf = a.newlabel('SF'); lj = a.newlabel('SJ')
        a('s_cmp_eq_u32 s45, 1\ns_cbranch_scc0 %s' % lf)
        for i in instrs: a(i)
        a.label(lj)
        self.cold.append((lf, [i + ' sc1' for i in instrs], lj))
    def chk(self, regs, vt):
        a = self.a; rs = list(regs)
        if len(rs) == 1:
            a('v_cmp_eq_u32 vcc, -1, v%d' % rs[0]); return
        if len(rs) == 2:
            a('v_max_u32 v%d, v%d, v%d' % (vt, rs[0], rs[1])); rest = []
        else:
            a('v_max3_u32 v%d, v%d, v%d, v%d' % (vt, rs[0], rs[1], rs[2])); rest = rs[3:]
        while rest:
            if len(rest) == 1:
                a('v_max_u32 v%d, v%d, v%d' % (vt, vt, rest[0])); rest = []
            else:
                a('v_max3_u32 v%d, v%d, v%d, v%d' % (vt, vt, rest[0], rest[1])); rest = rest[2:]
        a('v_cmp_eq_u32 vcc, -1, v%d' % vt)
    def poll(self, loads, regs, vt, sleep=0):
        a = self.a; l = a.newlabel('PL'); l2 = a.newlabel('PD')
        a('s_mov_b32 s95, 0')
        a.label(l)
        for i in loads: a(i + ' sc1')
        a('s_waitcnt vmcnt(0)')
        self.chk(regs, vt)
        a('s_cbranch_vccz %s' % l2)
        if sleep: a('s_sleep %d' % sleep)
        a('s_add_u32 s95, s95, 1\ns_cmp_lt_u32 s95, 0x10000\ns_cbranch_scc1 %s' % l)
        a.label(l2)
    def sel_masks(self, m, t1, t2):
        a = self.a
        a('''
        v_and_b32 v%d, 1, v0
        v_lshlrev_b32 v%d, 4, v%d
        v_mov_b32 v%d, 0xffff
        v_lshlrev_b32 v%d, v%d, v%d
        v_bfe_u32 v%d, v0, 1, 2
        ''' % (t1, t1, t1, t2, t1, t1, t2, t2))
        for k in range(4):
            a('v_cmp_eq_u32 vcc, %d, v%d\ns_nop 1\nv_cndmask_b32 v%d, 0, v%d, vcc' % (k, t2, m + k, t1))
    def pv_addr(self, dst, t1, base):
        self.a('''
        v_lshrrev_b32 v%d, 4, v0
        v_bfe_u32 v%d, v0, 3, 1
        v_lshl_add_u32 v%d, v%d, 2, v%d
        v_lshlrev_b32 v%d, 2, v%d
        v_add_u32 v%d, %s, v%d
        ''' % (dst, t1, dst, t1, dst, dst, dst, dst, base, dst))
    def vshape_offsets(self, v1, v3, t1, t2, rs):
        self.a('''
        v_lshrrev_b32 v%d, 4, v0
        v_and_b32 v%d, 15, v0
        v_mul_u32_u24 v%d, %d, v%d
        v_lshl_add_u32 v%d, v%d, 4, v%d
        v_bfe_u32 v%d, v0, 3, 1
        v_lshl_add_u32 v%d, v%d, 2, v%d
        v_mul_u32_u24 v%d, %d, v%d
        v_and_b32 v%d, 7, v0
        v_lshl_add_u32 v%d, v%d, 4, v%d
        v_add_u32 v%d, 256, v%d
        ''' % (t1, t2, v1, rs, t1, v1, t2, v1, t2, v3, t2, t1, v3, rs, v3, t2, v3, t2, v3, v3, v3))
    def vshape_off(self, voff, t1, t2):
        self.a('''
        v_and_b32 v%d, 15, v0
        v_lshrrev_b32 v%d, 4, v0
        v_lshlrev_b32 v%d, 5, v%d
        v_lshl_add_u32 v%d, v%d, 4, v%d
        v_add_u32 v%d, %d, v%d
        v_cmp_gt_u32 vcc, 32, v0
        v_mov_b32 v%d, %s
        s_nop 0
        v_cndmask_b32 v%d, v%d, v%d, vcc
        v_and_b32 v%d, 40, v0
        v_cmp_eq_u32 vcc, 32, v%d
        s_nop 1
        v_cndmask_b32 v%d, v%d, v%d, vcc
        ''' % (t1, t2, voff, t1, voff, t2, voff, t1, 224, voff, t2, OOB, voff, t1, voff, t1, t1, voff, voff, t2))
    def vshape_combine(self, d1, d2, d3, clampit=True):
        a = self.a
        for r in range(4): a('v_permlane32_swap_b32 v%d, v%d' % (d2 + r, d3 + r))
        for r in range(4): a('v_add_f32 v%d, v%d, v%d' % (d1 + r, d1 + r, d3 + r))
        for r in range(4): a('v_add_f32_dpp v%d, v%d, v%d row_ror:8 row_mask:0xc bank_mask:0xf' % (d1 + r, d2 + r, d3 + r))
        if clampit:
            for r in range(4): a('v_min_u32 v%d, -2, v%d' % (d1 + r, d1 + r))
    def roles(self):
        self.a('''
        s_mul_i32 s77, s5, 26
        s_lshr_b32 s77, s77, 8
        s_mul_i32 s76, s77, 10
        s_sub_u32 s76, s5, s76
        s_mul_i32 s80, s5, 52
        s_lshr_b32 s80, s80, 8
        s_mul_i32 s78, s80, 5
        s_sub_u32 s78, s5, s78
        s_and_b32 s79, s80, 1
        s_lshr_b32 s80, s80, 1
        ''')
    def tile_bases(self):
        self.a('''
        s_mul_i32 s33, s4, %d
        s_mul_i32 s36, s77, %d
        s_add_u32 s33, s33, s36
        s_lshl_b32 s36, s76, 7
        s_add_u32 s33, s33, s36
        s_mul_i32 s34, s78, %d
        s_mul_i32 s35, s4, 384
        s_add_u32 s34, s34, s35
        s_lshl_b32 s35, s80, 7
        s_add_u32 s34, s34, s35
        s_mul_i32 s35, s4, %d
        s_mul_i32 s36, s77, %d
        s_add_u32 s35, s35, s36
        s_lshl_b32 s36, s76, 7
        s_add_u32 s35, s35, s36
        s_cmp_ge_u32 s5, 30
        s_cselect_b32 s33, 0x40000000, s33
        s_cselect_b32 s34, 0x40000000, s34
        s_cselect_b32 s35, 0x40000000, s35
        ''' % (768 * 1280, 256 * 1280, 128 * 3072, 192 * 1280, 64 * 1280))
    def red_addrs(self):
        self.a('''
        v_and_b32 v24, 7, v0
        v_lshlrev_b32 v24, 2, v24
        v_bfe_u32 v25, v0, 4, 1
        v_lshl_add_u32 v24, v25, 1, v24
        v_lshrrev_b32 v25, 5, v0
        v_add_u32 v24, v24, v25                  ; col in block = 4c + PI[q]
        v_and_b32 v27, 8, v0
        v_cmp_eq_u32 vcc, 0, v27
        v_mov_b32 v27, %s
        v_lshlrev_b32 v38, 2, v24
        v_cndmask_b32 v38, v27, v38, vcc         ; line store offset (dword)
        v_lshlrev_b32 v39, 1, v24
        v_cndmask_b32 v39, v27, v39, vcc         ; out store offset (2B)
        v_lshrrev_b32 v37, 3, v0
        v_mul_u32_u24 v37, 768, v37
        v_and_b32 v25, 3, v0
        v_lshl_add_u32 v37, v25, 4, v37
        v_bfe_u32 v25, v0, 2, 1
        v_lshl_add_u32 v37, v25, 7, v37          ; gather24 lane offset
        ''' % OOB)
    def xbase(self, d):
        self.a('s_add_u32 s%d, s74, 0x3fffff\ns_and_b32 s%d, s%d, 0xffe00000\ns_sub_u32 s%d, s%d, s74' % (d, d, d, d, d))
    def pub_off(self, d, t, a_expr):
        self.a('''
        s_lshl_b32 s%d, s76, 2
        s_add_u32 s%d, s%d, %s
        s_lshr_b32 s%d, s%d, 1
        s_lshl_b32 s%d, s%d, 14
        s_and_b32 s%d, s%d, 1
        s_lshl_b32 s%d, s%d, 7
        s_add_u32 s%d, s%d, s%d
        s_mul_i32 s%d, s4, 3
        s_add_u32 s%d, s%d, s77
        s_lshl_b32 s%d, s%d, 8
        s_add_u32 s%d, s%d, s%d
        ''' % (t, t, t, a_expr, d, t, d, d, t, t, t, t, d, d, t, t, t, t, t, t, d, d, t))
    def mbpoll(self, word, sleep=0):
        a = self.a; l = a.newlabel('MB'); l2 = a.newlabel('MBD')
        a('s_lshl_b32 s20, s6, 7\ns_add_u32 s20, s20, %d\ns_mov_b32 s95, 0' % (OFF_MB + 4 * word))
        a.label(l)
        a('s_load_dword s33, s[74:75], s20 glc\ns_waitcnt lgkmcnt(0)\ns_cmp_lg_u32 s33, -1\ns_cbranch_scc1 %s' % l2)
        if sleep: a('s_sleep %d' % sleep)
        a('s_add_u32 s95, s95, 1\ns_cmp_lt_u32 s95, 0x10000\ns_cbranch_scc1 %s' % l)
        a.label(l2)

    def prologue(self):
        a = self.a
        for l in [
            'One persistent launch: 256 workgroups (one per CU) x 12 waves.',
            ' waves 0-7  (S): stream 512 keys of K then V of one head (nt loads, 3 in flight per wave), QK^T / PV with MFMA.',
            ' wave 8  (A0): w_mod tile (silu(c) @ w_mod), softmax statistics exchange.   wave 9 (A1): LayerNorm 1 + wq tile -> q.',
            ' wave 10 (A2): sentinel initialisation of the hand-off buffers in d_ws, registration through d_debug counters.',
            ' wave 11 (A3): LDS staging of the wo / gate / up / down tiles.   A0-A3 then run the tail (wo, LN 2, GLU, output).',
            ' Hand-offs: consumers poll the payload itself against an all-ones sentinel written earlier in this launch.',
            ' Groups of 32 workgroups use plain stores only after the registration proved that they share one XCD; otherwise sc1.',
        ]: a.comment(l)
        a('''
        s_cmp_ge_u32 s2, 256
        s_cbranch_scc1 L_end
        s_load_dwordx16 s[48:63], s[0:1], 0
        s_load_dwordx8 s[64:71], s[0:1], 64
        s_load_dwordx4 s[72:75], s[0:1], 96
        v_lshrrev_b32 v1, 6, v0
        v_and_b32 v0, 63, v0
        v_readfirstlane_b32 s3, v1
        s_and_b32 s4, s2, 7
        s_lshr_b32 s5, s2, 3
        s_lshl_b32 s6, s4, 5
        s_add_u32 s6, s6, s5
        s_lshr_b32 s7, s6, 3
        s_and_b32 s46, s6, 7
        s_mov_b32 s94, %s
        s_mov_b32 s45, 0
        s_waitcnt lgkmcnt(0)
        ''' % f32(L2E_HI))
        self.srd(16, 74, WS_BYTES)
        a('''
        s_cmp_eq_u32 s3, 8
        s_cbranch_scc1 L_A0
        s_cmp_eq_u32 s3, 9
        s_cbranch_scc1 L_A1
        s_cmp_eq_u32 s3, 10
        s_cbranch_scc1 L_A2
        s_cmp_eq_u32 s3, 11
        s_cbranch_scc1 L_A3
        ''')

    def s_wave(self):
        a = self.a; vm = VM(a); D = self.o['depth']; NE = self.o['ne']
        self.stamp_begin(); self.stamp(0)
        self.srd(8, 50, 50331648); self.srd(12, 52, 50331648)
        if self.o['sprio']:
            a('s_cmp_lt_u32 s3, 4\ns_cbranch_scc1 L_S_np\ns_setprio 1')
            a.label('L_S_np')
        a('''
        s_mul_i32 s20, s6, 196608
        s_mul_i32 s21, s3, %d
        s_add_u32 s20, s20, s21
        v_and_b32 v4, 7, v0
        v_mul_u32_u24 v1, 384, v4
        v_bfe_u32 v4, v0, 3, 1
        v_lshl_add_u32 v1, v4, 6, v1
        v_lshrrev_b32 v4, 4, v0
        v_lshl_add_u32 v1, v4, 4, v1
        ''' % (3072 if self.o['ilv'] else 24576))
        GS = 24576 if self.o['ilv'] else 3072
        KB = 28; VF = 124; NF = 11
        kreg = lambda t, s: KB + (t * 3 + s) * 4
        kidx = {}
        for t in range(8):
            a('s_add_u32 s21, s20, %d' % (t * GS))
            for s in range(3):
                vm.throttle(D)
                a('buffer_load_dwordx4 v[%d:%d], v1, s[8:11], s21 offen offset:%d nt' % (kreg(t, s), kreg(t, s) + 3, s * 128))
                kidx[(t, s)] = vm.issue()
                if vm.n == min(D, 4):
                    self.vshape_offsets(2, 3, 4, 5, 384)
                    a('s_barrier')
        vtiles = [(t, ty) for t in range(8) for ty in range(3)]
        vreg = {tt: (VF + 4 * n if n < NF else KB + 4 * (n - NF)) for n, tt in enumerate(vtiles)}
        vidx = {}
        def issue_v(n):
            t, ty = vtiles[n]
            vm.throttle(D)
            a('s_add_u32 s21, s20, %d' % (t * GS))
            r = vreg[(t, ty)]
            if ty == 0: a('buffer_load_dwordx4 v[%d:%d], v2, s[12:15], s21 offen nt' % (r, r + 3))
            elif ty == 1: a('buffer_load_dwordx4 v[%d:%d], v2, s[12:15], s21 offen offset:1536 nt' % (r, r + 3))
            else: a('buffer_load_dwordx4 v[%d:%d], v3, s[12:15], s21 offen nt' % (r, r + 3))
            vidx[(t, ty)] = vm.issue()
        P = 11
        QMIN = max(self.o['qk_min'], D)
        a('s_lshr_b32 s97, s3, 8\nv_mov_b32 v25, %d' % L_FLAGQ)
        for n in range(P):
            issue_v(n)
            if n + 1 >= QMIN and n + 1 < P:
                assert vm.done >= 24
                l = a.newlabel('QS')
                a('''
                s_cmp_lg_u32 s97, 0
                s_cbranch_scc1 %s
                ds_read_b32 v24, v25
                s_waitcnt lgkmcnt(0)
                v_readfirstlane_b32 s93, v24
                s_cmp_eq_u32 s93, 0
                s_cbranch_scc1 %s
                s_call_b64 s[30:31], L_QK
                ''' % (l, l))
                a.label(l)
        self.stamp(17)
        a('s_cmp_lg_u32 s97, 0\ns_cbranch_scc1 L_QK_done')
        self.lds_spin(L_FLAGQ, None, 24, 25, sleep=2)
        a('s_call_b64 s[30:31], L_QK\ns_branch L_QK_done')
        a.label('L_QK')
        a('''
        v_and_b32 v24, 1, v0
        v_lshrrev_b32 v25, 4, v0
        v_lshl_add_u32 v24, v24, 2, v25
        v_lshlrev_b32 v24, 4, v24
        ds_read_b128 v[4:7], v24 offset:%d
        ds_read_b128 v[8:11], v24 offset:%d
        ds_read_b128 v[12:15], v24 offset:%d
        s_waitcnt lgkmcnt(0)
        ''' % (L_Q, L_Q + 128, L_Q + 256))
        vS = 24
        def pack(t):
            acc = 16 + 4 * (t & 1)
            if t % 2 == 0: a('v_add_f32_dpp v%d, v%d, v%d row_ror:8 row_mask:0x%x bank_mask:0x3' % (vS, acc + 1, acc, 1 << (t // 2)))
            else: a('v_add_f32_dpp v%d, v%d, v%d row_ror:8 row_mask:0x%x bank_mask:0xc' % (vS, acc, acc + 1, 1 << (t // 2)))
        for t in range(8):
            acc = 16 + 4 * (t & 1)
            vm.wait(kidx[(t, 2)])
            for s in range(3):
                c = '0' if s == 0 else 'v[%d:%d]' % (acc, acc + 3)
                a('v_mfma_f32_16x16x32_bf16 v[%d:%d], v[%d:%d], v[%d:%d], %s' % (acc, acc + 3, 4 + 4 * s, 7 + 4 * s, kreg(t, s), kreg(t, s) + 3, c))
            if t >= 1:
                a('s_nop 4'); pack(t - 1); a('s_nop 2')
        a('s_nop 7'); pack(7); a('s_nop 0')
        if not self.o.get('skip_sc1'): self.rnd(vS, vS)
        a('v_mul_f32 v%d, %s, v%d' % (vS, f32(192 ** -0.5), vS))
        if not self.o.get('skip_sc2'): self.rnd(vS, vS)
        a('v_mov_b32 v16, v%d' % vS)
        self.wave_reduce(16, 17, 'max')
        a('v_sub_f32 v18, v%d, v16\nv_max_f32 v18, %s, v18' % (vS, f32(-200.0)))
        self.exp(17, 18, 19, 20)
        self.wave_reduce(17, 18, 'add')
        a('''
        s_lshl_b32 s21, s3, 3
        s_add_u32 s21, s21, %d
        v_mov_b32 v18, s21
        ds_write_b64 v18, v[16:17]
        s_waitcnt lgkmcnt(0)
        ''' % L_STAT)
        self.lds_inc(L_CNTST, 19, 18)
        self.stamp(15)
        a('s_or_b32 s97, s3, 256\ns_setpc_b64 s[30:31]')
        a.label('L_QK_done')
        for n in range(P, 24):
            issue_v(n)
            if n == self.o['sig']: self.lds_inc(L_CNTIS, 5, 4)
        self.sel_masks(16, 25, 26)
        a('s_lshl_b32 s22, s3, 8\ns_add_u32 s22, s22, %d' % L_P)
        self.pv_addr(1, 25, 's22')
        self.stamp(18)
        self.lds_spin(L_FLAGP, None, 25, 26, sleep=2)
        a('''
        v_mov_b32 v25, %d
        ds_read_b64 v[26:27], v25
        v_mov_b32 v25, %d
        ds_read_b32 v25, v25
        v_lshlrev_b32 v2, 2, v0
        v_add_u32 v2, s22, v2
        s_waitcnt lgkmcnt(0)
        v_readfirstlane_b32 s45, v25
        v_sub_f32 v24, v24, v26
        s_and_b32 s45, s45, 3
        v_max_f32 v24, %s, v24
        ''' % (L_GSTAT, L_MODE, f32(-200.0)))
        self.exp(24, 24, 20, 21)
        self.div(24, 24, 27, 20, 21)
        a('''
        v_cvt_pk_bf16_f32 v24, v24, v24
        ds_write_b32 v2, v24
        s_waitcnt lgkmcnt(0)
        ds_read_b32 v2, v1 offset:0
        ds_read_b32 v3, v1 offset:32
        s_setprio 3
        ''')
        for t in range(8):
            sel = 20 + 4 * (t & 1); pv = 2 + (t & 1)
            a('s_waitcnt lgkmcnt(%d)' % (1 if t < 7 else 0))
            for k in range(4): a('v_and_b32 v%d, v%d, v%d' % (sel + k, pv, 16 + k))
            if t + 2 < 8: a('ds_read_b32 v%d, v1 offset:%d\ns_nop 0' % (pv, 32 * (t + 2)))
            elif t == 6: a('s_nop 1')
            else:
                self.lds_inc(L_CNTPV, 2, 1)
                self.vshape_off(1, 2, 3)
                a('''
                v_min_u32 v2, 1008, v1
                s_lshl_b32 s21, s3, 10
                v_add_u32 v3, s21, v2
                v_mov_b32 v16, %d
                v_mov_b32 v17, 1
                s_mul_i32 s21, s6, 768
                s_add_u32 s21, s21, %d
                ''' % (L_CNTSL, OFF_O))
            for ty in range(3):
                vm.wait(vidx[(t, ty)])
                acc = 4 + 4 * ty
                c = '0' if t == 0 else 'v[%d:%d]' % (acc, acc + 3)
                r = vreg[(t, ty)]
                a('v_mfma_f32_16x16x32_bf16 v[%d:%d], v[%d:%d], v[%d:%d], %s' % (acc, acc + 3, sel, sel + 3, r, r + 3, c))
        a('s_nop 7')
        self.vshape_combine(4, 8, 12, clampit=False)
        a('''
        ds_write_b128 v3, v[4:7] offset:%d
        s_waitcnt lgkmcnt(0)
        s_mov_b64 exec, 1
        ds_add_rtn_u32 v17, v16, v17
        s_mov_b64 exec, -1
        s_waitcnt lgkmcnt(0)
        v_readfirstlane_b32 s22, v17
        s_cmp_lg_u32 s22, 7
        s_cbranch_scc1 L_S_end
        ''' % L_OSL)
        for k in range(8):
            a('ds_read_b128 v[%d:%d], v2 offset:%d' % (28 + 4 * k, 31 + 4 * k, L_OSL + 1024 * k))
        for k in range(0, 8, 2):
            a('s_waitcnt lgkmcnt(%d)' % (6 - k))
            a('v_pk_add_f32 v[%d:%d], v[%d:%d], v[%d:%d]' % (28 + 4 * k, 29 + 4 * k, 28 + 4 * k, 29 + 4 * k, 32 + 4 * k, 33 + 4 * k))
            a('v_pk_add_f32 v[%d:%d], v[%d:%d], v[%d:%d]' % (30 + 4 * k, 31 + 4 * k, 30 + 4 * k, 31 + 4 * k, 34 + 4 * k, 35 + 4 * k))
        a('''
        v_pk_add_f32 v[28:29], v[28:29], v[36:37]
        v_pk_add_f32 v[30:31], v[30:31], v[38:39]
        v_pk_add_f32 v[44:45], v[44:45], v[52:53]
        v_pk_add_f32 v[46:47], v[46:47], v[54:55]
        v_pk_add_f32 v[28:29], v[28:29], v[44:45]
        v_pk_add_f32 v[30:31], v[30:31], v[46:47]
        v_min_u32 v28, -2, v28
        v_min_u32 v29, -2, v29
        v_min_u32 v30, -2, v30
        v_min_u32 v31, -2, v31
        ''')
        self.store_intra(['buffer_store_dwordx4 v[28:31], v1, s[16:19], s21 offen'])
        self.stamp(4)
        a('s_branch L_S_end2')
        a.label('L_S_end')
        if self.stamps:
            r4 = self.stlist[-1][1]
            a('s_memrealtime s[90:91]\ns_waitcnt lgkmcnt(0)\ns_mov_b32 s%d, s90' % r4)
        if not self.o['stg']:
            a('s_cmp_lg_u32 s22, 0\ns_cbranch_scc1 L_S_end2\ns_cmp_ge_u32 s5, 30\ns_cbranch_scc1 L_S_end2\ns_setprio 0')
            self.roles(); self.tile_bases()
            a('''
            s_cmp_eq_u32 s79, 0
            s_cselect_b32 s24, s60, s62
            s_cselect_b32 s25, s61, s63
            s_mov_b32 s26, %d
            s_mov_b32 s27, 0x20000
            ''' % (640 * 3072))
            self.srd(28, 56, 6144 * 1280)
            self.srd(8, 64, 1536 * 1280)
            a('''
            v_lshrrev_b32 v6, 3, v0
            v_and_b32 v7, 7, v0
            v_mul_u32_u24 v4, 3072, v6
            v_lshl_add_u32 v4, v7, 4, v4
            v_mul_u32_u24 v5, 1280, v6
            v_lshl_add_u32 v5, v7, 4, v5
            ''')
            self.lds_spin(L_CNTIS, 8, 8, 9, sleep=1)
            for t in range(NE, 32):
                a('s_mov_b32 m0, %d\ns_add_u32 s36, s33, %d\nbuffer_load_dwordx4 v5, s[28:31], s36 offen nt lds' % (L_WO + 1024 * t, t * 8 * 1280))
            for t in range(16):
                a('s_mov_b32 m0, %d\ns_add_u32 s36, s34, %d\nbuffer_load_dwordx4 v4, s[24:27], s36 offen nt lds' % (L_WG + 1024 * t, t * 8 * 3072))
            for t in range(8):
                a('s_mov_b32 m0, %d\ns_add_u32 s36, s35, %d\nbuffer_load_dwordx4 v5, s[8:11], s36 offen nt lds' % (L_WD + 1024 * t, t * 8 * 1280))
            a('s_setprio 3')
            if NE < 32:
                a('s_waitcnt vmcnt(24)')
                self.lds_inc(L_ST1, 17, 16)
            a('s_waitcnt vmcnt(0)')
            self.lds_inc(L_ST2, 17, 16)
        a.label('L_S_end2')
        if self.stamps:
            r15 = [r for (i, r) in self.stlist if i == self.o['pw']][0]
            a('s_lshl_b32 s92, s2, 8\ns_add_u32 s92, s92, %d\ns_lshl_b32 s93, s3, 3\ns_add_u32 s92, s92, s93\nv_mov_b32 v1, 0\nv_mov_b32 v3, 0\nv_mov_b32 v2, s%d\ns_mov_b64 exec, 1\nbuffer_store_dwordx2 v[2:3], v1, s[16:19], s92 offen\ns_nop 1' % (OFF_STAMP + 160, r15))
            a('s_cmp_lg_u32 s3, 0\ns_cbranch_scc1 L_end')
            self.stamp_flush(self.stlist)
        a('s_endpgm')

    def m_tile_loads(self, vm):
        a = self.a
        a('''
        s_mul_i32 s22, s20, %d
        s_lshl_b32 s23, s21, 7
        s_add_u32 s22, s22, s23
        v_lshrrev_b32 v4, 4, v0
        v_bfe_u32 v5, v0, 3, 1
        v_lshl_add_u32 v4, v5, 2, v4
        v_mul_u32_u24 v4, 7680, v4
        v_and_b32 v5, 7, v0
        v_lshl_add_u32 v4, v5, 4, v4
        s_mul_i32 s24, s20, 320
        v_lshlrev_b32 v5, 1, v0
        buffer_load_ushort v6, v5, s[12:15], s24 offen
        buffer_load_ushort v7, v5, s[12:15], s24 offen offset:128
        buffer_load_ushort v8, v5, s[12:15], s24 offen offset:256
        ''' % (160 * 7680))
        for _ in range(3): vm.issue()
        W = 40; widx = []
        for t in range(20):
            a('s_add_u32 s23, s22, %d\nbuffer_load_dwordx4 v[%d:%d], v4, s[8:11], s23 offen nt' % (t * 8 * 7680, W + 4 * t, W + 4 * t + 3))
            widx.append(vm.issue())
        return widx

    def m_tile_compute(self, vm, widx, LS, wait_init):
        a = self.a; W = 40
        self.sel_masks(16, 9, 10)
        self.pv_addr(1, 9, str(LS))
        vm.wait(2)
        for k in range(3):
            r = 6 + k
            a('v_lshlrev_b32 v%d, 16, v%d\nv_sub_f32 v9, 0, v%d\nv_min_f32 v9, %s, v9\nv_max_f32 v9, %s, v9' % (r, r, r, f32(88.0), f32(-200.0)))
            self.exp(10, 9, 11, 12)
            a('v_add_f32 v10, 1.0, v10')
            self.div(r, r, 10, 11, 12)
            a('v_cvt_pk_bf16_f32 v%d, v%d, v%d' % (r, r, r))
        a('''
        v_lshlrev_b32 v9, 2, v0
        ds_write_b32 v9, v6 offset:%d
        ds_write_b32 v9, v7 offset:%d
        ds_write_b32 v9, v8 offset:%d
        s_waitcnt lgkmcnt(0)
        ds_read_b32 v2, v1 offset:0
        ds_read_b32 v3, v1 offset:32
        ''' % (LS, LS + 256, LS + 512))
        for t in range(20):
            sel = 20 + 4 * (t & 1); pv = 2 + (t & 1)
            a('s_waitcnt lgkmcnt(%d)' % (1 if t < 19 else 0))
            for k in range(4): a('v_and_b32 v%d, v%d, v%d' % (sel + k, pv, 16 + k))
            a('ds_read_b32 v%d, v1 offset:%d' % (pv, 32 * (t + 2)) if t + 2 < 20 else 's_nop 0')
            a('s_nop 0')
            vm.wait(widx[t])
            a('v_mfma_f32_16x16x32_bf16 v[4:7], v[%d:%d], v[%d:%d], %s' % (sel, sel + 3, W + 4 * t, W + 4 * t + 3, '0' if t == 0 else 'v[4:7]'))
        a('''
        v_and_b32 v9, 15, v0
        v_lshrrev_b32 v10, 4, v0
        v_lshlrev_b32 v1, 5, v9
        v_lshl_add_u32 v1, v10, 4, v1
        v_and_b32 v9, 40, v0
        v_cmp_eq_u32 vcc, 0, v9
        v_mov_b32 v10, %s
        s_nop 0
        v_cndmask_b32 v1, v10, v1, vcc
        s_nop 2
        ''' % OOB)
        for r in range(4): a('v_permlane32_swap_b32 v%d, v%d' % (4 + r, 8 + r))
        a('s_nop 1')
        for r in range(4): a('v_add_f32_dpp v%d, v%d, v%d row_ror:8 row_mask:0xf bank_mask:0xf' % (4 + r, 8 + r, 4 + r))
        for r in range(4): a('v_min_u32 v%d, -2, v%d' % (4 + r, 4 + r))
        if wait_init: self.lds_spin(L_INIT, None, 9, 10, sleep=1)
        a('''
        s_mul_i32 s22, s20, 15360
        s_lshl_b32 s23, s21, 8
        s_add_u32 s22, s22, s23
        s_add_u32 s22, s22, %d
        buffer_store_dwordx4 v[4:7], v1, s[16:19], s22 offen sc1
        ''' % OFF_MOD)

    def a0_wave(self):
        a = self.a; vm = VM(a)
        NT = 80 if self.o['rank'] else 240
        a.label('L_A0')
        self.stamp_begin()
        a('s_setprio 2')
        self.srd(8, 68, 640 * 7680); self.srd(12, 66, 1280)
        a('''
        v_lshlrev_b32 v1, 2, v0
        v_mov_b32 v2, 0
        ds_write_b32 v1, v2
        s_cmp_ge_u32 s2, %d
        s_cbranch_scc1 L_A0_bar
        s_and_b32 s20, s2, 3
        s_lshr_b32 s21, s2, 2
        ''' % NT)
        widx = self.m_tile_loads(vm)
        a.label('L_A0_bar')
        a('s_waitcnt lgkmcnt(0)\ns_barrier\ns_cmp_ge_u32 s2, %d\ns_cbranch_scc1 L_A0_stats' % NT)
        self.m_tile_compute(vm, widx, L_S, True)
        self.stamp(1)
        a.label('L_A0_stats')
        self.lds_spin(L_MODE, None, 9, 10, sleep=4)
        a('s_and_b32 s45, s93, 3')
        self.lds_spin(L_CNTST, 8, 9, 10, sleep=2)
        a('v_and_b32 v1, 7, v0\nv_lshlrev_b32 v2, 3, v1\nds_read_b64 v[4:5], v2 offset:%d\ns_waitcnt lgkmcnt(0)' % L_STAT)
        def combine_stats():
            a('v_mov_b32 v6, v4')
            for r in (4, 2, 1): a('s_nop 1\nv_max_f32_dpp v6, v6, v6 row_ror:%d row_mask:0xf bank_mask:0xf' % r)
            a('v_sub_f32 v8, v4, v6\nv_max_f32 v8, %s, v8' % f32(-200.0))
            self.exp(7, 8, 9, 10)
            a('v_mul_f32 v7, v7, v5')
            for r in (4, 2, 1): a('s_nop 1\nv_add_f32_dpp v7, v7, v7 row_ror:%d row_mask:0xf bank_mask:0xf' % r)
        combine_stats()
        a('''
        v_min_u32 v6, -2, v6
        v_min_u32 v7, -2, v7
        s_lshl_b32 s22, s6, 7
        s_add_u32 s22, s22, %d
        v_readfirstlane_b32 s24, v6
        v_readfirstlane_b32 s25, v7
        s_lshl_b32 s23, s7, 10
        s_add_u32 s23, s23, %d
        s_nop 2
        s_atomic_swap_x2 s[24:25], s[74:75], s22
        s_mov_b32 s95, 0
        L_A0_sp:
        ''' % (OFF_ST, OFF_ST))
        for k in range(8): a('s_load_dwordx2 s[%d:%d], s[74:75], s23 offset:%d glc' % (76 + 2 * k, 77 + 2 * k, 128 * k))
        a('s_waitcnt lgkmcnt(0)\ns_max_u32 s26, s76, s77')
        for k in range(2, 16): a('s_max_u32 s26, s26, s%d' % (76 + k))
        a('''
        s_cmp_lg_u32 s26, -1
        s_cbranch_scc1 L_A0_spd
        s_add_u32 s95, s95, 1
        s_cmp_lt_u32 s95, 0x10000
        s_cbranch_scc1 L_A0_sp
        L_A0_spd:
        ''')
        for k in range(8):
            a('v_writelane_b32 v4, s%d, %d\nv_writelane_b32 v4, s%d, %d\nv_writelane_b32 v5, s%d, %d\nv_writelane_b32 v5, s%d, %d' % (76 + 2 * k, k, 76 + 2 * k, k + 8, 77 + 2 * k, k, 77 + 2 * k, k + 8))
        combine_stats()
        a('v_mov_b32 v2, %d\ns_mov_b64 exec, 1\nds_write_b64 v2, v[6:7]\ns_mov_b64 exec, -1\ns_waitcnt lgkmcnt(0)' % L_GSTAT)
        self.lds_set(L_FLAGP, '1', 9, 10)
        self.stamp(3)
        self.stl_a0 = list(self.stlist)
        a('s_branch L_TAIL')

    def a1_wave(self):
        a = self.a; vm = VM(a)
        a.label('L_A1')
        self.stamp_begin()
        a('s_setprio %d' % self.o['a1p'])
        self.srd(8, 54, 640 * 12288); self.srd(12, 48, 1280)
        a('''
        v_lshlrev_b32 v4, 2, v0
        buffer_load_dword v20, v4, s[12:15], 0 offen
        buffer_load_dword v21, v4, s[12:15], 0 offen offset:256
        buffer_load_dword v22, v4, s[12:15], 0 offen offset:512
        buffer_load_dword v23, v4, s[12:15], 0 offen offset:768
        buffer_load_dword v24, v4, s[12:15], 0 offen offset:1024
        v_min_u32 v1, 19, v0
        v_lshlrev_b32 v4, 3, v1
        s_mul_i32 s20, s46, 160
        buffer_load_dwordx2 v[26:27], v4, s[12:15], s20 offen
        ''')
        for _ in range(6): vm.issue()
        self.vshape_offsets(2, 3, 4, 5, 12288)
        a('s_barrier\ns_mul_i32 s20, s46, %d\ns_mul_i32 s21, s7, 384\ns_add_u32 s20, s20, s21' % (80 * 12288))
        W = 40
        for t in range(10):
            a('s_add_u32 s21, s20, %d\ns_add_u32 s22, s20, %d' % (t * 8 * 12288, (t * 8 + 4) * 12288))
            for ty in range(3):
                r = W + (t * 3 + ty) * 4
                vm.throttle(self.o['a1d'])
                a('buffer_load_dwordx4 v[%d:%d], v%d, s[8:11], s%d offen nt' % (r, r + 3, 3 if ty == 2 else 2, 22 if ty == 1 else 21))
                vm.issue()
        a('s_setprio 2')
        vm.wait(5)
        for k in range(5):
            a('v_lshlrev_b32 v%d, 16, v%d\nv_and_b32 v%d, 0xffff0000, v%d' % (28 + 2 * k, 20 + k, 29 + 2 * k, 20 + k))
        vals = list(range(28, 38)); vmu, vden = 38, 39
        a('v_add_f32 v%d, v%d, v%d' % (vmu, vals[0], vals[1]))
        for v in vals[2:]: a('v_add_f32 v%d, v%d, v%d' % (vmu, vmu, v))
        self.wave_reduce(vmu, 4, 'add')
        a('v_mul_f32 v%d, %s, v%d' % (vmu, f32(1.0 / 640), vmu))
        a('v_sub_f32 v4, v%d, v%d\nv_mul_f32 v%d, v4, v4' % (vals[0], vmu, vden))
        for v in vals[1:]: a('v_sub_f32 v4, v%d, v%d\nv_fmac_f32 v%d, v4, v4' % (v, vmu, vden))
        self.wave_reduce(vden, 4, 'add')
        a('v_mul_f32 v%d, %s, v%d' % (vden, f32(1.0 / 640), vden))
        self.rnd(vden, vden)
        a('v_add_f32 v%d, %s, v%d' % (vden, f32(1e-5), vden))
        self.rnd(vden, vden)
        a('v_sqrt_f32 v%d, v%d\ns_nop 0' % (vden, vden))
        self.rnd(vden, vden); self.rnd(vmu, vmu)
        a('''
        v_lshlrev_b32 v28, 16, v26
        v_and_b32 v29, 0xffff0000, v26
        v_lshlrev_b32 v30, 16, v27
        v_and_b32 v31, 0xffff0000, v27
        v_rcp_f32 v32, v39
        ''')
        for k in range(4):
            x = 28 + k
            a('v_sub_f32 v%d, v%d, v38' % (x, x)); self.rnd(x, x)
            a('v_mul_f32 v33, v%d, v32\nv_fma_f32 v34, -v33, v39, v%d\nv_fma_f32 v%d, v34, v32, v33' % (x, x, x)); self.rnd(x, x)
        self.pv_addr(35, 33, str(L_H))
        self.vshape_off(36, 33, 34)
        self.lds_spin(L_MODE, None, 4, 5, sleep=4)
        a('''
        s_and_b32 s45, s93, 3
        s_mul_i32 s20, s46, 320
        s_add_u32 s20, s20, %d
        s_add_u32 s21, s20, 15360
        s_add_u32 s22, s20, 30720
        s_add_u32 s23, s20, 46080
        v_lshlrev_b32 v2, 4, v1
        ''' % OFF_MOD)
        g = [4, 8, 12, 16, 20, 24, 160, 164]
        loads = []
        for rs in range(4):
            loads.append('buffer_load_dwordx4 v[%d:%d], v2, s[16:19], s%d offen' % (g[rs], g[rs] + 3, 20 + rs))
            loads.append('buffer_load_dwordx4 v[%d:%d], v2, s[16:19], s%d offen offset:2560' % (g[4 + rs], g[4 + rs] + 3, 20 + rs))
        self.poll(loads, [b + k for b in g for k in range(4)], 33, sleep=2)
        self.stamp(14)
        for h in range(2):
            k = 2 * h
            a('''
            v_pk_add_f32 v[%d:%d], v[%d:%d], v[%d:%d]
            v_pk_add_f32 v[%d:%d], v[%d:%d], v[%d:%d]
            v_pk_add_f32 v[%d:%d], v[%d:%d], v[%d:%d]
            v_pk_add_f32 v[%d:%d], v[%d:%d], v[%d:%d]
            v_pk_add_f32 v[%d:%d], v[%d:%d], v[%d:%d]
            v_pk_add_f32 v[%d:%d], v[%d:%d], v[%d:%d]
            ''' % (4 + k, 5 + k, 4 + k, 5 + k, 8 + k, 9 + k, 12 + k, 13 + k, 12 + k, 13 + k, 16 + k, 17 + k,
                   20 + k, 21 + k, 20 + k, 21 + k, 24 + k, 25 + k, 160 + k, 161 + k, 160 + k, 161 + k, 164 + k, 165 + k,
                   4 + k, 5 + k, 4 + k, 5 + k, 12 + k, 13 + k, 20 + k, 21 + k, 20 + k, 21 + k, 160 + k, 161 + k))
        for k in range(4):
            self.rnd(4 + k, 4 + k); self.rnd(20 + k, 20 + k)
            a('v_add_f32 v%d, 1.0, v%d' % (20 + k, 20 + k)); self.rnd(20 + k, 20 + k)
            a('v_mul_f32 v%d, v%d, v%d' % (28 + k, 28 + k, 20 + k)); self.rnd(28 + k, 28 + k)
            a('v_add_f32 v%d, v%d, v%d\nv_cvt_pk_bf16_f32 v%d, v%d, v%d' % (28 + k, 28 + k, 4 + k, 28 + k, 28 + k, 28 + k))
        a('ds_write_b128 v2, v[28:31] offset:%d' % L_H)
        self.sel_masks(16, 33, 34)
        a('s_waitcnt lgkmcnt(0)\nds_read_b32 v2, v35 offset:0\nds_read_b32 v3, v35 offset:32')
        for t in range(10):
            sel = 20 + 4 * (t & 1); pv = 2 + (t & 1)
            a('s_waitcnt lgkmcnt(%d)' % (1 if t < 9 else 0))
            for k in range(4): a('v_and_b32 v%d, v%d, v%d' % (sel + k, pv, 16 + k))
            a('ds_read_b32 v%d, v35 offset:%d' % (pv, 32 * (t + 2)) if t + 2 < 10 else 's_nop 0')
            a('s_nop 0')
            for ty in range(3):
                acc = 4 + 4 * ty; r = W + (t * 3 + ty) * 4
                a('v_mfma_f32_16x16x32_bf16 v[%d:%d], v[%d:%d], v[%d:%d], %s' % (acc, acc + 3, sel, sel + 3, r, r + 3, '0' if t == 0 else 'v[%d:%d]' % (acc, acc + 3)))
        a('s_mul_i32 s21, s6, 768\ns_add_u32 s21, s21, %d\ns_nop 7' % OFF_Q)
        self.vshape_combine(4, 8, 12)
        self.store_intra(['buffer_store_dwordx4 v[4:7], v36, s[16:19], s21 offen'])
        a('''
        s_mul_i32 s21, s7, 6144
        s_add_u32 s21, s21, %d
        s_add_u32 s22, s21, 3072
        v_min_u32 v1, 47, v0
        v_lshlrev_b32 v2, 4, v1
        ''' % OFF_Q)
        loads = ['buffer_load_dwordx4 v[%d:%d], v2, s[16:19], s%d offen offset:%d' % (40 + 4 * p, 43 + 4 * p, 21 + p // 4, (p % 4) * 768) for p in range(8)]
        self.poll(loads, list(range(40, 72)), 33, sleep=1)
        for k in (0, 2):
            for st in (1, 2, 4):
                for p in range(0, 8, 2 * st):
                    a('v_pk_add_f32 v[%d:%d], v[%d:%d], v[%d:%d]' % (40 + 4 * p + k, 41 + 4 * p + k, 40 + 4 * p + k, 41 + 4 * p + k, 40 + 4 * (p + st) + k, 41 + 4 * (p + st) + k))
        a('''
        v_cvt_pk_bf16_f32 v4, v40, v41
        v_cvt_pk_bf16_f32 v5, v42, v43
        v_lshlrev_b32 v2, 3, v1
        ds_write_b64 v2, v[4:5] offset:%d
        s_waitcnt lgkmcnt(0)
        ''' % L_Q)
        self.lds_set(L_FLAGQ, '1', 9, 10)
        self.stamp(2)
        self.stl_a1 = list(self.stlist)
        a('s_branch L_TAIL')

    def a2_wave(self):
        a = self.a
        a.label('L_A2')
        self.stamp_begin()
        a('s_setprio 3')
        self.srd(12, 48, 1280)
        a('v_mov_b32 v4, -1\nv_mov_b32 v5, -1\nv_mov_b32 v6, -1\nv_mov_b32 v7, -1\nv_lshlrev_b32 v1, 4, v0')
        def init(base_expr, nbytes, pol):
            a(base_expr)
            m = (1 << (nbytes // 16)) - 1
            a('s_mov_b32 exec_lo, 0x%x\ns_mov_b32 exec_hi, 0x%x' % (m & 0xffffffff, m >> 32))
            a('buffer_store_dwordx4 v[4:7], v1, s[16:19], s20 offen %s\ns_mov_b64 exec, -1' % pol)
        def slot(off, gstride, n, sz):
            return 's_min_u32 s21, s5, %d\ns_mul_i32 s21, s21, %d\ns_mul_i32 s20, s4, %d\ns_add_u32 s20, s20, s21\ns_add_u32 s20, s20, %d' % (n - 1, sz, gstride, off)
        def init_intra(pol):
            init('s_mul_i32 s20, s6, 768\ns_add_u32 s20, s20, %d' % OFF_Q, 768, pol)
            init('s_mul_i32 s20, s6, 768\ns_add_u32 s20, s20, %d' % OFF_O, 768, pol)
            init(slot(OFF_H, 2560, 20, 128), 128, pol)
            init(slot(OFF_C, 2560, 20, 128), 128, pol)
            init(slot(OFF_G, 7680, 30, 256), 256, pol)
        def fanout(word):
            a('''
            v_mov_b32 v10, s35
            v_lshlrev_b32 v8, 7, v0
            s_lshl_b32 s20, s4, 12
            s_add_u32 s20, s20, %d
            s_mov_b32 exec_hi, 0
            buffer_store_dword v10, v8, s[16:19], s20 offen sc1
            s_mov_b64 exec, -1
            ''' % (OFF_MB + 4 * word))
        def toppoll(off):
            l = a.newlabel('TP'); l2 = a.newlabel('TPD')
            a('s_mov_b32 s95, 0'); a.label(l)
            a('''
            s_and_b32 s36, s35, 0xffff
            s_cmp_eq_u32 s36, 8
            s_cbranch_scc1 %s
            s_load_dword s35, s[72:73], 0x%x glc
            s_waitcnt lgkmcnt(0)
            s_add_u32 s95, s95, 1
            s_cmp_lt_u32 s95, 0x10000
            s_cbranch_scc1 %s
            ''' % (l2, off, l))
            a.label(l2)
        init('s_lshl_b32 s20, s6, 7\ns_add_u32 s20, s20, %d' % OFF_MB, 16, 'sc1')
        init('s_lshl_b32 s20, s6, 7\ns_add_u32 s20, s20, %d' % OFF_ST, 16, 'sc1')
        init('s_min_u32 s22, s2, 239\ns_and_b32 s20, s22, 3\ns_mul_i32 s20, s20, 15360\ns_lshr_b32 s21, s22, 2\ns_lshl_b32 s21, s21, 8\ns_add_u32 s20, s20, s21\ns_add_u32 s20, s20, %d\ns_cmp_ge_u32 s2, 240\ns_cselect_b32 s20, %d, s20' % (OFF_MOD, OOB), 256, 'sc1')
        self.roles()
        self.xbase(67)
        self.pub_off(20, 21, '0')
        a('''
        s_add_u32 s20, s20, s67
        s_cmp_ge_u32 s5, 30
        s_cselect_b32 s20, %d, s20
        v_lshrrev_b32 v8, 5, v0
        v_lshlrev_b32 v8, 19, v8
        v_bfe_u32 v9, v0, 4, 1
        v_lshl_add_u32 v8, v9, 13, v8
        v_bfe_u32 v9, v0, 3, 1
        v_lshl_add_u32 v8, v9, 14, v8
        v_bfe_u32 v9, v0, 2, 1
        v_lshl_add_u32 v8, v9, 7, v8
        v_and_b32 v9, 3, v0
        v_lshl_add_u32 v8, v9, 4, v8
        buffer_store_dwordx4 v[4:7], v8, s[16:19], s20 offen sc1
        ''' % 0x40000000)
        init_intra('')
        a('''
        s_barrier
        s_getreg_b32 s20, hwreg(HW_REG_XCC_ID)
        s_and_b32 s20, s20, 7
        s_lshl_b32 s22, s20, 3
        s_lshl_b64 s[32:33], 1, s22
        s_lshl_b32 s21, s4, 5
        s_mov_b64 s[34:35], s[32:33]
        s_waitcnt vmcnt(0)
        s_atomic_add_x2 s[34:35], s[72:73], s21 glc
        ''')
        self.lds_set(L_INIT, '1', 9, 12)
        a('''
        s_waitcnt lgkmcnt(0)
        s_add_u32 s34, s34, s32
        s_addc_u32 s35, s35, s33
        v_mov_b32 v10, s34
        v_mov_b32 v11, s35
        v_sad_u8 v12, v10, 0, 0
        v_sad_u8 v12, v11, 0, v12
        s_nop 0
        v_readfirstlane_b32 s36, v12
        ''')
        self.stamp(16)
        a('''
        s_nop 3
        s_cmp_lg_u32 s36, 32
        s_cbranch_scc1 L_A2_mb
        s_or_b32 s34, s34, s35
        s_and_b32 s34, s34, 0xdfdfdfdf
        s_cmp_lg_u32 s34, 0
        s_cselect_b32 s34, 0x10001, 1
        s_mov_b32 s35, s34
        s_atomic_add s35, s[72:73], 0x8 glc
        s_waitcnt lgkmcnt(0)
        s_and_b32 s23, s35, 7
        s_lshl_b32 s23, s23, 8
        s_add_u32 s35, s35, s34
        ''')
        toppoll(0x8)
        a('s_lshr_b32 s35, s35, 16\ns_cmp_lg_u32 s35, 0\ns_cselect_b32 s35, 2, 1\ns_or_b32 s35, s35, s23')
        fanout(0)
        a.label('L_A2_mb')
        self.mbpoll(0)
        a('s_and_b32 s97, s33, 0x700\ns_and_b32 s33, s33, 3\ns_cmp_eq_u32 s33, 1\ns_cselect_b32 s45, 1, 2')
        if self.o['force_slow']: a('s_mov_b32 s45, 2')
        a('s_cmp_eq_u32 s45, 1\ns_cbranch_scc1 L_A2_fast')
        init_intra('sc1')
        a('''
        s_mov_b32 s34, 1
        s_lshl_b32 s21, s4, 5
        s_add_u32 s21, s21, 16
        s_waitcnt vmcnt(0)
        s_atomic_add s34, s[72:73], s21 glc
        s_waitcnt lgkmcnt(0)
        s_cmp_lg_u32 s34, 31
        s_cbranch_scc1 L_A2_mb2
        s_mov_b32 s35, 1
        s_atomic_add s35, s[72:73], 0x18 glc
        s_waitcnt lgkmcnt(0)
        s_add_u32 s35, s35, 1
        ''')
        toppoll(0x18)
        a('s_mov_b32 s35, 1')
        fanout(1)
        a.label('L_A2_mb2')
        self.mbpoll(1, sleep=2)
        a.label('L_A2_fast')
        a('s_or_b32 s97, s97, s45')
        self.lds_set(L_MODE, 's97', 9, 10)
        self.stamp(13)
        self.red_addrs()
        a('''
        s_lshr_b32 s68, s5, 8
        s_cmp_ge_u32 s5, 20
        s_cbranch_scc1 L_TAIL
        s_lshl_b32 s20, s5, 7
        s_add_u32 s20, s20, %d
        s_add_u32 s21, s20, 15360
        s_add_u32 s22, s20, 30720
        s_add_u32 s23, s20, 46080
        v_lshlrev_b32 v25, 2, v24
        v_add_u32 v26, 5120, v25
        v_add_u32 v27, 10240, v25
        s_lshl_b32 s32, s5, 6
        v_lshlrev_b32 v28, 1, v24
        buffer_load_ushort v30, v28, s[12:15], s32 offen
        ''' % OFF_MOD)
        loads = []
        for rs in range(4):
            loads.append('buffer_load_dword v%d, v26, s[16:19], s%d offen' % (4 + rs, 20 + rs))
            loads.append('buffer_load_dword v%d, v26, s[16:19], s%d offen offset:2560' % (8 + rs, 20 + rs))
            loads.append('buffer_load_dword v%d, v27, s[16:19], s%d offen' % (12 + rs, 20 + rs))
            loads.append('buffer_load_dword v%d, v27, s[16:19], s%d offen offset:2560' % (16 + rs, 20 + rs))
        self.poll(loads, list(range(4, 20)), 20, sleep=8)
        for n, dst in enumerate((31, 32, 33, 34)):
            b = 4 + 4 * n
            a('v_add_f32 v%d, v%d, v%d\nv_add_f32 v%d, v%d, v%d\nv_add_f32 v%d, v%d, v%d' % (b, b, b + 1, b + 2, b + 2, b + 3, dst, b, b + 2))
            self.rnd(dst, dst)
        a('''
        v_add_f32 v33, 1.0, v33
        v_cvt_pk_bf16_f32 v33, v33, v32
        v_min_u32 v33, -2, v33
        v_lshlrev_b32 v30, 16, v30
        s_mul_i32 s21, s4, 2560
        s_lshl_b32 s22, s5, 7
        s_add_u32 s21, s21, s22
        s_add_u32 s21, s21, %d
        ''' % OFF_C)
        self.store_intra(['buffer_store_dword v33, v38, s[16:19], s21 offen'])
        if self.o['near'] == 1:
            a('''
            s_lshl_b32 s20, s5, 14
            s_add_u32 s20, s20, s67
            s_lshl_b32 s21, s4, 7
            s_add_u32 s20, s20, s21
            s_add_u32 s20, s20, 6144
            s_add_u32 s21, s20, 8192
            s_mov_b32 s22, -1
            s_mov_b32 s23, -1
            s_mov_b32 s95, 0
            L_A2_ms:
            s_memtime s[24:25]
            s_waitcnt lgkmcnt(0)
            s_load_dword s32, s[74:75], s20 glc
            s_waitcnt lgkmcnt(0)
            s_memtime s[26:27]
            s_waitcnt lgkmcnt(0)
            s_load_dword s32, s[74:75], s21 glc
            s_waitcnt lgkmcnt(0)
            s_memtime s[34:35]
            s_waitcnt lgkmcnt(0)
            s_sub_u32 s24, s26, s24
            s_sub_u32 s26, s34, s26
            s_min_u32 s22, s22, s24
            s_min_u32 s23, s23, s26
            s_add_u32 s95, s95, 1
            s_cmp_lt_u32 s95, %d
            s_cbranch_scc1 L_A2_ms
            s_cmp_lt_u32 s23, s22
            s_cselect_b32 s68, 8192, 0
            ''' % self.o['nms'])
        elif self.o['near'] == 2:
            a('s_mov_b32 s68, 8192')
        self.stl_a2 = list(self.stlist)
        a('s_branch L_TAIL')

    def a3_wave(self):
        a = self.a; vm = VM(a); NE = self.o['ne']
        a.label('L_A3')
        self.stamp_begin()
        a('s_setprio 2\ns_barrier')
        self.lds_spin(L_MODE, None, 4, 5, sleep=4)
        a('s_and_b32 s45, s93, 3')
        if self.o['rank']:
            R = self.o['rank']
            per = 160 // R
            self.srd(8, 68, 640 * 7680); self.srd(12, 66, 1280)
            a('''
            s_lshr_b32 s20, s93, 8
            s_cmp_ge_u32 s20, %d
            s_cbranch_scc1 L_A3_nomt
            s_cmp_ge_u32 s5, %d
            s_cbranch_scc1 L_A3_nomt
            s_mul_i32 s20, s20, %d
            s_add_u32 s20, s20, s5
            s_lshr_b32 s21, s20, 2
            s_add_u32 s21, s21, 20
            s_and_b32 s20, s20, 3
            ''' % (R, per, per))
            vm2 = VM(a)
            widx = self.m_tile_loads(vm2)
            self.m_tile_compute(vm2, widx, L_S2, False)
            a.label('L_A3_nomt')
        a('s_cmp_ge_u32 s5, 30\ns_cbranch_scc1 L_end')
        if NE:
            self.roles(); self.tile_bases()
            self.srd(12, 56, 6144 * 1280)
            a('v_lshrrev_b32 v3, 3, v0\nv_and_b32 v4, 7, v0\nv_mul_u32_u24 v2, 1280, v3\nv_lshl_add_u32 v2, v4, 4, v2')
            for t in range(NE):
                vm.throttle(self.o['adepth'])
                a('s_mov_b32 m0, %d\ns_add_u32 s36, s33, %d\nbuffer_load_dwordx4 v2, s[12:15], s36 offen nt lds' % (L_WO + 1024 * t, t * 8 * 1280))
                vm.issue()
            vm.all()
            self.lds_inc(L_ST1, 4, 5)
        self.stamp(19)
        self.stl_a3 = list(self.stlist)

    def nat_gemv(self, n, W, actaddr, lbase, acc, areg):
        a = self.a
        for m in range(n):
            a('ds_read_b128 v[%d:%d], v%d offset:%d' % (areg + 4 * m, areg + 4 * m + 3, actaddr, lbase + 64 * m))
        for m in range(n):
            a('s_waitcnt lgkmcnt(%d)' % (n - 1 - m))
            a('v_mfma_f32_16x16x32_bf16 v[%d:%d], v[%d:%d], v[%d:%d], %s' % (acc, acc + 3, areg + 4 * m, areg + 4 * m + 3, W + 4 * m, W + 4 * m + 3, '0' if m == 0 else 'v[%d:%d]' % (acc, acc + 3)))
        a('s_nop 7\nv_min_u32 v%d, -2, v%d' % (acc, acc))

    def gather24(self, sb):
        a = self.a
        self.poll(['buffer_load_dwordx4 v[%d:%d], v37, s[16:19], s%d offen offset:%d' % (4 + 4 * k, 7 + 4 * k, sb, 256 * k) for k in range(3)], list(range(4, 16)), 20)
        a('''
        v_pk_add_f32 v[4:5], v[4:5], v[8:9]
        v_pk_add_f32 v[6:7], v[6:7], v[10:11]
        v_pk_add_f32 v[4:5], v[4:5], v[12:13]
        v_pk_add_f32 v[6:7], v[6:7], v[14:15]
        ''')
        self.red8([4, 5, 6, 7])

    def tail(self):
        a = self.a; NE = self.o['ne']
        ST1_T = (1 if NE < 32 else 0) + (1 if NE else 0)
        self.tl = []
        a.label('L_TAIL')
        a('s_setprio %d\ns_cmp_ge_u32 s5, 30\ns_cbranch_scc1 L_T_end\ns_sub_u32 s81, s3, 8' % self.o['tp'])
        self.roles()
        self.srd(28, 70, 1280)
        self.red_addrs()
        WO, WG, WD = 40, 72, 88
        self.xbase(67)
        self.pub_off(84, 20, 's81')
        a('s_add_u32 s84, s84, s67\ns_cmp_eq_u32 s81, 2\ns_cselect_b32 s68, s68, 0')
        a('''
        s_lshl_b32 s20, s77, 8
        s_lshl_b32 s21, s81, 6
        s_add_u32 s20, s20, s21
        v_add_u32 v4, s20, v0                    ; R' = 256 rb + 64 a + l
        v_mul_u32_u24 v5, 1366, v4
        v_lshrrev_b32 v5, 18, v5
        v_mul_u32_u24 v5, 5376, v5
        v_lshl_add_u32 v96, v4, 2, v5            ; H1 gather lane offset
        s_mul_i32 s82, s4, 24576
        s_add_u32 s82, s82, %d
        s_add_u32 s83, s82, 4608
        s_lshl_b32 s20, s81, 7
        v_lshl_add_u32 v97, v0, 1, s20           ; L_OB write addr
        v_lshrrev_b32 v98, 4, v0
        v_lshlrev_b32 v98, 4, v98                ; act read addr: 16 g
        s_lshl_b32 s20, s81, 8
        v_add_u32 v99, s20, v98
        s_lshl_b32 s21, s81, 7
        v_add_u32 v100, s21, v98
        v_lshl_add_u32 v101, v0, 2, s20          ; L_H2 write addr
        v_lshl_add_u32 v102, v0, 1, s21          ; L_GU write addr
        v_cmp_gt_u32 vcc, 16, v0
        v_mov_b32 v5, %s
        v_lshlrev_b32 v103, 2, v0
        v_cndmask_b32 v104, v5, v103, vcc        ; result store offset (lanes<16)
        v_lshlrev_b32 v105, 4, v0
        v_lshlrev_b32 v106, 3, v0
        s_lshl_b32 s20, s81, 6
        s_add_u32 s85, s84, %d                   ; B_f publish (copy A)
        s_add_u32 s84, s84, %d                   ; B_x publish (copy A)
        s_add_u32 s53, s84, 8192                 ; copy B
        s_add_u32 s54, s85, 8192
        s_mul_i32 s86, s4, 2560
        s_lshl_b32 s21, s78, 9
        s_add_u32 s87, s86, s21
        s_add_u32 s88, s87, %d                   ; B_c own rows
        s_add_u32 s87, s87, %d                   ; B_h own rows
        s_add_u32 s86, s86, %d                   ; B_h group base
        s_mul_i32 s89, s4, 7680
        s_add_u32 s89, s89, %d
        s_mul_i32 s48, s79, 5
        s_add_u32 s48, s48, s78
        s_mul_i32 s48, s48, 768
        s_lshl_b32 s21, s80, 8
        s_add_u32 s48, s48, s21
        s_add_u32 s48, s48, s20
        s_add_u32 s48, s48, s89                  ; B_g publish
        s_lshl_b32 s49, s77, 8
        s_add_u32 s49, s49, s89                  ; B_g gather (g)
        s_add_u32 s50, s49, 3840                 ; (u)
        s_lshl_b32 s52, s5, 14
        s_add_u32 s52, s52, s67
        s_add_u32 s52, s52, s68                  ; near copy
        s_add_u32 s55, s52, %d                   ; gather24 F base
        s_add_u32 s52, s52, %d                   ; gather24 X base
        s_lshl_b32 s51, s5, 7
        s_add_u32 s51, s51, s86                  ; B_h publish
        s_mov_b32 s66, s60
        s_lshl_b32 s60, s5, 6                    ; out offset
        s_cmp_eq_u32 s81, 2
        s_cselect_b32 s20, 1, 0
        s_cmp_lt_u32 s5, 20
        s_cselect_b32 s21, 1, 0
        s_and_b32 s58, s20, s21                  ; reducer?
        s_and_b32 s21, s5, 7
        s_cmp_eq_u32 s21, s4
        s_cselect_b32 s21, 1, 0
        s_and_b32 s59, s58, s21                  ; final?
        v_lshrrev_b32 v4, 4, v0
        v_bfe_u32 v5, v0, 2, 2
        v_lshl_add_u32 v4, v4, 3, v5
        v_lshlrev_b32 v4, 7, v4
        v_and_b32 v5, 3, v0
        v_lshl_add_u32 v4, v5, 3, v4
        s_lshl_b32 s20, s81, 5
        v_add_u32 v4, s20, v4
        v_add_u32 v107, %d, v4                   ; tr addr (gate/up, down)
        v_add_u32 v114, %d, v4                   ; tr addr (wo)
        v_mov_b32 v115, %d
        v_mov_b32 v21, %d
        v_mov_b32 v22, 1
        ''' % (OFF_O, OOB, OFF_F, OFF_X, OFF_C, OFF_H, OFF_H, OFF_G, OFF_F, OFF_X, L_WG, L_WO, L_ST1, L_CNTO))
        def tr1():
            for m in range(8):
                a('ds_read_b64_tr_b16 v[%d:%d], v114 offset:%d' % (WO + 4 * m, WO + 4 * m + 1, 4096 * m))
                a('ds_read_b64_tr_b16 v[%d:%d], v114 offset:%d' % (WO + 4 * m + 2, WO + 4 * m + 3, 4096 * m + 512))
                if m == 3: a('s_waitcnt lgkmcnt(0)')
        def tr2():
            for m in range(4):
                a('ds_read_b64_tr_b16 v[%d:%d], v107 offset:%d' % (WG + 4 * m, WG + 4 * m + 1, 4096 * m))
                a('ds_read_b64_tr_b16 v[%d:%d], v107 offset:%d' % (WG + 4 * m + 2, WG + 4 * m + 3, 4096 * m + 512))
            for m in range(2):
                a('ds_read_b64_tr_b16 v[%d:%d], v107 offset:%d' % (WD + 4 * m, WD + 4 * m + 1, 16384 + 4096 * m))
                a('ds_read_b64_tr_b16 v[%d:%d], v107 offset:%d' % (WD + 4 * m + 2, WD + 4 * m + 3, 16384 + 4096 * m + 512))
        self.poll(['buffer_load_dwordx2 v[108:109], v106, s[16:19], s88 offen'], [108, 109], 20, sleep=8)
        a('''
        v_lshlrev_b32 v110, 16, v108
        v_and_b32 v111, 0xffff0000, v108
        v_lshlrev_b32 v112, 16, v109
        v_and_b32 v113, 0xffff0000, v109
        ''')
        if self.o['stg']:
            assert NE == 32
            a('s_cmp_lg_u32 s81, 3\ns_cbranch_scc1 L_T_nodma')
            self.tile_bases()
            a('''
            s_cmp_eq_u32 s79, 0
            s_cselect_b32 s24, s66, s62
            s_cselect_b32 s25, s61, s63
            s_mov_b32 s26, %d
            s_mov_b32 s27, 0x20000
            ''' % (640 * 3072))
            self.srd(8, 64, 1536 * 1280)
            a('''
            v_lshrrev_b32 v6, 3, v0
            v_and_b32 v7, 7, v0
            v_mul_u32_u24 v1, 3072, v6
            v_lshl_add_u32 v1, v7, 4, v1
            v_mul_u32_u24 v2, 1280, v6
            v_lshl_add_u32 v2, v7, 4, v2
            ''')
            self.lds_spin(L_CNTIS, 8, 8, 9, sleep=1)
            for t in range(16):
                a('s_mov_b32 m0, %d\ns_add_u32 s36, s34, %d\nbuffer_load_dwordx4 v1, s[24:27], s36 offen nt lds' % (L_WG + 1024 * t, t * 8 * 3072))
            for t in range(8):
                a('s_mov_b32 m0, %d\ns_add_u32 s36, s35, %d\nbuffer_load_dwordx4 v2, s[8:11], s36 offen nt lds' % (L_WD + 1024 * t, t * 8 * 1280))
            a.label('L_T_nodma')
        self.lds_spin(L_CNTPV, 8, 4, 5, sleep=1)
        h1loads = ['buffer_load_dword v%d, v96, s[16:19], s%d offen offset:%d' % (4 + jj, 82 if jj < 6 else 83, (jj if jj < 6 else jj - 6) * 768) for jj in range(8)]
        def h1post():
            a('''
            v_pk_add_f32 v[4:5], v[4:5], v[6:7]
            v_pk_add_f32 v[8:9], v[8:9], v[10:11]
            v_pk_add_f32 v[4:5], v[4:5], v[8:9]
            v_add_f32 v4, v4, v5
            v_cvt_pk_bf16_f32 v4, v4, v4
            ds_write_b16 v97, v4 offset:%d
            s_waitcnt lgkmcnt(0)
            s_mov_b64 exec, 1
            ds_add_u32 v21, v22
            s_mov_b64 exec, -1
            ''' % L_OB)
        a('s_mov_b32 s95, 0')
        a.label('L_T_pa')
        for i in h1loads: a(i + ' sc1')
        a('ds_read_b32 v12, v115\ns_waitcnt vmcnt(0) lgkmcnt(0)\nv_readfirstlane_b32 s93, v12')
        self.chk(list(range(4, 12)), 20)
        a('''
        s_cbranch_vccz L_T_px
        s_cmp_eq_u32 s93, %d
        s_cbranch_scc1 L_T_py
        s_add_u32 s95, s95, 1
        s_cmp_lt_u32 s95, 0x10000
        s_cbranch_scc1 L_T_pa
        L_T_px:
        ''' % ST1_T)
        h1post()
        self.lds_spin(L_ST1, ST1_T, 6, 5, sleep=0)
        tr1()
        a('s_branch L_T_pz')
        a.label('L_T_py')
        tr1()
        self.poll(h1loads, list(range(4, 12)), 20)
        h1post()
        a.label('L_T_pz')
        self.tstamp(5)
        self.lds_spin(L_CNTO, 4, 6, 5, sleep=0)
        self.nat_gemv(8, WO, 98, L_OB, 4, 116)
        xp = self.o['xpol'].replace('+', ' ')
        a('buffer_store_dword v4, v104, s[16:19], s84 offen %s\nbuffer_store_dword v4, v104, s[16:19], s53 offen %s' % (xp, xp))
        self.tstamp(6)
        if not self.o['stg']: self.lds_spin(L_ST2, 1, 6, 5, sleep=0)
        tr2()
        a('s_cmp_eq_u32 s58, 0\ns_cbranch_scc1 L_T_h2c')
        self.gather24(52)
        self.rnd(4, 4)
        a('v_mul_f32 v4, v31, v4')
        self.rnd(4, 4)
        a('v_add_f32 v4, v30, v4')
        self.rnd(32, 4)
        self.store_intra(['buffer_store_dword v32, v38, s[16:19], s51 offen'])
        self.tstamp(8)
        a.label('L_T_h2c')
        self.poll(['buffer_load_dwordx4 v[4:7], v105, s[16:19], s86 offen',
                   'buffer_load_dwordx4 v[8:11], v105, s[16:19], s86 offen offset:1024',
                   'buffer_load_dwordx2 v[12:13], v106, s[16:19], s86 offen offset:2048',
                   'buffer_load_dwordx2 v[14:15], v106, s[16:19], s87 offen'], list(range(4, 16)), 20)
        self.tstamp(9)
        a('v_readfirstlane_b32 s20, v4\ns_nop 1')
        for k in range(10): a('v_subrev_f32 v%d, s20, v%d' % (4 + k, 4 + k))
        a('''
        v_pk_mul_f32 v[16:17], v[4:5], v[4:5]
        v_pk_add_f32 v[18:19], v[4:5], v[6:7]
        v_pk_fma_f32 v[16:17], v[6:7], v[6:7], v[16:17]
        v_pk_add_f32 v[18:19], v[18:19], v[8:9]
        v_pk_fma_f32 v[16:17], v[8:9], v[8:9], v[16:17]
        v_pk_add_f32 v[18:19], v[18:19], v[10:11]
        v_pk_fma_f32 v[16:17], v[10:11], v[10:11], v[16:17]
        v_pk_add_f32 v[18:19], v[18:19], v[12:13]
        v_pk_fma_f32 v[16:17], v[12:13], v[12:13], v[16:17]
        v_add_f32 v18, v18, v19
        v_add_f32 v16, v16, v17
        s_nop 1
        v_permlane32_swap_b32 v18, v16
        v_add_f32 v18, v18, v16
        ''')
        for r in (8, 4, 2, 1): a('s_nop 1\nv_add_f32_dpp v18, v18, v18 row_ror:%d row_mask:0xf bank_mask:0xf' % r)
        a('''
        v_mov_b32 v16, v18
        s_nop 1
        v_permlane16_swap_b32 v18, v16
        v_add_f32 v18, v18, v16
        v_mul_f32 v18, %s, v18
        s_nop 0
        v_readlane_b32 s21, v18, 0
        v_readlane_b32 s22, v18, 32
        s_nop 1
        v_mov_b32 v16, s21
        v_mov_b32 v17, s22
        v_fma_f32 v17, -v16, v16, v17
        v_max_f32 v17, 0, v17
        v_add_f32 v16, s20, v16
        ''' % f32(1.0 / 640))
        self.rnd(17, 17)
        a('v_add_f32 v17, %s, v17' % f32(1e-5))
        self.rnd(17, 17)
        a('v_sqrt_f32 v17, v17')
        self.rnd(16, 16)
        self.rnd(17, 17)
        a('''
        v_rcp_f32 v18, v17
        v_sub_f32 v14, v14, v16
        v_sub_f32 v15, v15, v16
        v_cvt_pk_bf16_f32 v19, v14, v15
        v_lshlrev_b32 v14, 16, v19
        v_and_b32 v15, 0xffff0000, v19
        v_mul_f32 v4, v14, v18
        v_mul_f32 v5, v15, v18
        v_fma_f32 v6, -v4, v17, v14
        v_fma_f32 v7, -v5, v17, v15
        v_fma_f32 v14, v6, v18, v4
        v_fma_f32 v15, v7, v18, v5
        v_cvt_pk_bf16_f32 v19, v14, v15
        v_lshlrev_b32 v14, 16, v19
        v_and_b32 v15, 0xffff0000, v19
        v_mul_f32 v14, v14, v110
        v_mul_f32 v15, v15, v112
        v_cvt_pk_bf16_f32 v19, v14, v15
        v_lshlrev_b32 v14, 16, v19
        v_and_b32 v15, 0xffff0000, v19
        v_add_f32 v14, v14, v111
        v_add_f32 v15, v15, v113
        v_cvt_pk_bf16_f32 v19, v14, v15
        ds_write_b32 v101, v19 offset:%d
        s_waitcnt lgkmcnt(0)
        ''' % L_H2)
        self.nat_gemv(4, WG, 99, L_H2, 4, 116)
        self.store_intra(['buffer_store_dword v4, v104, s[16:19], s48 offen'])
        self.tstamp(10)
        loads = []
        for rs in range(5):
            loads.append('buffer_load_dword v%d, v103, s[16:19], s49 offen offset:%d' % (8 + 2 * rs, rs * 768))
            loads.append('buffer_load_dword v%d, v103, s[16:19], s50 offen offset:%d' % (9 + 2 * rs, rs * 768))
        self.poll(loads, list(range(8, 18)), 20)
        a('''
        v_pk_add_f32 v[8:9], v[8:9], v[10:11]
        v_pk_add_f32 v[12:13], v[12:13], v[14:15]
        v_pk_add_f32 v[8:9], v[8:9], v[16:17]
        v_pk_add_f32 v[8:9], v[8:9], v[12:13]
        v_cvt_pk_bf16_f32 v10, v8, v9
        v_lshlrev_b32 v8, 16, v10
        v_and_b32 v9, 0xffff0000, v10
        v_mul_f32 v8, v8, v9
        v_cvt_pk_bf16_f32 v8, v8, v8
        ds_write_b16 v102, v8 offset:%d
        s_waitcnt lgkmcnt(0)
        ''' % L_GU)
        self.nat_gemv(2, WD, 100, L_GU, 4, 116)
        a('buffer_store_dword v4, v104, s[16:19], s85 offen %s\nbuffer_store_dword v4, v104, s[16:19], s54 offen %s' % (xp, xp))
        self.tstamp(11)
        a('s_cmp_eq_u32 s59, 0\ns_cbranch_scc1 L_T_end')
        self.gather24(55)
        self.rnd(4, 4)
        a('v_mul_f32 v4, v34, v4')
        self.rnd(4, 4)
        a('v_add_f32 v4, v32, v4\nv_cvt_pk_bf16_f32 v4, v4, v4\nbuffer_store_short v4, v39, s[28:31], s60 offen')
        self.tstamp(12)
        a.label('L_T_end')
        if self.stamps:
            for w, lst in ((8, self.stl_a0), (9, self.stl_a1), (10, self.stl_a2 + self.tl), (11, self.stl_a3)):
                l = a.newlabel('SFL')
                a('s_cmp_lg_u32 s3, %d\ns_cbranch_scc1 %s' % (w, l))
                self.stamp_flush(lst)
                a('s_endpgm')
                a.label(l)
        a.label('L_end')
        a('s_endpgm')

    def build(self):
        self.cold = []
        self.prologue(); self.s_wave(); self.a0_wave(); self.a1_wave(); self.a2_wave(); self.a3_wave(); self.tail()
        for lf, ins, lj in self.cold:
            self.a.label(lf)
            for i in ins: self.a(i)
            self.a('s_branch %s' % lj)
        txt = self.a.text()
        out = []; sec = ''
        for l in txt.split('\n'):
            if '================' in l: sec = l
            if ' nt' in l and 'buffer_load' in l:
                if 'S wave' in sec and 'lds' not in l:
                    pol = self.o['kpol'] if 's[8:11]' in l else self.o['vpol']
                else:
                    pol = self.o['wpol']
                pol = pol.replace('+', ' ').replace('def', '')
                l = l.replace(' nt', (' ' + pol) if pol else '')
            out.append(l)
        s = wrap('\n'.join(out), 256, 768, LDS_BYTES, 168)
        return s.replace('  .amdhsa_system_sgpr_workgroup_id_x 1\n', '  .amdhsa_system_sgpr_workgroup_id_x 1\n  .amdhsa_float_denorm_mode_32 3\n')

if __name__ == '__main__':
    import argparse
    ap = argparse.ArgumentParser()
    ap.add_argument('-o', default='k.s'); ap.add_argument('--stamps', action='store_true'); ap.add_argument('--opt', default='')
    x = ap.parse_args()
    kw = {}
    for kv in filter(None, x.opt.split(',')):
        k, v = kv.split('=')
        try: v = int(v)
        except ValueError: pass
        kw[k] = v
    open(x.o, 'w').write(Gen(stamps=x.stamps, **kw).build())
```
